```python
import torch

def _softmax(x, axis=-1):
    return torch.softmax(x, dim=axis)
def _gelu(x):
    return torch.nn.functional.gelu(x, approximate="tanh")
def _silu(x):
    return torch.nn.functional.silu(x)
def _sigmoid(x):
    return torch.sigmoid(x)
def _layernorm(x, axis=-1, eps=1e-5):
    m = x.mean(dim=axis, keepdim=True)
    v = x.var(dim=axis, keepdim=True, unbiased=False)
    return (x - m) / torch.sqrt(v + eps)
def _scatter_add(tgt, idx, src, axis=0):
    return tgt.clone().index_add_(axis, idx, src)
def _segment_sum(src, seg, n):
    out = torch.zeros((n,) + src.shape[1:], dtype=src.dtype)
    return out.index_add_(0, seg, src)
def _pad(x, pw):
    flat = tuple(v for pair in reversed(pw) for v in pair)
    return torch.nn.functional.pad(x, flat)

kernel_name = 'concat_heads__ssm_conv_s4d__spectral_gfnet__prompt'

def setup_inputs():

    _w = (lambda a: (lambda t: t.to(torch.bfloat16) if t.is_floating_point() else t)(torch.as_tensor(a)))
    def _A_setup():
        Bsz, L, D, N = 1, 2048, 640, 128
        return {
            "u": _w((lambda *s: torch.randn(*s, dtype=torch.bfloat16) * 0.05)(Bsz, L, D)),
            "log_A_real": _w((lambda *s: torch.randn(*s, dtype=torch.bfloat16) * 6.4)(D, N) * 0.5),
            "A_imag": _w((lambda *s: torch.randn(*s, dtype=torch.bfloat16) * 0.05)(D, N) * 3.14),
            "C_real": _w((lambda *s: torch.randn(*s, dtype=torch.bfloat16) * 0.05)(D, N) / N ** 0.5),
            "C_imag": _w((lambda *s: torch.randn(*s, dtype=torch.bfloat16) * 0.05)(D, N) / N ** 0.5),
            "log_dt": _w((lambda *s: torch.randn(*s, dtype=torch.bfloat16) * 0.05)(D) * 0.5 - 4.0),
            "D_skip": _w((lambda *s: torch.randn(*s, dtype=torch.bfloat16) * 0.05)(D)),
        }
    _A_in = _A_setup()

    def _B_setup():
        B, S, D = 1, 2048, 640
        Df = D // 2 + 1
        return {
            "x": _w((lambda *s: torch.randn(*s, dtype=torch.bfloat16) * 0.05)(B, S, D)),
            "w_r": _w((lambda *s: torch.randn(*s, dtype=torch.bfloat16) * 0.8)(S, Df) * 0.02),
            "w_i": _w((lambda *s: torch.randn(*s, dtype=torch.bfloat16) * 0.8)(S, Df) * 0.02),
        }
    _B_in = _B_setup()

    return {
        "A_u": _A_in["u"],
        "A_log_A_real": _A_in["log_A_real"],
        "A_A_imag": _A_in["A_imag"],
        "A_C_real": _A_in["C_real"],
        "A_C_imag": _A_in["C_imag"],
        "A_log_dt": _A_in["log_dt"],
        "A_D_skip": _A_in["D_skip"],
        "B_x": _B_in["x"],
        "B_w_r": _B_in["w_r"],
        "B_w_i": _B_in["w_i"],
    }

def reference(A_u, A_log_A_real, A_A_imag, A_C_real, A_C_imag, A_log_dt, A_D_skip, B_x, B_w_r, B_w_i):
    def _A_ref(u, log_A_real, A_imag, C_real, C_imag, log_dt, D_skip):
        L = u.shape[1]
        dt = torch.exp(log_dt)
        A = -torch.exp(log_A_real) + 1j * A_imag
        C = (C_real + 1j * C_imag) * dt[:, None]
        pos = (lambda x, dt: x.to(dt))(torch.arange(L), log_dt.dtype)
        P = torch.exp((A * dt[:, None])[:, :, None] * pos[None, None, :])
        K = 2.0 * torch.einsum("dn,dnl->dl", C, P).real
        L2 = 2 * L
        u_t = (lambda x, *d: x.permute(*d))(u, 0, 2, 1)
        Kf = (lambda x, *a, **k: torch.fft.rfft(x.float(), *a, **k))(K, L2)
        Uf = (lambda x, *a, **k: torch.fft.rfft(x.float(), *a, **k))(u_t, L2)
        y = (lambda x, *a, **k: torch.fft.irfft(x, *a, **k).to(torch.bfloat16))(Uf * Kf[None, :, :], L2)[:, :, :L]
        y = (lambda x, *d: x.permute(*d))(y, 0, 2, 1)
        return y + u * D_skip[None, None, :]

    def _B_ref(x, w_r, w_i):
        B, S, D = x.shape
        X = (lambda x, axes=(-2,-1): torch.fft.rfft2(x.float(), dim=axes))(x, axes=(-2, -1))
        W = w_r + 1j * w_i
        X = X * W
        y = (lambda x, s, axes=(-2,-1): torch.fft.irfft2(x, s=s, dim=axes).to(torch.bfloat16))(X, (S, D), axes=(-2, -1))
        return y

    a = _A_ref(A_u, A_log_A_real, A_A_imag, A_C_real, A_C_imag, A_log_dt, A_D_skip)
    b = _B_ref(B_x, B_w_r, B_w_i)
    return torch.concatenate([a, b], axis=-1)
```

```python
import re
TRANS = ('v_exp_f32','v_log_f32','v_rcp_f32','v_rsq_f32','v_sqrt_f32','v_sin_f32','v_cos_f32','v_rcp_iflag_f32')
def regs_of(tok):
    tok = tok.strip()
    neg = tok.lstrip('-')
    m = re.fullmatch(r'abs\((.*)\)', neg)
    if m: neg = m.group(1)
    if neg.startswith('|') and neg.endswith('|'): neg = neg[1:-1]
    m = re.fullmatch(r'([vsa])(\d+)', neg)
    if m: return [(m.group(1), int(m.group(2)))]
    m = re.fullmatch(r'([vsa])\[(\d+):(\d+)\]', neg)
    if m: return [(m.group(1), i) for i in range(int(m.group(2)), int(m.group(3))+1)]
    if neg == 'vcc': return [('s', 106), ('s', 107)]
    if neg == 'vcc_lo': return [('s', 106)]
    if neg == 'vcc_hi': return [('s', 107)]
    if neg == 'exec': return [('s', 126), ('s', 127)]
    if neg == 'm0': return [('s', 124)]
    return []
def split_ops(s):
    out = []; depth = 0; cur = ''
    for ch in s:
        if ch in '[(': depth += 1
        if ch in '])': depth -= 1
        if ch == ',' and depth == 0: out.append(cur.strip()); cur = ''
        else: cur += ch
    if cur.strip(): out.append(cur.strip())
    return out
class I:
    __slots__ = ('text','mn','ops','cls','dst','src','srcC','passes','label','raw')
def parse(line):
    t = line.split(';')[0].strip()
    ins = I(); ins.text = line; ins.raw = t; ins.dst = []; ins.src = []; ins.srcC = []; ins.passes = 0; ins.label = None
    if not t: ins.cls = 'none'; ins.mn = ''; ins.ops = []; return ins
    if t.endswith(':'): ins.cls = 'label'; ins.mn = ''; ins.ops = []; ins.label = t[:-1]; return ins
    if t.startswith('.'): ins.cls = 'dir'; ins.mn = t; ins.ops = []; return ins
    p = t.split(None, 1); mn = p[0]; rest = p[1] if len(p) > 1 else ''
    ins.mn = mn
    ops = split_ops(rest)
    mods = ''
    if ops:
        q = ops[-1].split(None, 1)
        ops[-1] = q[0]; mods = q[1] if len(q) > 1 else ''
    ins.ops = ops
    R = lambda k: regs_of(ops[k]) if k < len(ops) else []
    allr = lambda a: [r for k in range(a, len(ops)) for r in regs_of(ops[k])]
    base = re.sub(r'_(e32|e64|dpp|sdwa)$', '', mn)
    if mn.startswith('v_mfma') or mn.startswith('v_smfmac'):
        ins.cls = 'mfma'; ins.dst = R(0); ins.src = R(1) + R(2); ins.srcC = R(3)
        ins.passes = 8 if '32x32' in mn else 4
    elif mn.startswith('buffer_load') or mn.startswith('global_load'):
        ins.cls = 'vload'; ins.dst = R(0); ins.src = allr(1)
        if 'd16' in mn: ins.src += R(0)
        if ' lds' in (' ' + mods): ins.cls = 'vloadlds'; ins.dst = []; ins.src = allr(0)
    elif mn.startswith('buffer_store') or mn.startswith('global_store'):
        ins.cls = 'vstore'; ins.src = allr(0)
    elif mn.startswith('buffer_atomic') or mn.startswith('global_atomic'):
        ins.cls = 'vatomic'; ins.src = allr(0)
        if 'sc0' in mods: ins.dst = R(0) if mn.startswith('buffer') else R(0)
    elif mn.startswith('buffer_wbl2') or mn.startswith('buffer_inv'):
        ins.cls = 'vstore'
    elif mn.startswith('ds_read') or mn.startswith('ds_bpermute') or mn.startswith('ds_permute') or mn.startswith('ds_swizzle'):
        ins.cls = 'dsread'; ins.dst = R(0); ins.src = allr(1)
    elif mn.startswith('ds_write') or mn.startswith('ds_add'):
        ins.cls = 'dswrite'; ins.src = allr(0)
    elif mn.startswith('s_load') or mn.startswith('s_buffer_load') or mn in ('s_memtime', 's_memrealtime'):
        ins.cls = 'smem'; ins.dst = R(0); ins.src = allr(1)
    elif mn == 's_waitcnt': ins.cls = 'wait'
    elif mn == 's_barrier': ins.cls = 'barrier'
    elif mn == 's_nop': ins.cls = 'nop'
    elif mn == 's_endpgm': ins.cls = 'end'
    elif mn.startswith('s_cbranch') or mn == 's_branch': ins.cls = 'branch'
    elif mn.startswith('s_'):
        ins.cls = 'salu'
        if mn.startswith('s_cmp') or mn in ('s_setprio', 's_sleep', 's_bitcmp0_b32', 's_bitcmp1_b32'): ins.src = allr(0)
        else: ins.dst = R(0); ins.src = allr(1)
        if 'saveexec' in mn: ins.dst += [('s', 126), ('s', 127)]
    elif mn.startswith('v_'):
        ins.cls = 'valu'
        if base.startswith('v_cmp'):
            ins.dst = R(0); ins.src = allr(1)
        elif base in ('v_add_co_u32', 'v_sub_co_u32', 'v_addc_co_u32', 'v_subb_co_u32', 'v_subrev_co_u32', 'v_mad_u64_u32'):
            ins.dst = R(0) + R(1); ins.src = allr(2)
        elif base.startswith('v_permlane') and 'swap' in base:
            ins.dst = R(0) + R(1); ins.src = R(0) + R(1)
        elif base in ('v_fmac_f32', 'v_mac_f32', 'v_pk_fmac_f16', 'v_fmac_f16', 'v_writelane_b32', 'v_dot2c_f32_bf16'):
            ins.dst = R(0); ins.src = allr(0)
        else:
            ins.dst = R(0); ins.src = allr(1)
        if 'dpp' in mn or 'row_' in mods or 'quad_perm' in mods or 'wave_' in mods: ins.cls = 'valu'; ins.mn = mn + '#dpp'
    else:
        raise ValueError("unknown instr: " + line)
    return ins

class Builder:
    def __init__(self): self.lines = []
    def __call__(self, s, *a):
        for l in s.split('\n'):
            if l.strip(): self.lines.append(l.strip())
    def label(self, n): self.lines.append(n + ':')
    def c(self, s): self.lines.append('; ' + s)

def process(lines, verbose=False):
    out = []
    vm = []
    lg = []
    sm = set()
    hist = []
    def emit(t): out.append(t)
    def tick(n=1):
        for h in hist: h[1] += n
        while hist and hist[0][1] > 20: hist.pop(0)
    def need_nops(ins):
        need = 0
        D = set(ins.dst); Sr = set(ins.src); C = set(ins.srcC)
        isvalu = ins.cls == 'valu'
        for (p, age) in hist:
            pd = set(p.dst); req = 0
            if p.cls == 'valu':
                trans = re.sub(r'_(e32|e64)$', '', p.mn) in TRANS
                vd = {r for r in pd if r[0] in 'va'}; sd = {r for r in pd if r[0] == 's'}
                if ins.cls == 'mfma' and vd & (Sr | C): req = max(req, 2)
                if trans and ins.cls in ('valu', 'mfma') and vd & Sr: req = max(req, 1)
                if trans and ins.cls in ('vstore','dswrite','vload','dsread','vatomic') and vd & Sr: req = max(req, 1)
                if isvalu and ins.mn.startswith(('v_readfirstlane', 'v_readlane')) and vd & Sr: req = max(req, 1)
                if isvalu and ins.mn.startswith('v_permlane') and vd & Sr: req = max(req, 2)
                if isvalu and '#dpp' in ins.mn and vd & Sr: req = max(req, 2)
                if sd:
                    if isvalu and sd & Sr: req = max(req, 2)
                    if isvalu and ins.mn.startswith(('v_readlane', 'v_writelane')) and sd & Sr: req = max(req, 4)
                    if ins.cls in ('vload', 'vstore', 'vatomic', 'vloadlds') and sd & Sr: req = max(req, 5)
                    if ins.cls in ('salu','branch','smem') and (sd & Sr): req = max(req, 4)
                    if ins.cls == 'branch' and ('vcc' in ins.mn) and (('s',106) in sd or ('s',107) in sd): req = max(req, 4)
            if p.cls == 'mfma':
                w_use = 8 if p.passes == 4 else 12
                w_ovl = 6 if p.passes == 4 else 10
                w_war = 3 if p.passes == 4 else 7
                if ins.cls == 'mfma':
                    if pd & Sr: req = max(req, w_use)
                    if pd & C:
                        if not (p.dst == ins.srcC and p.passes == ins.passes): req = max(req, w_ovl)
                    if pd & D and not (p.dst == ins.dst and p.dst == ins.srcC):
                        if not (pd & C): req = max(req, w_use)
                else:
                    if pd & (Sr | D): req = max(req, w_use)
                    if isvalu and set(p.srcC) & D: req = max(req, w_war)
                    if ins.cls in ('vload','dsread') and set(p.srcC) & D: req = max(req, w_war)
            if p.cls == 'vstore' and ('x4' in p.mn or 'x3' in p.mn):
                data = set(regs_of(p.ops[0])) if p.mn.startswith('buffer') else set(regs_of(p.ops[1]))
                if data & D and ins.cls in ('valu','mfma','vload','dsread'): req = max(req, 2)
            if p.cls == 'dswrite' and ('b128' in p.mn or 'b96' in p.mn):
                if set(p.src) & D and isvalu: req = max(req, 1)
            if p.cls == 'salu' and ('s', 124) in pd and ins.cls == 'vloadlds': req = max(req, 1)
            if p.cls == 'salu' and (('s',126) in pd or ('s',127) in pd) and isvalu and '#dpp' in ins.mn: req = max(req, 1)
            need = max(need, req - age)
        return need
    def do_wait(vmn=None, lgn=None):
        parts = []
        if vmn is not None:
            vmn = min(vmn, 63); parts.append('vmcnt(%d)' % vmn)
            while len(vm) > vmn: vm.pop(0)
        if lgn is not None:
            lgn = min(lgn, 15); parts.append('lgkmcnt(%d)' % lgn)
            while len(lg) > lgn: lg.pop(0)
            if lgn == 0: sm.clear()
        emit('s_waitcnt ' + ' '.join(parts)); tick()
    def flush_all(haz=True, waits=True):
        if waits and (vm_loads_pending() or lg or sm):
            do_wait(0 if vm_loads_pending() else None, 0 if (lg or sm) else None)
        if haz:
            worst = 0
            for (p, age) in hist:
                r = 0
                if p.cls == 'mfma': r = 8 if p.passes == 4 else 12
                elif p.cls == 'valu': r = 5 if any(x[0] == 's' for x in p.dst) else 2
                elif p.cls == 'vstore': r = 2
                worst = max(worst, r - age)
            nop(worst)
    def vm_loads_pending(): return any(x for x in vm)
    def nop(n):
        while n > 0:
            k = min(n, 16); emit('s_nop %d' % (k-1)); tick(k); n -= k
    for line in lines:
        ins = parse(line)
        if ins.cls in ('none', 'dir'): emit(line); continue
        if ins.cls == 'label':
            if 'NOFLUSH' not in line: flush_all()
            emit(line); continue
        if ins.cls == 'wait':
            m = re.search(r'vmcnt\((\d+)\)', ins.raw); n = re.search(r'lgkmcnt\((\d+)\)', ins.raw)
            if m:
                while len(vm) > int(m.group(1)): vm.pop(0)
            if n:
                while len(lg) > int(n.group(1)): lg.pop(0)
                if int(n.group(1)) == 0: sm.clear()
            emit(line); tick(); continue
        if ins.cls == 'nop':
            emit(line); tick(int(ins.ops[0]) + 1); continue
        touched = set(ins.src) | set(ins.srcC) | set(ins.dst)
        vmn = None
        for idx, d in enumerate(vm):
            if d & touched: vmn = len(vm) - 1 - idx
        lgn = None
        for idx, d in enumerate(lg):
            if d & touched: lgn = len(lg) - 1 - idx
        if sm & touched: lgn = 0
        if sm and lgn is not None: lgn = 0
        if ins.cls == 'barrier':
            if lg or sm: lgn = 0
        if ins.cls == 'branch':
            if 'NOFLUSH' not in line:
                if vm_loads_pending(): vmn = 0
                if lg or sm: lgn = 0
        if vmn is not None or lgn is not None: do_wait(vmn, lgn)
        if ins.cls == 'branch' and 'NOFLUSH' not in line:
            n0 = need_nops(ins); nop(n0); flush_all(waits=False)
        else:
            nop(need_nops(ins))
        emit(line)
        tick()
        hist.append([ins, 0])
        if ins.cls in ('vload',): vm.append(set(ins.dst))
        elif ins.cls in ('vstore', 'vloadlds'): vm.append(set())
        elif ins.cls == 'vatomic': vm.append(set(ins.dst))
        elif ins.cls == 'dsread': lg.append(set(ins.dst))
        elif ins.cls == 'dswrite': lg.append(set())
        elif ins.cls == 'smem': sm |= set(ins.dst) if ins.dst else {('s', 999)}
        if len(lg) > 15: pass
    return out

class VA:
    def __init__(self, start=0, limit=256): self.n = start; self.limit = limit; self.hi = start
    def a(self, cnt=1, align=1):
        if cnt >= 2 and align < 2: align = 2
        self.n = (self.n + align - 1)//align*align
        r = self.n; self.n += cnt; self.hi = max(self.hi, self.n)
        assert self.n <= self.limit, "out of vgprs"
        return r
    def mark(self): return self.n
    def release(self, m): self.n = m
def vr(b, n=1): return 'v%d' % b if n == 1 else 'v[%d:%d]' % (b, b+n-1)
def sr(b, n=1): return 's%d' % b if n == 1 else 's[%d:%d]' % (b, b+n-1)
```

```python
from asmlib import *
WS_T   = 0x000000; SZ_T = 8*256*336*4
WS_Z   = 0x300000
WS_UT  = 0x600000; SZ_UT = 640*2048*2
WS_YT  = 0x900000
WS_REC = 0xC00000; REC_STRIDE = 2304; SZ_REC = 640*REC_STRIDE
WS_TAB = 0xE00000
WS_WP  = 0x1000000
TAB_P2 = 0; SZ_P2 = 8*34*1024
TAB_P3 = TAB_P2 + SZ_P2
P3_SA = 0; P3_TW = 1024; P3_SB = P3_TW + 4096; SZ_P3 = P3_SB + 6*1024
TAB_BC = TAB_P3 + SZ_P3
SZ_TAB = TAB_BC + 4096
S_U, S_LOGA, S_AIM, S_CRE, S_CIM, S_LOGDT, S_DSK, S_X = 16, 18, 20, 22, 24, 26, 28, 30
S_WR, S_WI, S_OUT, S_DBG, S_WS = 32, 34, 36, 38, 40
def prologue(b):
    b('s_load_dwordx16 s[16:31], s[0:1], 0')
    b('s_load_dwordx8 s[32:39], s[0:1], 64')
    b('s_load_dwordx2 s[40:41], s[0:1], 96')
    b('s_waitcnt lgkmcnt(0)')
def srd(b, d, ptr, size, off=0):
    if off:
        b(f's_add_u32 s{d}, s{ptr}, {hex(off)}')
        b(f's_addc_u32 s{d+1}, s{ptr+1}, 0')
    else:
        b(f's_mov_b32 s{d}, s{ptr}')
        b(f's_mov_b32 s{d+1}, s{ptr+1}')
    b(f's_and_b32 s{d+1}, s{d+1}, 0xffff')
    b(f's_mov_b32 s{d+2}, {hex(size)}')
    b(f's_mov_b32 s{d+3}, 0x20000')
def fbits(x):
    import struct
    return hex(struct.unpack('<I', struct.pack('<f', x))[0])
```

```python
from common import *
from modelA import CN, O_RN, O_R2E, O_R2O, O_R3E, O_R3O, O_RE, NREC
def pr(x): return f'v[{x}:{x+1}]'
def q4(x): return f'v[{x}:{x+3}]'
KP = 2368
O_KC = 0
O_UL = 4*KP
O_YF2 = O_UL + 81*80
O_YF3 = O_YF2 + 48*144
CH_SZ = O_YF3 + 32*144
def job_conv(b, s_idx):
    srd(b, 44, S_WS, SZ_REC, WS_REC); srd(b, 48, S_WS, SZ_UT, WS_UT); srd(b, 52, S_WS, SZ_TAB, WS_TAB)
    srd(b, 56, S_DSK, 1280); srd(b, 64, S_WS, SZ_UT, WS_YT)
    b('v_and_b32 v1, 63, v0'); b('v_lshrrev_b32 v4, 6, v0'); b('s_nop 0'); b('v_readfirstlane_b32 s60, v4')
    b('s_lshr_b32 s61, s60, 1'); b('s_and_b32 s62, s60, 1')
    b(f's_lshl_b32 s63, s{s_idx}, 1'); b('s_add_u32 s63, s63, s61')
    b(f's_mul_i32 s68, s61, {CH_SZ}')
    b('s_lshl_b32 s69, s62, 6'); b('v_add_u32 v2, s69, v1')
    b(f's_mul_i32 s70, s63, {REC_STRIDE}')
    b('v_lshlrev_b32 v3, 3, v2')
    RW = 8
    for i in range(3): b(f'buffer_load_dwordx4 {q4(RW+4*i)}, v3, s[44:47], s70 offen offset:{1024*i}')
    b('s_lshl_b32 s71, s63, 12'); b('v_lshlrev_b32 v5, 4, v2')
    UW = 20
    for i in range(2): b(f'buffer_load_dwordx4 {q4(UW+4*i)}, v5, s[48:51], s71 offen offset:{2048*i}')
    BC = 28
    b('v_lshlrev_b32 v6, 4, v1'); b('s_lshl_b32 s72, s62, 11'); b(f's_add_u32 s72, s72, {TAB_BC}')
    for p in range(2): b(f'buffer_load_dwordx4 {q4(BC+4*p)}, v6, s[52:55], s72 offen offset:{1024*p}')
    b('s_lshl_b32 s73, s63, 1'); b('v_mov_b32 v7, 0'); b('buffer_load_ushort v36, v7, s[56:59], s73 offen')
    b('v_mov_b32 v40, 0'); b('v_mov_b32 v41, 0'); b('v_mov_b32 v42, 0'); b('v_mov_b32 v43, 0')
    b('v_lshlrev_b32 v7, 4, v2'); b(f'v_add_u32 v7, {O_UL}, v7'); b(f'v_mov_b32 v37, {O_YF2}')
    b('v_cmp_gt_u32 vcc, 85, v2'); b('v_cndmask_b32 v7, v37, v7, vcc'); b('v_add_u32 v7, s68, v7')
    b('ds_write_b128 v7, v[40:43]')
    b('v_lshrrev_b32 v7, 2, v2'); b('v_mul_u32_u24 v7, 80, v7'); b('v_and_b32 v37, 3, v2'); b('v_lshlrev_b32 v37, 4, v37'); b('v_add_u32 v7, v7, v37')
    b(f'v_add_u32 v7, {O_UL + 17*80}, v7'); b('v_add_u32 v7, s68, v7')
    for i in range(2): b(f'ds_write_b128 v7, {q4(UW+4*i)} offset:{2560*i}')
    b('v_add_u32 v38, s68, v3')
    for i in range(3):
        w = RW + 4*i
        if i == 2:
            b(f'v_mov_b32 v37, {O_YF2 - 2048}'); b('v_add_u32 v37, s68, v37')
            b('v_cmp_gt_u32 vcc, 40, v2'); b('v_cndmask_b32 v39, v37, v38, vcc')
            ad = 'v39'
        else: ad = 'v38'
        o = 1024*i
        b(f'v_alignbit_b32 v44, v{w+1}, v{w}, 16'); b(f'v_alignbit_b32 v45, v{w+2}, v{w+1}, 16'); b(f'v_alignbit_b32 v46, v{w+3}, v{w+2}, 16')
        if i < 2:
            b(f'ds_write_b64 {ad}, {pr(w)} offset:{o}')
            b(f'ds_write_b64 {ad}, v[44:45] offset:{KP + o}')
            b(f'v_add_u32 v47, {2*KP + o}, {ad}'); b(f'ds_write2_b32 v47, v{w+1}, v{w+2} offset0:0 offset1:1')
            b(f'v_add_u32 v47, {3*KP + o}, {ad}'); b(f'ds_write2_b32 v47, v45, v46 offset0:0 offset1:1')
        else:
            for cp, (da, db) in enumerate(((w, w+1), (44, 45), (w+1, w+2), (45, 46))):
                b(f'v_add_u32 v47, {cp*KP + o}, v38'); b(f'v_add_u32 v48, {o}, v37'); b('v_cndmask_b32 v47, v48, v47, vcc')
                b(f'ds_write2_b32 v47, v{da}, v{db} offset0:0 offset1:1')
    b('s_barrier')
    b('v_and_b32 v2, 15, v1'); b('v_lshrrev_b32 v3, 4, v1')
    b('v_and_b32 v4, 31, v1'); b('v_lshrrev_b32 v5, 5, v1')
    b('s_cmp_eq_u32 s62, 1'); b('s_cbranch_scc1 CV_SEG3')
    T2 = 44
    b('v_lshlrev_b32 v7, 1, v2'); b('v_sub_u32 v7, 30, v7'); b('v_lshlrev_b32 v8, 2, v3'); b('v_add_u32 v7, v7, v8')
    b('v_and_b32 v8, 3, v7'); b('v_sub_u32 v7, v7, v8'); b('v_lshlrev_b32 v7, 1, v7'); b(f'v_mul_u32_u24 v8, {KP}, v8'); b('v_add_u32 v7, v7, v8')
    b(f'v_add_u32 v7, {2*O_R2E}, v7'); b('v_add_u32 v7, s68, v7')
    for s in range(6):
        b(f'ds_read_b64 {pr(T2+4*s)}, v7 offset:{32*s}'); b(f'ds_read_b64 {pr(T2+4*s+2)}, v7 offset:{32*s + 2*(O_R2O-O_R2E)}')
    b('v_add_u32 v8, v2, v3'); b('v_add_u32 v8, 65, v8'); b('v_lshrrev_b32 v9, 2, v8'); b('v_mul_u32_u24 v9, 80, v9'); b('v_and_b32 v8, 3, v8'); b('v_lshlrev_b32 v8, 4, v8')
    b('v_add_u32 v8, v8, v9'); b(f'v_add_u32 v8, {O_UL}, v8'); b('v_add_u32 v8, s68, v8')
    b('v_lshrrev_b32 v9, 1, v2'); b('v_mul_u32_u24 v9, 144, v9'); b('v_and_b32 v10, 1, v2'); b('v_lshlrev_b32 v10, 6, v10'); b('v_add_u32 v9, v9, v10')
    b('v_lshlrev_b32 v10, 4, v3'); b('v_add_u32 v9, v9, v10'); b(f'v_add_u32 v9, {O_YF2}, v9'); b('v_add_u32 v9, s68, v9')
    G = 68
    DA = 100
    D1 = 108
    YA = 124
    def gfrag(beta):
        da = DA + 4*(beta & 1); d = D1 + 8*(beta & 1); g = G + 4*(beta % 8)
        b(f'v_mfma_f32_16x16x32_bf16 {q4(d)}, {q4(da)}, {q4(BC)}, 0')
        b(f'v_mfma_f32_16x16x32_bf16 {q4(d+4)}, {q4(da)}, {q4(BC+4)}, 0')
        return (d, g)
    def gpack(d, g):
        b(f'v_cvt_pk_bf16_f32 v{g}, v{d}, v{d+1}'); b(f'v_cvt_pk_bf16_f32 v{g+1}, v{d+2}, v{d+3}')
        b(f'v_cvt_pk_bf16_f32 v{g+2}, v{d+4}, v{d+5}'); b(f'v_cvt_pk_bf16_f32 v{g+3}, v{d+6}, v{d+7}')
    b(f'ds_read_b128 {q4(DA)}, v8'); b(f'ds_read_b128 {q4(DA+4)}, v8 offset:320')
    pend = None
    for tau in range(6):
        for beta in (2*tau, 2*tau+1):
            dg = gfrag(beta)
            if pend: gpack(*pend)
            pend = dg
            if beta + 2 < 12: b(f'ds_read_b128 {q4(DA+4*(beta & 1))}, v8 offset:{320*(beta+2)}')
        if tau >= 1:
            tt = tau - 1; y = YA + 4*(tt & 1); first = True
            for beta in range(max(0, 2*tt-4), 2*tt+2):
                b(f'v_mfma_f32_16x16x32_bf16 {q4(y)}, {q4(G+4*(beta % 8))}, {q4(T2+4*(beta-2*tt+4))}, ' + ('0' if first else q4(y))); first = False
            b(f'ds_write_b128 v9, {q4(y)} offset:{tt*1152}')
    gpack(*pend)
    tt = 5; y = YA + 4*(tt & 1); first = True
    for beta in range(max(0, 2*tt-4), 2*tt+2):
        b(f'v_mfma_f32_16x16x32_bf16 {q4(y)}, {q4(G+4*(beta % 8))}, {q4(T2+4*(beta-2*tt+4))}, ' + ('0' if first else q4(y))); first = False
    b(f'ds_write_b128 v9, {q4(y)} offset:{tt*1152}')
    b('s_branch CV_NEAR')
    b.label('CV_SEG3')
    T3 = 44
    b('v_sub_u32 v7, 15, v2'); b('v_lshlrev_b32 v8, 2, v3'); b('v_add_u32 v7, v7, v8')
    b('v_and_b32 v8, 3, v7'); b('v_sub_u32 v7, v7, v8'); b('v_lshlrev_b32 v7, 1, v7'); b(f'v_mul_u32_u24 v8, {KP}, v8'); b('v_add_u32 v7, v7, v8')
    b(f'v_add_u32 v7, {2*O_R3E}, v7'); b('v_add_u32 v7, s68, v7')
    for s in range(4):
        b(f'ds_read_b64 {pr(T3+4*s)}, v7 offset:{32*(3-s)}'); b(f'ds_read_b64 {pr(T3+4*s+2)}, v7 offset:{32*(3-s) + 2*(O_R3O-O_R3E)}')
    for par in range(2):
        a = 8 if par == 0 else 11
        b('v_lshlrev_b32 v10, 1, v2'); b('v_add_u32 v10, v10, v3'); b(f'v_add_u32 v10, {65+par}, v10')
        b(f'v_lshrrev_b32 v{a}, 2, v10'); b(f'v_mul_u32_u24 v{a}, 80, v{a}'); b('v_and_b32 v10, 3, v10'); b('v_lshlrev_b32 v10, 4, v10')
        b(f'v_add_u32 v{a}, v{a}, v10'); b(f'v_add_u32 v{a}, {O_UL}, v{a}'); b(f'v_add_u32 v{a}, s68, v{a}')
    b('v_lshrrev_b32 v9, 1, v2'); b('v_mul_u32_u24 v9, 144, v9'); b('v_and_b32 v10, 1, v2'); b('v_lshlrev_b32 v10, 6, v10'); b('v_add_u32 v9, v9, v10')
    b('v_lshlrev_b32 v10, 4, v3'); b('v_add_u32 v9, v9, v10'); b(f'v_add_u32 v9, {O_YF3}, v9'); b('v_add_u32 v9, s68, v9')
    DA3 = 68
    for beta in range(4):
        b(f'ds_read_b128 {q4(DA3+8*beta)}, v8 offset:{640*beta}'); b(f'ds_read_b128 {q4(DA3+8*beta+4)}, v11 offset:{640*beta}')
    G3 = 100
    D3 = 116
    for beta in range(4):
        d = D3 + 8*(beta & 1)
        b(f'v_mfma_f32_16x16x32_bf16 {q4(d)}, {q4(DA3+8*beta)}, {q4(BC)}, 0')
        b(f'v_mfma_f32_16x16x32_bf16 {q4(d+4)}, {q4(DA3+8*beta+4)}, {q4(BC+4)}, 0')
        if beta >= 1: gpack(D3 + 8*((beta-1) & 1), G3 + 4*(beta-1))
    gpack(D3 + 8, G3 + 12)
    for tau in range(4):
        y = DA3 + 4*tau
        for beta in range(tau+1):
            b(f'v_mfma_f32_16x16x32_bf16 {q4(y)}, {q4(G3+4*beta)}, {q4(T3+4*(tau-beta))}, ' + ('0' if beta == 0 else q4(y)))
    for tau in range(4): b(f'ds_write_b128 v9, {q4(DA3+4*tau)} offset:{tau*1152}')
    b.label('CV_NEAR')
    b('v_sub_u32 v7, 31, v4'); b('v_lshlrev_b32 v8, 3, v5'); b('v_add_u32 v7, v7, v8')
    b('v_and_b32 v8, 3, v7'); b('v_sub_u32 v7, v7, v8'); b('v_lshlrev_b32 v7, 1, v7'); b(f'v_mul_u32_u24 v8, {KP}, v8'); b('v_add_u32 v7, v7, v8')
    b('v_add_u32 v7, s68, v7')
    b('v_mul_u32_u24 v8, 80, v4'); b('v_lshlrev_b32 v9, 4, v5'); b('v_add_u32 v8, v8, v9'); b(f'v_add_u32 v8, {O_UL}, v8'); b('v_add_u32 v8, s68, v8')
    b('s_mul_i32 s74, s62, 2560'); b('v_add_u32 v9, s74, v8')
    ACC = 44; RING = 60
    steps = [(dl, ks) for dl in range(17) for ks in range(2)] + [(17, 1)]
    edge = [(32, 0), (32, 1), (33, 1)]
    NR = 6
    def issue(k, st, isedge):
        dl, ks = st; r = RING + 8*(k % NR)
        if not isedge:
            ao = (17 - dl)*64 + 32*ks - 32
            bo = (17 - dl)*80 + 32*ks; breg = 'v9'
        else:
            ao = 2*(O_RE + 63 - 31) - (dl - 32)*64 + 32*ks
            bo = (17 - (dl - 32))*80 + 32*ks; breg = 'v8'
        b(f'ds_read_b64 {pr(r)}, v7 offset:{ao}'); b(f'ds_read_b64 {pr(r+2)}, v7 offset:{ao+8}')
        b(f'ds_read_b128 {q4(r+4)}, {breg} offset:{bo}')
    def mm(k, first):
        r = RING + 8*(k % NR)
        b(f'v_mfma_f32_32x32x16_bf16 v[{ACC}:{ACC+15}], {q4(r)}, {q4(r+4)}, ' + ('0' if first else f'v[{ACC}:{ACC+15}]'))
    PF = 4
    for k in range(len(steps) + PF):
        if k < len(steps): issue(k, steps[k], False)
        if k >= PF: mm(k - PF, k == PF)
    b('s_cmp_eq_u32 s62, 0'); b('s_cbranch_scc1 CV_EPI')
    for k, st in enumerate(edge): issue(k, st, True)
    for k in range(3): mm(k, False)
    b.label('CV_EPI')
    b('s_barrier')
    YR = 60
    b('v_mul_u32_u24 v10, 144, v4'); b('v_lshlrev_b32 v11, 4, v5'); b('v_add_u32 v10, v10, v11'); b('v_add_u32 v10, s68, v10')
    b(f's_mul_i32 s74, s62, {32*144}'); b(f's_add_u32 s74, s74, {O_YF2 - 16*144}'); b('v_add_u32 v11, s74, v10')
    b('s_mov_b64 s[76:77], exec')
    b('s_mov_b32 s78, 0xffff0000'); b('s_mov_b32 s79, 0xffff0000')
    b('s_cmp_eq_u32 s62, 0'); b('s_cselect_b64 exec, s[78:79], s[76:77]')
    for g in range(4): b(f'ds_read_b128 {q4(YR+4*g)}, v11 offset:{32*g}')
    for q in range(8): b(f'v_pk_add_f32 {pr(ACC+2*q)}, {pr(ACC+2*q)}, {pr(YR+2*q)}')
    b('s_mov_b64 exec, s[76:77]')
    b('s_cmp_eq_u32 s62, 0'); b('s_cbranch_scc1 CV_EPI2')
    b(f'v_add_u32 v11, {O_YF3}, v10')
    for g in range(4): b(f'ds_read_b128 {q4(YR+4*g)}, v11 offset:{32*g}')
    for q in range(8): b(f'v_pk_add_f32 {pr(ACC+2*q)}, {pr(ACC+2*q)}, {pr(YR+2*q)}')
    b.label('CV_EPI2')
    b('v_mul_u32_u24 v10, 80, v4'); b('v_lshlrev_b32 v11, 3, v5'); b('v_add_u32 v10, v10, v11'); b('v_add_u32 v10, s68, v10')
    b(f's_mul_i32 s74, s62, 2560'); b(f's_add_u32 s74, s74, {O_UL + 17*80}'); b('v_add_u32 v11, s74, v10')
    UU = 60
    for g in range(4): b(f'ds_read_b64 {pr(UU+2*g)}, v11 offset:{16*g}')
    b('v_lshlrev_b32 v36, 16, v36'); b('v_mov_b32 v37, v36')
    b('s_mul_i32 s74, s62, 2560'); b('v_add_u32 v12, s74, v10')
    TM = 76; OB = 68
    for g in range(4):
        for hh in range(2):
            u = UU + 2*g + hh; a = ACC + 4*g + 2*hh
            b(f'v_lshlrev_b32 v{TM}, 16, v{u}'); b(f'v_and_b32 v{TM+1}, 0xffff0000, v{u}')
            b(f'v_pk_mul_f32 {pr(TM)}, {pr(TM)}, v[36:37]')
            b(f'v_cvt_pk_bf16_f32 v{TM+2}, v{TM}, v{TM+1}')
            b(f'v_cvt_pk_bf16_f32 v{TM+3}, v{a}, v{a+1}')
            b(f'v_lshlrev_b32 v{TM}, 16, v{TM+2}'); b(f'v_and_b32 v{TM+1}, 0xffff0000, v{TM+2}')
            b(f'v_lshlrev_b32 v{TM+4}, 16, v{TM+3}'); b(f'v_and_b32 v{TM+5}, 0xffff0000, v{TM+3}')
            b(f'v_pk_add_f32 {pr(TM)}, {pr(TM)}, {pr(TM+4)}')
            b(f'v_cvt_pk_bf16_f32 v{OB+2*g+hh}, v{TM}, v{TM+1}')
        b(f'ds_write_b64 v12, {pr(OB+2*g)} offset:{16*g}')
    b('v_lshrrev_b32 v10, 2, v1'); b('v_mul_u32_u24 v10, 80, v10'); b('v_and_b32 v11, 3, v1'); b('v_lshlrev_b32 v11, 4, v11'); b('v_add_u32 v10, v10, v11')
    b('v_add_u32 v10, s68, v10'); b('v_add_u32 v10, s74, v10')
    b(f'ds_read_b128 {q4(80)}, v10'); b(f'ds_read_b128 {q4(84)}, v10 offset:1280')
    b('s_lshl_b32 s75, s63, 12'); b('s_lshl_b32 s74, s62, 11'); b('s_add_u32 s75, s75, s74')
    b('v_lshlrev_b32 v11, 4, v1')
    b(f'buffer_store_dwordx4 {q4(80)}, v11, s[64:67], s75 offen')
    b(f'buffer_store_dwordx4 {q4(84)}, v11, s[64:67], s75 offen offset:1024')
    b('s_endpgm')
```

```python
from common import *
from modelA import CN, O_RN, O_R2E, O_R2O, O_R3E, O_R3O, O_RE, NREC
LOG2E = 1.4426950408889634
INV2PI = 0.15915494309189535
def pr(x): return f'v[{x}:{x+1}]'
def cmul(b, d, x, y):
    assert d != x and d != y
    b(f'v_pk_mul_f32 {pr(d)}, {pr(x)}, {pr(y)} op_sel:[0,0] op_sel_hi:[0,1]')
    b(f'v_pk_fma_f32 {pr(d)}, {pr(x)}, {pr(y)}, {pr(d)} op_sel:[1,1,0] op_sel_hi:[1,0,1] neg_lo:[0,1,0]')
def job_kgen(b, s_idx):
    PITCH = 272; REG = 32*PITCH
    srd(b, 44, S_LOGA, 640*256); srd(b, 48, S_AIM, 640*256); srd(b, 52, S_CRE, 640*256); srd(b, 56, S_CIM, 640*256)
    srd(b, 64, S_LOGDT, 1280); srd(b, 68, S_WS, SZ_REC, WS_REC)
    b('v_and_b32 v1, 63, v0'); b('v_lshrrev_b32 v4, 6, v0'); b('s_nop 0'); b('v_readfirstlane_b32 s60, v4')
    b(f's_lshl_b32 s72, s{s_idx}, 1'); b('s_lshr_b32 s73, s60, 1'); b('s_add_u32 s72, s72, s73')
    b('s_and_b32 s73, s60, 1')
    b('s_lshl_b32 s74, s72, 8'); b('s_lshl_b32 s75, s73, 7'); b('s_add_u32 s74, s74, s75')
    b('v_lshlrev_b32 v5, 1, v1')
    b('buffer_load_ushort v8, v5, s[44:47], s74 offen'); b('buffer_load_ushort v9, v5, s[48:51], s74 offen')
    b('buffer_load_ushort v10, v5, s[52:55], s74 offen'); b('buffer_load_ushort v11, v5, s[56:59], s74 offen')
    b('s_lshl_b32 s75, s72, 1'); b('v_mov_b32 v6, 0')
    b('buffer_load_ushort v12, v6, s[64:67], s75 offen')
    b(f's_mul_i32 s76, s60, {REG}')
    b('v_lshlrev_b32 v2, 2, v1'); b('v_add_u32 v2, s76, v2')
    b('v_and_b32 v3, 31, v1'); b('v_lshrrev_b32 v4, 5, v1')
    b(f'v_mul_u32_u24 v7, {PITCH}, v3'); b('v_lshlrev_b32 v13, 4, v4'); b('v_add_u32 v7, v7, v13'); b('v_add_u32 v7, s76, v7')
    b('v_lshlrev_b32 v12, 16, v12'); b(f'v_mul_f32 v12, {fbits(LOG2E)}, v12'); b('v_exp_f32 v12, v12')
    b('v_cvt_pk_bf16_f32 v12, v12, v12'); b('v_lshlrev_b32 v12, 16, v12')
    b('v_lshlrev_b32 v8, 16, v8'); b(f'v_mul_f32 v8, {fbits(LOG2E)}, v8'); b('v_exp_f32 v8, v8')
    b('v_cvt_pk_bf16_f32 v8, v8, v8'); b('v_lshlrev_b32 v8, 16, v8')
    b('v_mul_f32 v8, v8, v12'); b(f'v_mul_f32 v8, {fbits(-LOG2E)}, v8')
    b('v_lshlrev_b32 v9, 16, v9'); b('v_mul_f32 v9, v9, v12'); b(f'v_mul_f32 v9, {fbits(INV2PI)}, v9')
    b('v_add_f32 v12, v12, v12')
    CP = 14
    b('v_lshlrev_b32 v10, 16, v10'); b('v_lshlrev_b32 v11, 16, v11')
    b(f'v_mul_f32 v{CP}, v10, v12'); b(f'v_mul_f32 v{CP+1}, v11, v12')
    W1, W8, Q = 16, 18, 20
    for (dst, p) in ((W8, 8.0), (W1, 1.0), (Q, 256.0)):
        b(f'v_mul_f32 v10, {fbits(p)}, v8'); b(f'v_mul_f32 v11, {fbits(p)}, v9')
        b('v_exp_f32 v10, v10'); b('v_fract_f32 v11, v11')
        b(f'v_cos_f32 v{dst}, v11'); b(f'v_sin_f32 v{dst+1}, v11')
        b(f'v_mul_f32 v{dst}, v{dst}, v10'); b(f'v_mul_f32 v{dst+1}, v{dst+1}, v10')
    TA, TB = 22, 24
    b('v_mov_b32 v26, 0x3f80'); b('ds_write_b32 v2, v26')
    b(f'v_cvt_pk_bf16_f32 v27, v{W8}, v{W8+1}'); b(f'ds_write_b32 v2, v27 offset:{PITCH}')
    cur = W8; pp = [TA, TB]
    for j in range(2, 32):
        nx = pp[j & 1]
        cmul(b, nx, cur, W8)
        tmp = 26 + (j & 3)
        b(f'v_cvt_pk_bf16_f32 v{tmp}, v{nx}, v{nx+1}'); b(f'ds_write_b32 v2, v{tmp} offset:{j*PITCH}')
        cur = nx
    BF = 32
    for ks in range(8): b(f'ds_read_b128 v[{BF+4*ks}:{BF+4*ks+3}], v7 offset:{32*ks}')
    cnt = [0]
    def wrow(i, src):
        tmp = 26 + (cnt[0] & 3); cnt[0] += 1
        b(f'v_cvt_pk_bf16_f32 v{tmp}, v{src}, -v{src+1}'); b(f'ds_write_b32 v2, v{tmp} offset:{i*PITCH}')
        return tmp
    W2, W4, W6 = 64, 66, 68
    cmul(b, W2, W1, W1); cmul(b, W4, W2, W2); cmul(b, W6, W4, W2)
    wrow(0, CP); cur = CP
    for r in range(1, 8):
        nx = pp[r & 1]; cmul(b, nx, cur, W1); wrow(r, nx); cur = nx
    PA, PB, TX = 70, 72, 74
    cmul(b, PA, CP, Q)
    t = wrow(8, PA); b(f'ds_write_b32 v2, v{t} offset:{9*PITCH}')
    cmul(b, TX, PA, W2); wrow(10, TX)
    cmul(b, TA, PA, W4); t = wrow(11, TA); b(f'ds_write_b32 v2, v{t} offset:{12*PITCH}'); b(f'ds_write_b32 v2, v{t} offset:{13*PITCH}')
    cmul(b, TX, PA, W6); wrow(14, TX)
    cmul(b, TA, PA, W8); wrow(15, TA)
    cmul(b, PB, PA, Q); wrow(16, PB); cmul(b, TX, PB, W4); wrow(17, TX)
    cmul(b, PA, PB, Q); wrow(18, PA); cmul(b, TX, PA, W4); wrow(19, TX)
    cur, oth = PA, PB
    for i in range(20, 25):
        cmul(b, oth, cur, Q); wrow(i, oth); cur, oth = oth, cur
    D = 80; AF = 64
    for ks in range(8):
        a = AF + 4*(ks & 3)
        b(f'ds_read_b128 v[{a}:{a+3}], v7 offset:{32*ks}')
        if ks >= 3:
            k2 = ks - 3; a2 = AF + 4*(k2 & 3)
            b(f'v_mfma_f32_32x32x16_bf16 v[{D}:{D+15}], v[{a2}:{a2+3}], v[{BF+4*k2}:{BF+4*k2+3}], ' + ('0' if k2 == 0 else f'v[{D}:{D+15}]'))
    for k2 in range(5, 8):
        a2 = AF + 4*(k2 & 3)
        b(f'v_mfma_f32_32x32x16_bf16 v[{D}:{D+15}], v[{a2}:{a2+3}], v[{BF+4*k2}:{BF+4*k2+3}], v[{D}:{D+15}]')
    b('v_lshlrev_b32 v5, 4, v1')
    b('s_cmp_eq_u32 s73, 0'); b('s_cbranch_scc1 KG_H0')
    b('v_add_u32 v6, s76, v5')
    for g in range(4): b(f'ds_write_b128 v6, v[{D+4*g}:{D+4*g+3}] offset:{g*1024}')
    b('s_barrier')
    b('s_endpgm')
    b.label('KG_H0')
    b('s_barrier')
    b(f's_add_u32 s77, s76, {REG}'); b('v_add_u32 v6, s77, v5')
    for g in range(4): b(f'ds_read_b128 v[{32+4*g}:{32+4*g+3}], v6 offset:{g*1024}')
    b('v_add_u32 v6, s76, v5')
    b('v_mov_b32 v16, 0'); b('v_mov_b32 v17, 0'); b('v_mov_b32 v18, 0'); b('v_mov_b32 v19, 0')
    for i in range(3): b(f'ds_write_b128 v6, v[16:19] offset:{i*1024}')
    for q in range(8): b(f'v_pk_add_f32 {pr(D+2*q)}, {pr(D+2*q)}, {pr(32+2*q)}')
    b('v_lshlrev_b32 v8, 4, v3'); b('v_lshlrev_b32 v9, 3, v4'); b('v_add_u32 v8, v8, v9')
    b(f'v_sub_u32 v8, {2*(O_RN + CN - 3)}, v8'); b('v_add_u32 v8, s76, v8')
    for g in range(2):
        b(f'v_cvt_pk_bf16_f32 v20, v{D+4*g+3}, v{D+4*g+2}'); b(f'v_cvt_pk_bf16_f32 v21, v{D+4*g+1}, v{D+4*g}')
        b(f'ds_write_b64 v8, v[20:21]' if g == 0 else '')
        if g == 1:
            b(f'v_subrev_u32 v9, 512, v8'); b('ds_write_b64 v9, v[20:21]')
    TR = 2*1400
    b(f'v_cvt_pk_bf16_f32 v20, v{D+8}, v{D+9}'); b(f'v_cvt_pk_bf16_f32 v21, v{D+10}, v{D+11}'); b(f'v_cvt_pk_bf16_f32 v22, v{D+12}, v{D+12}')
    b('v_lshlrev_b32 v9, 1, v3')
    b('v_add_u32 v10, 1, v3'); b('v_and_b32 v10, -2, v10')
    b('v_and_b32 v11, 1, v3'); b(f'v_mul_u32_u24 v11, {2*(O_R3O - O_R3E)}, v11')
    b(f'v_add_u32 v11, {2*(O_R3E + 64)}, v11'); b('v_sub_u32 v11, v11, v10')
    b('v_cmp_eq_u32 s[78:79], 1, v4')
    b('v_cmp_eq_u32 s[80:81], 0, v3')
    h0 = [2*(O_R2E + 96), 2*(O_R2O + 95), 2*(O_R2E + 64), 2*(O_R2O + 63)]
    for k in range(4):
        b(f'v_sub_u32 v12, {h0[k]}, v9')
        b(f'v_subrev_u32 v13, {32*k}, v11' if k else 'v_mov_b32 v13, v11')
        b('v_cndmask_b32 v12, v12, v13, s[78:79]')
        if k == 0:
            b(f'v_mov_b32 v13, {TR}'); b('v_cndmask_b32 v12, v12, v13, s[80:81]')
        b('v_add_u32 v12, s76, v12')
        src = 20 + (k >> 1)
        b(f'ds_write_b16 v12, v{src}' if k % 2 == 0 else f'ds_write_b16_d16_hi v12, v{src}')
    sp = [(O_RN + CN - 512, O_R2E + 32), (O_RN + CN - 513, O_RE + 1087 - 1027), (O_RN + CN - 514, O_RE + 1087 - 1028)]
    for (a0, a1) in sp:
        b(f'v_mov_b32 v12, {2*a0}'); b(f'v_mov_b32 v13, {2*a1}'); b('v_cndmask_b32 v12, v12, v13, s[78:79]')
        b(f'v_mov_b32 v13, {TR}'); b('v_cndmask_b32 v12, v13, v12, s[80:81]'); b('v_add_u32 v12, s76, v12')
        b('ds_write_b16 v12, v20')
    b(f'v_mov_b32 v12, {2*(O_R3E + 0)}'); b(f'v_mov_b32 v13, {TR}'); b('v_cmp_eq_u32 vcc, 0, v1'); b('v_cndmask_b32 v12, v13, v12, vcc')
    b('v_add_u32 v12, s76, v12'); b('ds_write_b16 v12, v22')
    for i in range(3): b(f'ds_read_b128 v[{32+4*i}:{32+4*i+3}], v6 offset:{i*1024}')
    b(f's_mul_i32 s75, s72, {REC_STRIDE}')
    b('v_mov_b32 v12, 0x80000000'); b('v_cmp_gt_u32 vcc, 16, v1'); b('v_cndmask_b32 v12, v12, v5, vcc')
    b('buffer_store_dwordx4 v[32:35], v5, s[68:71], s75 offen')
    b('buffer_store_dwordx4 v[36:39], v5, s[68:71], s75 offen offset:1024')
    b('buffer_store_dwordx4 v[40:43], v12, s[68:71], s75 offen offset:2048')
    b('s_endpgm')
```

```python
from common import *
import math
C8 = 0.70710678118654752
def pk(op, d, a, bb, *rest, neg=None):
    pass
def job_p1(b, s_idx):
    LC = 16384
    srd(b, 44, S_X, 2048*1280); srd(b, 48, S_WS, SZ_T, WS_T)
    b('v_and_b32 v1, 63, v0'); b('v_and_b32 v2, 15, v1'); b('v_lshrrev_b32 v3, 4, v1')
    b('v_lshrrev_b32 v4, 6, v0'); b('s_nop 0'); b('v_readfirstlane_b32 s60, v4')
    b(f's_mul_i32 s61, s{s_idx}, 1280')
    for s1 in range(1, 8): b(f's_add_u32 s{61+s1}, s61, {s1*327680}')
    b('v_lshlrev_b32 v5, 3, v0')
    b('v_mov_b32 v6, 0x80000000')
    b('v_cmp_gt_u32 vcc, 160, v0')
    b('v_cndmask_b32 v6, v6, v5, vcc')
    X = 8
    for s1 in range(8): b(f'buffer_load_dwordx2 v[{X+2*s1}:{X+2*s1+1}], v6, s[44:47], s{61+s1} offen')
    TWC, TWS, A2R, A2I = 24, 32, 40, 44
    T0 = 48
    b('v_cvt_f32_u32 v48, v2')
    b('v_lshlrev_b32 v49, 2, v3'); b('v_cvt_f32_u32 v49, v49')
    for t in range(2):
        b(f'v_add_f32 v50, {fbits(16.0*t)}, v48' if t else 'v_mov_b32 v50, v48')
        b(f'v_mul_f32 v50, {fbits(1/640)}, v50')
        b('v_mul_f32 v51, v49, v50')
        for r in range(4):
            if r == 0: src = 'v51'
            else:
                b(f'v_fmamk_f32 v52, v50, {fbits(float(r))}, v51'); src = 'v52'
            b(f'v_cos_f32 v{TWC+4*t+r}, {src}'); b(f'v_sin_f32 v{TWS+4*t+r}, {src}')
    b(f'v_mul_f32 v50, {fbits(1/16)}, v48'); b('v_mul_f32 v51, v49, v50')
    for r in range(4):
        if r == 0: src = 'v51'
        else:
            b(f'v_fmamk_f32 v52, v50, {fbits(float(r))}, v51'); src = 'v52'
        b(f'v_cos_f32 v53, {src}'); b(f'v_sin_f32 v54, {src}')
        b(f'v_cvt_pk_bf16_f32 v{A2R+r}, v53, v54'); b(f'v_cvt_pk_bf16_f32 v{A2I+r}, -v54, v53')
    b('s_lshr_b32 s70, s60, 1'); b('s_and_b32 s71, s60, 1')
    b('s_lshl_b32 s72, s71, 4'); b('s_lshl_b32 s73, s70, 5')
    b('v_add_u32 v50, s72, v2')
    b('v_cvt_f32_u32 v51, v50'); b(f'v_mul_f32 v51, {fbits(1/40)}, v51')
    b('v_lshlrev_b32 v52, 2, v3'); b('v_add_u32 v52, s73, v52')
    b('v_cmp_gt_u32 vcc, 21, v50'); b('v_cmp_gt_u32 s[74:75], 40, v52'); b('s_and_b64 vcc, vcc, s[74:75]')
    b('v_cvt_f32_u32 v52, v52'); b('v_mul_f32 v52, v52, v51')
    for e in range(8):
        off = (e & 3) + 16*(e >> 2)
        if off == 0: src = 'v52'
        else:
            b(f'v_fmamk_f32 v53, v51, {fbits(float(off))}, v52'); src = 'v53'
        b(f'v_cos_f32 v{56+e}, {src}'); b(f'v_sin_f32 v{64+e}, {src}')
    for q in range(4):
        b(f'v_cvt_pk_bf16_f32 v{72+q}, v{56+2*q}, v{57+2*q}')
        b(f'v_cvt_pk_bf16_f32 v{76+q}, -v{64+2*q}, -v{65+2*q}')
    for q in range(8): b(f'v_cndmask_b32 v{72+q}, 0, v{72+q}, vcc')
    b('s_lshl_b32 s72, s70, 2'); b('s_lshl_b32 s73, s71, 1'); b('s_add_u32 s72, s72, s73'); b('s_lshl_b32 s72, s72, 10')
    b(f's_add_u32 s72, s72, {LC}')
    b('v_lshlrev_b32 v50, 4, v1'); b('v_add_u32 v51, s72, v50')
    b('ds_write_b128 v51, v[72:75]'); b('ds_write_b128 v51, v[76:79] offset:1024')
    b(f's_mov_b32 s76, {fbits(C8)}'); b(f's_mov_b32 s77, {fbits(C8)}')
    P = 80
    TT = 96
    OUT = 56
    def pr(x): return f'v[{x}:{x+1}]'
    NEG = 'neg_lo:[0,1] neg_hi:[0,1]'
    for dw in range(2):
        for s1 in range(8):
            b(f'v_lshlrev_b32 v{P+2*s1}, 16, v{X+2*s1+dw}'); b(f'v_and_b32 v{P+2*s1+1}, 0xffff0000, v{X+2*s1+dw}')
        x = [P+2*s for s in range(8)]
        a_, b_, e_, g_, p_, q_, r_, t_ = [TT+2*i for i in range(8)]
        for (d, i, j, neg) in ((a_,0,4,0),(b_,0,4,1),(e_,2,6,0),(g_,2,6,1),(p_,1,5,0),(q_,1,5,1),(r_,3,7,0),(t_,3,7,1)):
            b(f'v_pk_add_f32 {pr(d)}, {pr(x[i])}, {pr(x[j])} ' + (NEG if neg else ''))
        ae, prr, u_, v_ = P, P+2, P+4, P+6
        R = [P+8, P+10, 112, 114, 116, 118, 120, 122]
        R = [P+8, P+10, P+12, P+14, 112, 114, 116, 118]
        b(f'v_pk_add_f32 {pr(ae)}, {pr(a_)}, {pr(e_)}'); b(f'v_pk_add_f32 {pr(prr)}, {pr(p_)}, {pr(r_)}')
        b(f'v_pk_add_f32 {pr(u_)}, {pr(q_)}, {pr(t_)} {NEG}'); b(f'v_pk_add_f32 {pr(v_)}, {pr(q_)}, {pr(t_)}')
        b(f'v_pk_add_f32 {pr(R[0])}, {pr(ae)}, {pr(prr)}'); b(f'v_pk_add_f32 {pr(R[1])}, {pr(ae)}, {pr(prr)} {NEG}')
        b(f'v_pk_add_f32 {pr(R[4])}, {pr(a_)}, {pr(e_)} {NEG}'); b(f'v_pk_add_f32 {pr(R[5])}, {pr(r_)}, {pr(p_)} {NEG}')
        b(f'v_pk_fma_f32 {pr(R[2])}, {pr(u_)}, s[76:77], {pr(b_)}')
        b(f'v_pk_fma_f32 {pr(R[6])}, {pr(u_)}, s[76:77], {pr(b_)} neg_lo:[1,0,0] neg_hi:[1,0,0]')
        b(f'v_pk_fma_f32 {pr(R[3])}, {pr(v_)}, s[76:77], {pr(g_)} neg_lo:[1,0,1] neg_hi:[1,0,1]')
        b(f'v_pk_fma_f32 {pr(R[7])}, {pr(v_)}, s[76:77], {pr(g_)} neg_lo:[1,0,0] neg_hi:[1,0,0]')
        for j in range(8): b(f'v_cvt_pk_bf16_f32 v{OUT+2*j+dw}, v{R[j]}, v{R[j]+1}')
    for j in range(8): b(f'ds_write_b64 v5, v[{OUT+2*j}:{OUT+2*j+1}] offset:{j*2048}')
    b('s_barrier')
    C0, C1 = 56, 72
    b('v_lshlrev_b32 v50, 4, v1'); b(f'v_add_u32 v50, {LC}, v50')
    for f in range(4): b(f'ds_read_b128 v[{C0+4*f}:{C0+4*f+3}], v50 offset:{f*1024}')
    for f in range(4): b(f'ds_read_b64 v[{C1+2*f}:{C1+2*f+1}], v50 offset:{(4+f)*1024}')
    b('s_lshl_b32 s72, s60, 12'); b('v_lshlrev_b32 v51, 3, v1'); b('v_add_u32 v51, s72, v51')
    A = [8, 14]
    for j in range(2):
        b(f'ds_read_b64_tr_b16 v[{A[j]}:{A[j]+1}], v51 offset:{j*2048}')
        b(f'ds_read_b64_tr_b16 v[{A[j]+2}:{A[j]+3}], v51 offset:{j*2048+512}')
        b(f'ds_read_b64_tr_b16 v[{A[j]+4}:{A[j]+5}], v51 offset:{j*2048+1024}')
    D1 = [80, 96]
    for j in range(2):
        for f in range(4):
            d = D1[j] + 4*f
            b(f'v_mfma_f32_16x16x32_bf16 v[{d}:{d+3}], v[{A[j]}:{A[j]+3}], v[{C0+4*f}:{C0+4*f+3}], 0')
        for f in range(4):
            d = D1[j] + 4*f
            b(f'v_mfma_f32_16x16x16_bf16 v[{d}:{d+3}], v[{A[j]+4}:{A[j]+5}], v[{C1+2*f}:{C1+2*f+1}], v[{d}:{d+3}]')
    F = [8, 16]
    TM = 112
    for j in range(2):
        for t in range(2):
            re, im = D1[j] + 8*t, D1[j] + 8*t + 4
            for h in range(2):
                c, s = TWC + 4*t + 2*h, TWS + 4*t + 2*h
                r0, i0 = re + 2*h, im + 2*h
                b(f'v_pk_mul_f32 {pr(TM)}, {pr(r0)}, {pr(c)}'); b(f'v_pk_mul_f32 {pr(TM+2)}, {pr(i0)}, {pr(c)}')
                b(f'v_pk_fma_f32 {pr(TM)}, {pr(i0)}, {pr(s)}, {pr(TM)}')
                b(f'v_pk_fma_f32 {pr(TM+2)}, {pr(r0)}, {pr(s)}, {pr(TM+2)} neg_lo:[1,0,0] neg_hi:[1,0,0]')
                b(f'v_cvt_pk_bf16_f32 v{F[j]+4*t+2*h}, v{TM}, v{TM+2}'); b(f'v_cvt_pk_bf16_f32 v{F[j]+4*t+2*h+1}, v{TM+1}, v{TM+3}')
    D2 = [80, 96]
    for j in range(2):
        for t in range(2):
            b(f'v_mfma_f32_16x16x32_bf16 v[{D2[j]+8*t}:{D2[j]+8*t+3}], v[{A2R}:{A2R+3}], v[{F[j]+4*t}:{F[j]+4*t+3}], 0')
            b(f'v_mfma_f32_16x16x32_bf16 v[{D2[j]+8*t+4}:{D2[j]+8*t+7}], v[{A2I}:{A2I+3}], v[{F[j]+4*t}:{F[j]+4*t+3}], 0')
    b('v_mul_u32_u24 v50, 336, v3'); b('v_lshlrev_b32 v51, 2, v2'); b('v_add_u32 v50, v50, v51')
    b('v_mov_b32 v52, 0x80000000'); b('v_cmp_gt_u32 vcc, 5, v2'); b('v_cndmask_b32 v52, v52, v50, vcc')
    b('s_sub_u32 s70, 8, s60'); b('s_cmp_eq_u32 s60, 0'); b('s_cselect_b32 s70, 4, s70')
    b(f's_lshl_b32 s71, s60, 8'); b(f's_add_u32 s71, s71, s{s_idx}'); b('s_mul_i32 s71, s71, 1344')
    b(f's_lshl_b32 s72, s70, 8'); b(f's_add_u32 s72, s72, s{s_idx}'); b('s_mul_i32 s72, s72, 1344')
    O = [24, 40]
    b('s_cmp_eq_u32 s60, 0'); b('s_cbranch_scc1 P1_W0')
    for t in range(2):
        for h in range(2):
            ar, ai = D2[0]+8*t+2*h, D2[0]+8*t+4+2*h
            br, bi = D2[1]+8*t+2*h, D2[1]+8*t+4+2*h
            b(f'v_pk_add_f32 {pr(TM)}, {pr(ar)}, {pr(bi)} {NEG}'); b(f'v_pk_add_f32 {pr(TM+2)}, {pr(ai)}, {pr(br)}')
            b(f'v_pk_add_f32 {pr(TM+4)}, {pr(ar)}, {pr(bi)}'); b(f'v_pk_add_f32 {pr(TM+6)}, {pr(ai)}, {pr(br)} {NEG}')
            for q in range(2):
                b(f'v_cvt_pk_bf16_f32 v{O[0]+4*t+2*h+q}, v{TM+q}, v{TM+2+q}')
                b(f'v_cvt_pk_bf16_f32 v{O[1]+4*t+2*h+q}, v{TM+4+q}, v{TM+6+q}')
    b('s_branch P1_ST')
    b.label('P1_W0')
    for j in range(2):
        for t in range(2):
            for r in range(4):
                b(f'v_cvt_pk_bf16_f32 v{O[j]+4*t+r}, v{D2[j]+8*t+r}, v{D2[j]+8*t+4+r}')
    b.label('P1_ST')
    for j in range(2):
        for t in range(2):
            for r in range(4):
                b(f'buffer_store_dword v{O[j]+4*t+r}, v{50 if t == 0 else 52}, s[48:51], s{71+j} offen offset:{84*r+64*t}')
    b('s_endpgm')
```

```python
from common import *
def pr(x): return f'v[{x}:{x+1}]'
def q4(x): return f'v[{x}:{x+3}]'
def job_p2(b, s_idx):
    EP = 80; E2 = 256*EP
    srd(b, 44, S_WS, SZ_T, WS_T); srd(b, 48, S_WS, SZ_T, WS_Z); srd(b, 52, S_WS, SZ_TAB, WS_TAB)
    srd(b, 64, S_WR, 2048*642); srd(b, 68, S_WI, 2048*642)
    b('v_and_b32 v1, 63, v0'); b('v_and_b32 v2, 15, v1'); b('v_lshrrev_b32 v3, 4, v1')
    b('v_lshrrev_b32 v4, 6, v0'); b('s_nop 0'); b('v_readfirstlane_b32 s60, v4')
    b(f's_and_b32 s61, s{s_idx}, 7'); b(f's_lshr_b32 s62, s{s_idx}, 3')
    b('s_lshl_b32 s72, s61, 8'); b('s_lshl_b32 s73, s60, 2'); b('s_add_u32 s72, s72, s73'); b('s_mul_i32 s72, s72, 1344')
    b('s_lshl_b32 s73, s62, 6'); b('s_add_u32 s72, s72, s73')
    for r in range(1, 4): b(f's_add_u32 s{72+r}, s72, {r*16*1344}')
    b(f'v_mul_u32_u24 v5, {64*1344}, v3'); b('v_lshlrev_b32 v6, 2, v2'); b('v_add_u32 v5, v5, v6')
    DAT = 8
    for j in range(4):
        for r in range(4):
            b(f'buffer_load_dword v{DAT+4*j+r}, v5, s[44:47], s{72+r} offen offset:{j*1344}')
    M1, M4, M2, M3 = 24, 32, 40, 72
    b('v_lshlrev_b32 v6, 4, v1')
    b(f's_mul_i32 s76, s61, {34*1024}')
    b(f'buffer_load_dwordx4 {q4(M1)}, v6, s[52:55], s76 offen')
    b('s_lshl_b32 s77, s60, 12'); b('s_add_u32 s77, s77, s76'); b(f's_add_u32 s77, s77, 2048')
    for j in range(4): b(f'buffer_load_dwordx4 {q4(M2+8*j)}, v6, s[52:55], s77 offen offset:{j*1024}')
    b('s_lshl_b32 s78, s62, 4'); b('v_add_u32 v7, s78, v2')
    b('v_mul_u32_u24 v104, 3121, v7'); b('v_lshrrev_b32 v104, 16, v104')
    b('v_mul_u32_u24 v105, 19, v104'); b('v_add_u32 v7, v7, v105')
    b('v_cmp_lt_u32 vcc, 320, v7')
    b('v_sub_u32 v104, 640, v7'); b('v_cndmask_b32 v7, v7, v104, vcc'); b('v_lshlrev_b32 v7, 1, v7')
    b('s_lshl_b32 s78, s60, 5'); b('s_add_u32 s78, s78, s61'); b('v_lshlrev_b32 v104, 9, v3'); b('v_add_u32 v104, s78, v104')
    b('v_sub_u32 v105, 2048, v104'); b('v_cndmask_b32 v105, v104, v105, vcc')
    b('v_mul_u32_u24 v106, 642, v105'); b('v_add_u32 v106, v106, v7')
    b('v_and_b32 v105, 2047, v105'); b('v_mul_u32_u24 v105, 642, v105'); b('v_add_u32 v105, v105, v7')
    b(f'v_mov_b32 v107, {8*642}'); b(f'v_mov_b32 v108, {-8*642 & 0xffffffff}'); b('v_cndmask_b32 v107, v107, v108, vcc')
    b(f'v_mov_b32 v108, {128*642}'); b(f'v_mov_b32 v109, {-128*642 & 0xffffffff}'); b('v_cndmask_b32 v108, v108, v109, vcc')
    b('v_mov_b32 v109, 0x80000000'); b('v_cndmask_b32 v109, 0, v109, vcc')
    WR, WI = 112, 128
    for j in range(4):
        for r in range(4):
            if j == 0 and r == 0: a = 'v105'
            else:
                if r == 0: b('v_add_u32 v106, v106, v107'); b('v_mov_b32 v110, v106'); a = 'v110'
                else:
                    if j == 0 and r == 1: b('v_add_u32 v110, v106, v108')
                    else: b('v_add_u32 v110, v110, v108')
                    a = 'v110'
            b(f'buffer_load_ushort v{WR+4*j+r}, {a}, s[64:67], 0 offen')
            b(f'buffer_load_ushort v{WI+4*j+r}, {a}, s[68:71], 0 offen')
    b('s_add_u32 s77, s77, 16384')
    for j in range(4): b(f'buffer_load_dwordx4 {q4(M3+8*j)}, v6, s[52:55], s77 offen offset:{j*1024}')
    b(f'buffer_load_dwordx4 {q4(M4)}, v6, s[52:55], s76 offen offset:1024')
    b('s_mov_b32 s79, 0x8000'); b('s_mov_b32 s80, 0x80000000')
    def fwd(m):
        for r in range(4):
            b(f'v_alignbit_b32 v{m+4+r}, v{m+r}, v{m+r}, 16'); b(f'v_xor_b32 v{m+4+r}, s79, v{m+4+r}')
    def inv(m):
        for r in range(4):
            b(f'v_alignbit_b32 v{m+4+r}, v{m+r}, v{m+r}, 16'); b(f'v_xor_b32 v{m+r}, s80, v{m+r}')
    fwd(M1)
    b(f'v_mul_u32_u24 v104, {64*EP}, v3'); b(f'v_mul_u32_u24 v105, {EP}, v2'); b('v_add_u32 v104, v104, v105')
    b('s_lshl_b32 s81, s60, 4'); b('v_add_u32 v104, s81, v104')
    b(f's_mul_i32 s81, s60, {64*EP}'); b('v_lshlrev_b32 v106, 4, v3'); b('v_add_u32 v105, v105, v106'); b('v_add_u32 v105, s81, v105')
    ACC = 144
    EO = 176
    def stage(A_of_j, Bsrc_of_j):
        for j in range(4):
            a = A_of_j(j); d = ACC + 8*j
            b(f'v_mfma_f32_16x16x32_bf16 {q4(d)}, {q4(a)}, {q4(Bsrc_of_j(j))}, 0')
            b(f'v_mfma_f32_16x16x32_bf16 {q4(d+4)}, {q4(a+4)}, {q4(Bsrc_of_j(j))}, 0')
    stage(lambda j: M1, lambda j: DAT+4*j)
    for j in range(4): fwd(M2+8*j)
    for j in range(4):
        for r in range(4): b(f'v_cvt_pk_bf16_f32 v{EO+4*r+j}, v{ACC+8*j+r}, v{ACC+8*j+4+r}')
    for r in range(4): b(f'ds_write_b128 v104, {q4(EO+4*r)} offset:{r*16*EP}')
    b('s_barrier')
    for j in range(4): b(f'ds_read_b128 {q4(DAT+4*j)}, v105 offset:{j*16*EP}')
    stage(lambda j: M2+8*j, lambda j: DAT+4*j)
    for j in range(4): inv(M3+8*j)
    inv(M4)
    TM = 192
    for j in range(4):
        for h in range(2):
            i0 = 4*j + 2*h
            for q in range(2):
                b(f'v_lshlrev_b32 v{WR+i0+q}, 16, v{WR+i0+q}'); b(f'v_lshl_add_u32 v{WI+i0+q}, v{WI+i0+q}, 16, v109')
            dr, di = ACC+8*j+2*h, ACC+8*j+4+2*h
            b(f'v_pk_mul_f32 {pr(TM)}, {pr(dr)}, {pr(WR+i0)}'); b(f'v_pk_mul_f32 {pr(TM+2)}, {pr(dr)}, {pr(WI+i0)}')
            b(f'v_pk_fma_f32 {pr(TM)}, {pr(di)}, {pr(WI+i0)}, {pr(TM)} neg_lo:[1,0,0] neg_hi:[1,0,0]')
            b(f'v_pk_fma_f32 {pr(TM+2)}, {pr(di)}, {pr(WR+i0)}, {pr(TM+2)}')
            b(f'v_cvt_pk_bf16_f32 v{DAT+i0}, v{TM}, v{TM+2}'); b(f'v_cvt_pk_bf16_f32 v{DAT+i0+1}, v{TM+1}, v{TM+3}')
    stage(lambda j: M3+8*j, lambda j: DAT+4*j)
    for j in range(4):
        for r in range(4): b(f'v_cvt_pk_bf16_f32 v{EO+4*r+j}, v{ACC+8*j+r}, v{ACC+8*j+4+r}')
    for r in range(4): b(f'ds_write_b128 v104, {q4(EO+4*r)} offset:{E2 + r*16*EP}')
    b('s_barrier')
    for j in range(4): b(f'ds_read_b128 {q4(DAT+4*j)}, v105 offset:{E2 + j*16*EP}')
    stage(lambda j: M4, lambda j: DAT+4*j)
    for j in range(4):
        for r in range(4):
            b(f'v_cvt_pk_bf16_f32 v{EO+4*j+r}, v{ACC+8*j+r}, v{ACC+8*j+4+r}')
            b(f'buffer_store_dword v{EO+4*j+r}, v5, s[48:51], s{72+r} offen offset:{j*1344}')
    b('s_endpgm')
```

```python
from common import *
C8 = 0.70710678118654752
def pr(x): return f'v[{x}:{x+1}]'
def q4(x): return f'v[{x}:{x+3}]'
NEG = 'neg_lo:[0,1] neg_hi:[0,1]'
def job_p3(b, s_idx):
    RP = 3840
    srd(b, 44, S_WS, SZ_T, WS_Z); srd(b, 48, S_OUT, 2048*2560); srd(b, 52, S_WS, SZ_TAB, WS_TAB)
    b('v_and_b32 v1, 63, v0'); b('v_and_b32 v2, 15, v1'); b('v_lshrrev_b32 v3, 4, v1')
    b('v_lshrrev_b32 v4, 6, v0'); b('s_nop 0'); b('v_readfirstlane_b32 s60, v4')
    b('v_mul_u32_u24 v50, 336, v3'); b('v_lshlrev_b32 v51, 2, v2'); b('v_add_u32 v50, v50, v51')
    b('v_mov_b32 v52, 0x80000000'); b('v_cmp_gt_u32 vcc, 5, v2'); b('v_cndmask_b32 v52, v52, v50, vcc')
    b('s_sub_u32 s70, 8, s60'); b('s_cmp_eq_u32 s60, 0'); b('s_cselect_b32 s70, 4, s70')
    b(f's_lshl_b32 s71, s60, 8'); b(f's_add_u32 s71, s71, s{s_idx}'); b('s_mul_i32 s71, s71, 1344')
    b(f's_lshl_b32 s72, s70, 8'); b(f's_add_u32 s72, s72, s{s_idx}'); b('s_mul_i32 s72, s72, 1344')
    ZF = 8
    for j in range(2):
        for t in range(2):
            for r in range(4):
                b(f'buffer_load_dword v{ZF+(2*j+t)*4+r}, v{50 if t == 0 else 52}, s[44:47], s{71+j} offen offset:{84*r+64*t}')
    SA, TW, SB = 24, 32, 56
    b('v_lshlrev_b32 v6, 4, v1')
    b(f's_mov_b32 s73, {TAB_P3}')
    b(f'buffer_load_dwordx4 {q4(SA)}, v6, s[52:55], s73 offen offset:{P3_SA}')
    for i in range(2): b(f'buffer_load_dwordx4 {q4(TW+4*i)}, v6, s[52:55], s73 offen offset:{P3_TW + 1024*i}')
    b(f's_mov_b32 s74, {TAB_P3 + P3_TW + 2048}')
    for i in range(2): b(f'buffer_load_dwordx4 {q4(TW+8+4*i)}, v6, s[52:55], s74 offen offset:{1024*i}')
    for f in range(6):
        if f % 4 == 0: b(f's_mov_b32 s{75 + f//4}, {TAB_P3 + P3_SB + f*1024}')
        b(f'buffer_load_dwordx4 {q4(SB+4*f)}, v6, s[52:55], s{75 + f//4} offen offset:{(f % 4)*1024}')
    b('s_mov_b32 s80, 0x80000000')
    for r in range(4):
        b(f'v_alignbit_b32 v{SA+4+r}, v{SA+r}, v{SA+r}, 16'); b(f'v_xor_b32 v{SA+r}, s80, v{SA+r}')
    E = 80
    for j in range(2):
        for t in range(2):
            d = E + (2*j+t)*8; z = ZF + (2*j+t)*4
            b(f'v_mfma_f32_16x16x32_bf16 {q4(d)}, {q4(z)}, {q4(SA)}, 0')
            b(f'v_mfma_f32_16x16x32_bf16 {q4(d+4)}, {q4(z)}, {q4(SA+4)}, 0')
    TM = 112
    b('s_cmp_eq_u32 s60, 0'); b('s_cbranch_scc1 P3_W0')
    for t in range(2):
        for h in range(2):
            ar, ai = E + t*8 + 2*h, E + t*8 + 4 + 2*h
            br, bi = E + 16 + t*8 + 2*h, E + 16 + t*8 + 4 + 2*h
            b(f'v_pk_add_f32 {pr(TM)}, {pr(ai)}, {pr(bi)} {NEG}'); b(f'v_pk_add_f32 {pr(TM+2)}, {pr(br)}, {pr(ar)} {NEG}')
            b(f'v_pk_add_f32 {pr(ar)}, {pr(ar)}, {pr(br)}'); b(f'v_pk_add_f32 {pr(ai)}, {pr(ai)}, {pr(bi)}')
            b(f'v_mov_b32 v{br}, v{TM}'); b(f'v_mov_b32 v{br+1}, v{TM+1}'); b(f'v_mov_b32 v{bi}, v{TM+2}'); b(f'v_mov_b32 v{bi+1}, v{TM+3}')
    b.label('P3_W0')
    VF = 8
    for j in range(2):
        for t in range(2):
            for h in range(2):
                sr_, si_ = E + (2*j+t)*8 + 2*h, E + (2*j+t)*8 + 4 + 2*h
                c, s = TW + 8*t + 2*h, TW + 8*t + 4 + 2*h
                b(f'v_pk_mul_f32 {pr(TM)}, {pr(sr_)}, {pr(c)}'); b(f'v_pk_mul_f32 {pr(TM+2)}, {pr(si_)}, {pr(c)}')
                b(f'v_pk_fma_f32 {pr(TM)}, {pr(si_)}, {pr(s)}, {pr(TM)} neg_lo:[1,0,0] neg_hi:[1,0,0]')
                b(f'v_pk_fma_f32 {pr(TM+2)}, {pr(sr_)}, {pr(s)}, {pr(TM+2)}')
                o = VF + (2*j+t)*4 + 2*h
                b(f'v_cvt_pk_bf16_f32 v{o}, v{TM}, v{TM+2}'); b(f'v_cvt_pk_bf16_f32 v{o+1}, v{TM+1}, v{TM+3}')
    RH = 80
    for j in range(2):
        for tau in range(3):
            d = RH + (3*j+tau)*4
            b(f'v_mfma_f32_16x16x32_bf16 {q4(d)}, {q4(VF+(2*j)*4)}, {q4(SB+4*(2*tau))}, 0')
            b(f'v_mfma_f32_16x16x32_bf16 {q4(d)}, {q4(VF+(2*j+1)*4)}, {q4(SB+4*(2*tau+1))}, {q4(d)}')
    b(f's_mul_i32 s73, s60, {2*RP}'); b('v_mul_u32_u24 v50, 80, v2'); b('v_lshlrev_b32 v51, 4, v3'); b('v_add_u32 v50, v50, v51'); b('v_add_u32 v50, s73, v50')
    for j in range(2):
        for tau in range(3):
            b(f'ds_write_b128 v50, {q4(RH+(3*j+tau)*4)} offset:{j*RP + tau*16*80}')
    b('s_barrier')
    b('v_lshrrev_b32 v51, 2, v0'); b('v_mul_u32_u24 v51, 80, v51'); b('v_and_b32 v52, 3, v0'); b('v_lshlrev_b32 v52, 4, v52'); b('v_add_u32 v51, v51, v52')
    RR = 8
    for j in range(8): b(f'ds_read_b128 {q4(RR+4*j)}, v51 offset:{j*RP}')
    b(f's_mov_b32 s76, {fbits(C8)}'); b(f's_mov_b32 s77, {fbits(C8)}')
    OUTR = 64
    T = 40
    for hp in range(2):
        rho = [RR + 4*j + 2*hp for j in range(8)]
        A_, B_, E0, E2_, O1, O3, G, H, I_, J_ = [T + 2*i for i in range(10)]
        M_, N_, Y = 60, 62, 80
        b(f'v_pk_add_f32 {pr(A_)}, {pr(rho[0])}, {pr(rho[1])}'); b(f'v_pk_add_f32 {pr(B_)}, {pr(rho[0])}, {pr(rho[1])} {NEG}')
        b(f'v_pk_add_f32 {pr(E0)}, {pr(A_)}, {pr(rho[4])}'); b(f'v_pk_add_f32 {pr(E2_)}, {pr(A_)}, {pr(rho[4])} {NEG}')
        b(f'v_pk_add_f32 {pr(O1)}, {pr(B_)}, {pr(rho[5])} {NEG}'); b(f'v_pk_add_f32 {pr(O3)}, {pr(B_)}, {pr(rho[5])}')
        b(f'v_pk_add_f32 {pr(G)}, {pr(rho[2])}, {pr(rho[6])}'); b(f'v_pk_add_f32 {pr(H)}, {pr(rho[7])}, {pr(rho[3])} {NEG}')
        b(f'v_pk_add_f32 {pr(I_)}, {pr(rho[2])}, {pr(rho[6])} {NEG}'); b(f'v_pk_add_f32 {pr(J_)}, {pr(rho[3])}, {pr(rho[7])}')
        b(f'v_pk_add_f32 {pr(M_)}, {pr(I_)}, {pr(J_)} {NEG}'); b(f'v_pk_add_f32 {pr(N_)}, {pr(I_)}, {pr(J_)}')
        y = [Y + 2*i for i in range(8)]
        b(f'v_pk_add_f32 {pr(y[0])}, {pr(E0)}, {pr(G)}'); b(f'v_pk_add_f32 {pr(y[4])}, {pr(E0)}, {pr(G)} {NEG}')
        b(f'v_pk_add_f32 {pr(y[2])}, {pr(E2_)}, {pr(H)}'); b(f'v_pk_add_f32 {pr(y[6])}, {pr(E2_)}, {pr(H)} {NEG}')
        b(f'v_pk_fma_f32 {pr(y[1])}, {pr(M_)}, s[76:77], {pr(O1)}'); b(f'v_pk_fma_f32 {pr(y[5])}, {pr(M_)}, s[76:77], {pr(O1)} neg_lo:[1,0,0] neg_hi:[1,0,0]')
        b(f'v_pk_fma_f32 {pr(y[3])}, {pr(N_)}, s[76:77], {pr(O3)} neg_lo:[1,0,0] neg_hi:[1,0,0]'); b(f'v_pk_fma_f32 {pr(y[7])}, {pr(N_)}, s[76:77], {pr(O3)}')
        for s1 in range(8): b(f'v_cvt_pk_bf16_f32 v{OUTR+2*s1+hp}, v{y[s1]}, v{y[s1]+1}')
    b('v_lshlrev_b32 v5, 3, v0'); b('v_mov_b32 v6, 0x80000000'); b('v_cmp_gt_u32 vcc, 160, v0'); b('v_cndmask_b32 v6, v6, v5, vcc')
    b(f's_mul_i32 s61, s{s_idx}, 2560'); b('s_add_u32 s61, s61, 1280')
    for s1 in range(8):
        if s1: b(f's_add_u32 s61, s61, {256*2560}')
        b(f'buffer_store_dwordx2 v[{OUTR+2*s1}:{OUTR+2*s1+1}], v6, s[48:51], s61 offen')
    b('s_endpgm')
```

```python
from common import *
NTAB = 69
def job_tab(b, s_idx):
    srd(b, 44, S_WS, SZ_TAB, WS_TAB)
    b('v_and_b32 v1, 63, v0'); b('v_and_b32 v2, 15, v1'); b('v_lshrrev_b32 v3, 4, v1')
    b('v_lshrrev_b32 v4, 6, v0'); b('s_nop 0'); b('v_readfirstlane_b32 s60, v4')
    b('v_lshlrev_b32 v10, 4, v1')
    b(f's_cmp_eq_u32 s{s_idx}, 68'); b('s_cbranch_scc1 TAB_MISC')
    b(f's_lshl_b32 s61, s{s_idx}, 2'); b('s_add_u32 s61, s61, s60')
    b('s_mul_hi_u32 s62, s61, 0x7878788'); b('s_mul_i32 s63, s62, 34'); b('s_sub_u32 s63, s61, s63')
    b('s_lshl_b32 s64, s62, 4')
    b('s_sub_u32 s65, s63, 2'); b('s_and_b32 s65, s65, 15'); b('s_lshl_b32 s65, s65, 3'); b('s_add_u32 s65, s65, s62')
    b('s_cmp_lt_u32 s63, 2'); b('s_cselect_b32 s64, s64, s65')
    b('s_mov_b32 s66, 0'); b('s_cmp_eq_u32 s63, 1'); b('s_cselect_b32 s66, 1, s66'); b('s_cmp_ge_u32 s63, 18'); b('s_cselect_b32 s66, 1, s66')
    b('s_cmp_eq_u32 s66, 1'); b('s_cselect_b32 s67, 0, s64'); b('s_cselect_b32 s68, s64, 0')
    b('v_lshlrev_b32 v5, 7, v2'); b('v_add_u32 v5, s67, v5')
    b('v_mul_u32_u24 v6, s68, v2'); b('v_lshlrev_b32 v7, 2, v3'); b('v_mul_u32_u24 v7, v7, v5'); b('v_add_u32 v6, v6, v7')
    for r in range(4):
        b('v_and_b32 v7, 2047, v6'); b('v_cvt_f32_u32 v7, v7'); b(f'v_mul_f32 v7, {fbits(1/2048)}, v7')
        b('v_cos_f32 v8, v7'); b('v_sin_f32 v9, v7'); b(f'v_cvt_pk_bf16_f32 v{12+r}, v8, v9')
        b('v_add_u32 v6, v6, v5')
    b('s_lshl_b32 s61, s61, 10')
    b('buffer_store_dwordx4 v[12:15], v10, s[44:47], s61 offen')
    b('s_endpgm')
    b.label('TAB_MISC')
    b('v_cvt_f32_u32 v20, v2')
    b('v_lshlrev_b32 v21, 2, v3')
    b('s_cmp_eq_u32 s60, 0'); b('s_cbranch_scc1 TAB_W0')
    b('s_cmp_eq_u32 s60, 3'); b('s_cbranch_scc1 TAB_W3')
    b('s_sub_u32 s61, s60, 1'); b('s_lshl_b32 s62, s61, 4')
    for tau in range(3):
        b(f'v_add_u32 v22, {16*tau}, v2'); b('v_cvt_f32_u32 v23, v22'); b(f'v_mul_f32 v23, {fbits(1/40)}, v23')
        for r in range(4):
            b('v_add_u32 v24, s62, v21'); b(f'v_add_u32 v24, {r}, v24')
            b('v_cvt_f32_u32 v25, v24'); b('v_mul_f32 v25, v25, v23')
            b('v_cos_f32 v26, v25'); b('v_sin_f32 v27, v25'); b(f'v_cvt_pk_bf16_f32 v{12+r}, v26, -v27')
            b('v_cmp_gt_u32 vcc, 21, v24'); b('v_cmp_gt_u32 s[70:71], 40, v22'); b('s_and_b64 vcc, vcc, s[70:71]')
            b(f'v_cndmask_b32 v{12+r}, 0, v{12+r}, vcc')
        b('s_lshl_b32 s63, s61, 10'); b(f's_add_u32 s63, s63, {TAB_P3 + P3_SB + tau*2048}')
        b('buffer_store_dwordx4 v[12:15], v10, s[44:47], s63 offen')
    b('s_endpgm')
    b.label('TAB_W0')
    b(f'v_mul_f32 v23, {fbits(1/16)}, v20')
    for r in range(4):
        b(f'v_add_u32 v24, {r}, v21'); b('v_cvt_f32_u32 v25, v24'); b('v_mul_f32 v25, v25, v23')
        b('v_cos_f32 v26, v25'); b('v_sin_f32 v27, v25'); b(f'v_cvt_pk_bf16_f32 v{12+r}, v26, v27')
    b(f's_mov_b32 s63, {TAB_P3 + P3_SA}')
    b('buffer_store_dwordx4 v[12:15], v10, s[44:47], s63 offen')
    b(f'v_mul_f32 v23, {fbits(1/640)}, v20')
    sc = 1.0/(2048*640)
    for t in range(2):
        for r in range(4):
            b(f'v_add_u32 v24, {16*t + r}, v21'); b('v_cvt_f32_u32 v25, v24'); b('v_mul_f32 v25, v25, v23')
            b('v_cos_f32 v26, v25'); b('v_sin_f32 v27, v25')
            b(f'v_mov_b32 v28, {fbits(2*sc)}'); b(f'v_mov_b32 v29, {fbits(sc)}')
            b('v_cmp_eq_u32 vcc, 0, v24'); b('v_cndmask_b32 v28, v28, v29, vcc')
            b('v_cmp_eq_u32 vcc, 20, v24'); b('v_cndmask_b32 v28, v28, v29, vcc')
            b('v_cmp_gt_u32 vcc, 21, v24'); b('v_cndmask_b32 v28, 0, v28, vcc')
            b(f'v_mul_f32 v{12+r}, v26, v28'); b(f'v_mul_f32 v{16+r}, v27, v28')
        b(f's_mov_b32 s63, {TAB_P3 + P3_TW + t*2048}')
        b('buffer_store_dwordx4 v[12:15], v10, s[44:47], s63 offen')
        b('buffer_store_dwordx4 v[16:19], v10, s[44:47], s63 offen offset:1024')
    b('s_endpgm')
    b.label('TAB_W3')
    b('v_lshlrev_b32 v22, 3, v3'); b('v_subrev_u32 v22, 8, v22')
    for f in range(4):
        seg, par = (2, 3)[f >> 1], f & 1
        lim = (2 - par) if seg == 2 else (4 - par)
        add = 4*par if seg == 2 else 0
        for q in range(4):
            for hlf in range(2):
                rho = 2*q + hlf
                b('v_sub_u32 v24, v2, v22'); b(f'v_add_u32 v24, {add - rho + lim}, v24')
                b(f'v_cmp_ge_u32 vcc, {2*lim}, v24')
                b(f'v_mov_b32 v25, {hex(0x3F80 << (16*hlf))}')
                b(f'v_cndmask_b32 v{26+hlf}, 0, v25, vcc')
            b(f'v_or_b32 v{12+q}, v26, v27')
        b(f's_mov_b32 s63, {TAB_BC + f*1024}')
        b('buffer_store_dwordx4 v[12:15], v10, s[44:47], s63 offen')
    b('s_endpgm')
```

```python
from common import *
def job_transpose(b, name, s_idx, kind):
    if kind == 'UT':
        srd(b, 44, S_U, 2048*1280); srd(b, 48, S_WS, SZ_UT, WS_UT)
        sp, dp = 1280, 4096
        b(f's_mul_hi_u32 s52, s{s_idx}, 0x1999999a')
        b(f's_mul_i32 s53, s52, 10')
        b(f's_sub_u32 s53, s{s_idx}, s53')
    else:
        srd(b, 44, S_WS, SZ_UT, WS_YT); srd(b, 48, S_OUT, 2048*2560)
        sp, dp = 4096, 2560
        b(f's_mul_hi_u32 s53, s{s_idx}, 0x1999999a')
        b(f's_mul_i32 s52, s53, 10')
        b(f's_sub_u32 s52, s{s_idx}, s52')
    b(f's_mul_i32 s54, s52, {64*sp}')
    b('s_lshl_b32 s55, s53, 7'); b('s_add_u32 s54, s54, s55')
    b(f's_mul_i32 s56, s53, {64*dp}')
    b('s_lshl_b32 s55, s52, 7'); b('s_add_u32 s56, s56, s55')
    b('v_lshrrev_b32 v1, 3, v0'); b('v_and_b32 v2, 7, v0')
    b(f'v_mul_u32_u24 v3, {2*sp}, v1'); b('v_lshlrev_b32 v4, 4, v2'); b('v_add_u32 v3, v3, v4')
    b('buffer_load_dwordx4 v[8:11], v3, s[44:47], s54 offen')
    b(f's_add_u32 s57, s54, {sp}')
    b('buffer_load_dwordx4 v[12:15], v3, s[44:47], s57 offen')
    b('v_lshrrev_b32 v4, 2, v1'); b('v_xor_b32 v4, v4, v2'); b('v_lshlrev_b32 v4, 4, v4')
    b('v_and_b32 v5, 3, v1'); b('v_lshlrev_b32 v5, 2, v5'); b('v_add_u32 v4, v4, v5')
    b('v_lshlrev_b32 v5, 10, v2'); b('v_add_u32 v4, v4, v5')
    b('v_lshrrev_b32 v5, 3, v1')
    b('v_xor_b32 v6, v5, v2'); b('v_lshlrev_b32 v6, 4, v6'); b('v_lshlrev_b32 v7, 7, v1'); b('v_add_u32 v6, v6, v7')
    b('v_add_u32 v5, 4, v5'); b('v_xor_b32 v5, v5, v2'); b('v_lshlrev_b32 v5, 4, v5'); b('v_add_u32 v5, v5, v7')
    b(f'v_mul_u32_u24 v7, {dp}, v1'); b('v_lshlrev_b32 v16, 4, v2'); b('v_add_u32 v7, v7, v16')
    b('s_mov_b32 s58, 0x05040100'); b('s_mov_b32 s59, 0x07060302')
    for e in range(8):
        sel = 's58' if e % 2 == 0 else 's59'
        b(f'v_perm_b32 v{20+e}, v{12+e//2}, v{8+e//2}, {sel}')
    for e in range(8):
        b(f'ds_write_b32 v4, v{20+e} offset:{e*128}')
    b('s_barrier')
    b('ds_read_b128 v[8:11], v6')
    b('ds_read_b128 v[12:15], v5 offset:4096')
    b(f's_add_u32 s57, s56, {32*dp}')
    b('buffer_store_dwordx4 v[8:11], v7, s[48:51], s56 offen')
    b('buffer_store_dwordx4 v[12:15], v7, s[48:51], s57 offen')
    b('s_endpgm')
```

```python
import numpy as np
def bf16r(x):
    x = np.asarray(x, dtype=np.float32)
    u = x.view(np.uint32)
    r = ((u + 0x7FFF + ((u >> 16) & 1)) & 0xFFFF0000).astype(np.uint32)
    return r.view(np.float32)
def bf16bits(x):
    return (bf16r(x).view(np.uint32) >> 16).astype(np.uint16)
def frombits(b):
    return (b.astype(np.uint32) << 16).view(np.float32)
def cbf(z):
    return bf16r(z.real).astype(np.float64) + 1j*bf16r(z.imag).astype(np.float64)

L, D, N, S, DF = 2048, 640, 128, 2048, 321
def make_inputs(seed=0):
    rng = np.random.default_rng(seed)
    def rn(*s): return bf16r(rng.standard_normal(s))
    inp = {}
    inp['u'] = bf16r(rn(L, D)*np.float32(0.05))
    inp['logA'] = bf16r(bf16r(rn(D, N)*np.float32(6.4))*np.float32(0.5))
    inp['Aim'] = bf16r(bf16r(rn(D, N)*np.float32(0.05))*np.float32(3.14))
    inp['Cre'] = bf16r(bf16r(rn(D, N)*np.float32(0.05))/np.float32(N**0.5))
    inp['Cim'] = bf16r(bf16r(rn(D, N)*np.float32(0.05))/np.float32(N**0.5))
    inp['logdt'] = bf16r(bf16r(bf16r(rn(D)*np.float32(0.05))*np.float32(0.5)) - np.float32(4.0))
    inp['Dskip'] = bf16r(rn(D)*np.float32(0.05))
    inp['x'] = bf16r(rn(S, D)*np.float32(0.05))
    inp['wr'] = bf16r(bf16r(rn(S, DF)*np.float32(0.8))*np.float32(0.02))
    inp['wi'] = bf16r(bf16r(rn(S, DF)*np.float32(0.8))*np.float32(0.02))
    return inp
POS = bf16r(np.arange(L)).astype(np.float64)
def kappa_params(inp):
    dt = bf16r(np.exp(inp['logdt'].astype(np.float64))).astype(np.float64)
    Are = -bf16r(np.exp(inp['logA'].astype(np.float64))).astype(np.float64)
    a = (Are + 1j*inp['Aim'].astype(np.float64))*dt[:, None]
    C = (inp['Cre'].astype(np.float64) + 1j*inp['Cim'].astype(np.float64))*dt[:, None]
    return a, C
def kappa(inp, p, dsel=None):
    a, C = kappa_params(inp)
    if dsel is not None: a, C = a[dsel], C[dsel]
    p = np.asarray(p, dtype=np.float64)
    out = np.zeros((a.shape[0], len(p)))
    for i in range(a.shape[0]):
        out[i] = 2*np.real(C[i] @ np.exp(a[i][:, None]*p[None, :]))
    return out
def ref_A(inp, dsel=None):
    dsel = np.arange(D) if dsel is None else np.asarray(dsel)
    up = np.unique(POS); kv = kappa(inp, up, dsel)
    K = kv[:, np.searchsorted(up, POS)]
    u = inp['u'][:, dsel].astype(np.float64).T
    y = np.fft.irfft(np.fft.rfft(u, 2*L)*np.fft.rfft(K, 2*L), 2*L)[:, :L]
    y = bf16r(y).T
    sk = bf16r(inp['u'][:, dsel]*inp['Dskip'][dsel][None, :])
    return bf16r(y + sk), K
def ref_B(inp):
    X = np.fft.rfft2(inp['x'].astype(np.float64))
    W = inp['wr'].astype(np.float64) + 1j*inp['wi'].astype(np.float64)
    return bf16r(np.fft.irfft2(X*W, s=(S, D)))

FA, FB = 21, 16
NCOL = FA*FB
col_fa = np.arange(NCOL) % FA; col_fb = np.arange(NCOL)//FA
col_f = col_fa + 40*col_fb
def w(n, e): return np.exp(-2j*np.pi*(np.asarray(e) % n)/n)
def P1(x, rnd=True):
    r = bf16r if rnd else (lambda a: a)
    c = cbf if rnd else (lambda a: a)
    xs = x.astype(np.float64).reshape(8, 256, D)
    t = np.einsum('ak,abd->kbd', w(8, np.outer(np.arange(8), np.arange(8))), xs)
    R = np.stack([t[0].real, t[4].real, t[1].real, t[1].imag, t[2].real, t[2].imag, t[3].real, t[3].imag])
    R = r(R).astype(np.float64)
    Rr = R.reshape(8, 256, 40, 16)
    fa = np.arange(FA)
    C1 = c(w(40, np.outer(np.arange(40), fa)))
    Y = np.einsum('jshl,hf->jslf', Rr, C1)
    Y = c(Y*w(640, np.outer(np.arange(16), fa))[None, None])
    C2 = c(w(16, np.outer(np.arange(16), np.arange(16))))
    X = np.einsum('jslf,lb->jsbf', Y, C2).reshape(8, 256, NCOL)
    T = np.zeros((8, 256, NCOL), dtype=np.complex128)
    T[0] = X[0]; T[4] = X[1]
    for wv in (1, 2, 3):
        T[wv] = X[2*wv] + 1j*X[2*wv+1]; T[8-wv] = X[2*wv] - 1j*X[2*wv+1]
    return c(T)
def Wfull(wr, wi):
    W = wr.astype(np.float64) + 1j*wi.astype(np.float64)
    k = np.arange(S)
    out = np.zeros((S, NCOL), dtype=np.complex128)
    for cidx in range(NCOL):
        f = col_f[cidx]
        if f <= 320: out[:, cidx] = W[:, f]
        else: out[:, cidx] = np.conj(W[(-k) % S, 640-f])
    return out
def P2(T, wr, wi, rnd=True):
    c = cbf if rnd else (lambda a: a)
    Wf = Wfull(wr, wi)
    Z = np.zeros_like(T)
    i16 = np.arange(16)
    for k1 in range(8):
        V = T[k1].reshape(16, 16, NCOL)
        M1 = c(w(128, np.outer(k1+8*i16, i16)))
        Y = c(np.einsum('fx,xyc->fyc', M1, V))
        kk = k1 + 8*i16[:, None] + 128*i16[None, :]
        M2 = c(w(2048, kk[:, :, None]*i16[None, None, :]))
        Xf = np.einsum('fgy,fyc->fgc', M2, Y)
        Zf = c(Xf*Wf[kk])
        U = c(np.einsum('fgy,fgc->fyc', np.conj(M2), Zf))
        Z[k1] = c(np.einsum('fx,fyc->xyc', np.conj(M1), U)).reshape(256, NCOL)
    return Z
def P3(Z, rnd=True):
    c = cbf if rnd else (lambda a: a)
    r = bf16r if rnd else (lambda a: a)
    Zr = Z.reshape(8, 256, FB, FA)
    CA = c(np.conj(w(16, np.outer(np.arange(16), np.arange(16)))))
    E = np.einsum('ksbf,bl->ksfl', Zr, CA)
    Sx = np.zeros_like(E)
    Sx[0] = E[0]; Sx[1] = E[4]
    for wv in (1, 2, 3):
        Sx[2*wv] = E[wv] + E[8-wv]; Sx[2*wv+1] = -1j*(E[wv] - E[8-wv])
    fa = np.arange(FA)
    wgt = np.where((fa == 0) | (fa == 20), 1.0, 2.0)/(S*D)
    V = c(Sx*(wgt[:, None]*np.conj(w(640, np.outer(fa, np.arange(16)))))[None, None])
    CB = np.conj(w(40, np.outer(fa, np.arange(40))))
    CBr = bf16r(CB.real).astype(np.float64); CBi = bf16r(CB.imag).astype(np.float64) if rnd else CB.imag
    if not rnd: CBr = CB.real
    rho = np.einsum('jsfl,fh->jshl', V.real, CBr) - np.einsum('jsfl,fh->jshl', V.imag, CBi)
    rho = rho.reshape(8, 256, D)
    y = np.zeros((8, 256, D))
    for s1 in range(8):
        acc = rho[0] + (-1)**s1*rho[1]
        for wv in (1, 2, 3):
            ph = 2*np.pi*s1*wv/8
            acc = acc + np.cos(ph)*rho[2*wv] - np.sin(ph)*rho[2*wv+1]
        y[s1] = acc
    return bf16r(y.reshape(S, D))
if __name__ == "__main__":
    inp = make_inputs(0)
    refb = ref_B(inp)
    for rnd in (False, True):
        T = P1(inp['x'], rnd); Z = P2(T, inp['wr'], inp['wi'], rnd); y = P3(Z, rnd)
        err = np.abs(y - refb)
        print("B rnd", rnd, "max err", err.max(), "rms err", np.sqrt((err**2).mean()), "ref rms", refb.std(), "ref max", np.abs(refb).max())
```

```python
import numpy as np
from model import *
ROWP = [0,1,2,3,4,5,6,7] + [256+o for o in (0,0,2,4,4,4,6,8)] + [512,516,768,772] + [1024,1280,1536,1792] + [2048]
def kgen_tile(inp, d, rnd=True):
    a, C = kappa_params(inp); a = a[d]; C = 2*C[d]
    c = cbf if rnd else (lambda z: z)
    E1 = c(C[None, :]*np.exp(np.array(ROWP)[:, None]*a[None, :]))
    E2 = c(np.exp(8*np.arange(32)[:, None]*a[None, :]))
    return np.real(E1 @ E2.T)
CN = 559
O_RN, N_RN = 0, 592
O_R2E, O_R2O = 592, 720
O_R3E, O_R3O = 848, 928
O_RE = 1008
NREC = 1104
def kgen_record(Dt):
    Dt = bf16r(Dt).astype(np.float64)
    rec = np.zeros(NREC)
    Kn = np.zeros(544)
    for row in range(16):
        for c in range(32):
            g, rr = row//8, row % 8
            Kn[256*g + 8*c + rr] = Dt[row][c]
    Kn[512:515] = Dt[16][0]
    for j in range(544): rec[O_RN + CN - j] = Kn[j]
    k2e = {}; k2o = {}
    for c in range(32):
        if c >= 1: k2e[64+c] = Dt[16][c]
        k2e[96+c] = Dt[18][c]; k2o[65+c] = Dt[17][c]; k2o[97+c] = Dt[19][c]
    k2e[128] = Dt[20][0]
    for i, v in k2e.items(): rec[O_R2E + 160 - i] = v
    for i, v in k2o.items(): rec[O_R2O + 160 - i] = v
    k3 = {}
    for ip in range(4):
        for c in range(32):
            g = 128 + 32*ip + c
            if g >= 129: k3[g] = Dt[20+ip][c]
    k3[256] = Dt[24][0]
    for g, v in k3.items():
        if g % 2 == 0: rec[O_R3E + 128 - g//2] = v
        else: rec[O_R3O + 128 - (g+1)//2] = v
    rec[O_RE + 1087 - 1027] = Dt[20][0]; rec[O_RE + 1087 - 1028] = Dt[20][0]
    return rec
def conv_model(rec, u, rnd=True):
    r = bf16r if rnd else (lambda z: z)
    PAD = 17*32
    uL = np.zeros(PAD + 2048 + 64); uL[PAD:PAD+2048] = u
    U = lambda t: uL[PAD + t]
    y = np.zeros(2048)
    i = np.arange(32)
    for t in range(2):
        acc = np.zeros((32, 32))
        dl = [(x, k) for x in range(17) for k in range(2)] + [(17, 1)] + ([(32, 0), (32, 1), (33, 1)] if t == 1 else [])
        for dlt, ks in dl:
            if True:
                A = np.zeros((32, 16)); B = np.zeros((16, 32))
                for h in range(2):
                    for e in range(8):
                        if dlt <= 17: m = CN - 32*dlt - i + 16*ks + 8*h + e; A[i, 8*h+e] = rec[O_RN + m]
                        else: m = 1087 - 32*dlt - i + 16*ks + 8*h + e; A[i, 8*h+e] = rec[O_RE + m]
                        a = 32*t + i - dlt
                        B[8*h+e, i] = U(32*a + 16*ks + 8*h + e)
                acc += A @ B
        for b in range(32):
            y[1024*t + 32*i + b] += acc[b, i]
    def Bc(seg, par):
        M = np.zeros((32, 16))
        for nu in range(4):
            for rho in range(8):
                tr = 8*(nu-1) + rho
                for b in range(16):
                    e = (4*par + b - tr) if seg == 2 else (b - tr)
                    lim = (2 - par) if seg == 2 else (4 - par)
                    if abs(e) <= lim: M[8*nu+rho, b] = 1.0
        return M
    m = np.arange(16)
    def Gfrag(seg, beta):
        G = np.zeros((16, 32))
        for par in range(2):
            A = np.zeros((16, 32))
            for nu in range(4):
                for rho in range(8):
                    q = (16*beta + m - 3 + nu) if seg == 2 else (32*beta + 2*m + par - 3 + nu)
                    A[m, 8*nu+rho] = U(8*q + rho)
            D1 = r(A @ Bc(seg, par))
            for kg in range(4):
                for rr in range(4):
                    G[:, 8*kg + 4*par + rr] = D1[4*kg + rr, :]
        return G
    n = np.arange(16)
    def Tfrag(seg, sig):
        T = np.zeros((32, 16))
        for kg in range(4):
            for par in range(2):
                for rr in range(4):
                    if seg == 2:
                        x = 94 - 2*n + 16*sig + 4*kg + rr
                        T[8*kg+4*par+rr, n] = rec[(O_R2O if par else O_R2E) + x]
                    else:
                        x = 63 - n - 16*sig + 4*kg + rr
                        T[8*kg+4*par+rr, n] = rec[(O_R3O if par else O_R3E) + x]
        return T
    G2 = [Gfrag(2, b) for b in range(12)]; T2 = {s: Tfrag(2, s) for s in range(-4, 2)}
    for tau in range(6):
        acc = np.zeros((16, 16))
        for beta in range(max(0, 2*tau-4), 2*tau+2):
            acc += G2[beta] @ T2[beta - 2*tau]
        for b in range(16): y[16*(32 + 16*tau + n) + b] += acc[b, n]
    G3 = [Gfrag(3, b) for b in range(4)]; T3 = {s: Tfrag(3, s) for s in range(4)}
    for tau in range(4):
        acc = np.zeros((16, 16))
        for beta in range(tau+1):
            acc += G3[beta] @ T3[tau - beta]
        for b in range(16): y[16*(64 + 16*tau + n) + b] += acc[b, n]
    return y
if __name__ == "__main__":
    inp = make_inputs(0)
    ds = [0, 5, 333, 639]
    refa, K = ref_A(inp, ds)
    for ii, d in enumerate(ds):
        for rnd in (False, True):
            Dt = kgen_tile(inp, d, rnd)
            if not rnd:
                import model
                import modelA
            rec = kgen_record(Dt) if rnd else None
            if not rnd:
                _b = bf16r
                globals()['bf16r'] = lambda z: np.asarray(z, dtype=np.float64)
                rec = kgen_record(Dt)
                globals()['bf16r'] = _b
            u = inp['u'][:, d].astype(np.float64)
            y = conv_model(rec, u, rnd)
            yt = np.convolve(K[ii], u)[:2048]
            out = bf16r(bf16r(y) + bf16r(inp['u'][:, d]*inp['Dskip'][d]))
            print(d, "rnd", rnd, "conv err", np.abs(y - yt).max(), "y max", np.abs(yt).max(), "final err", np.abs(out - refa[:, ii]).max())
```

```python
import sys
from common import *
from jobs_tr import job_transpose
from jobs_p1 import job_p1
from jobs_tab import job_tab, NTAB
from jobs_kgen import job_kgen
from jobs_p2 import job_p2
from jobs_p3 import job_p3
from jobs_conv import job_conv, CH_SZ
HEADER = open('concat_heads__ssm_conv_s4d__spectral_gfnet__prompt.s.ref').read().split('\n')
hdr = [l for l in HEADER if l.startswith(';') and '@launch' not in l and 'Override launch' not in l and 'grid=ceil' not in l]
hdr = hdr[:14]
def dispatch(b, kname, jobs):
    prologue(b)
    start = 0
    for (name, cnt, fn) in jobs:
        b(f's_cmp_lt_u32 s2, {start+cnt}'); b(f's_cbranch_scc1 {kname}_{name}')
        start += cnt
    b('s_endpgm')
    start = 0
    for (name, cnt, fn) in jobs:
        b.label(f'{kname}_{name}')
        b(f's_sub_u32 s3, s2, {start}')
        fn(b)
        start += cnt
    return start
def uniq(lines, pre):
    return lines
kernels = []
def make(kname, jobs, lds, vg):
    b = Builder()
    n = dispatch(b, kname, jobs)
    body = process(b.lines)
    kernels.append((kname, n, lds, vg, body))
def build(cfg=None):
    make('k1_kernel', [('KG', 320, lambda b: job_kgen(b, 3)), ('P1', 256, lambda b: job_p1(b, 3)),
                       ('UT', 320, lambda b: job_transpose(b, 'UT', 3, 'UT')), ('TB', NTAB, lambda b: job_tab(b, 3))], 34816, 128)
    make('k2_kernel', [('P2', 168, lambda b: job_p2(b, 3)), ('CV', 320, lambda b: job_conv(b, 3))], 2*CH_SZ, 200)
    make('k3_kernel', [('P3', 256, lambda b: job_p3(b, 3)), ('YT', 320, lambda b: job_transpose(b, 'YT', 3, 'YT'))], 32768, 128)
    out = list(hdr)
    for (k, n, lds, vg, body) in kernels:
        out.append(f'; @launch kernel={k} grid=({n},1,1) block=(256,1,1) lds={lds}')
    out.append('.amdgcn_target "amdgcn-amd-amdhsa--gfx950"'); out.append('.text')
    for (k, n, lds, vg, body) in kernels:
        out += [f'.globl {k}', '.p2align 8', f'.type {k},@function', f'{k}:'] + body
    out.append('.section .rodata,"a"')
    for (k, n, lds, vg, body) in kernels:
        acc = (vg + 3)//4*4
        out += ['.p2align 6', f'.amdhsa_kernel {k}', f'  .amdhsa_next_free_vgpr {vg}', '  .amdhsa_next_free_sgpr 96', f'  .amdhsa_accum_offset {acc}',
                '  .amdhsa_group_segment_fixed_size 0', '  .amdhsa_kernarg_size 104', '  .amdhsa_user_sgpr_count 2',
                '  .amdhsa_user_sgpr_kernarg_segment_ptr 1', '  .amdhsa_system_sgpr_workgroup_id_x 1', '.end_amdhsa_kernel']
    return '\n'.join(out) + '\n'
if __name__ == '__main__':
    s = build()
    dst = sys.argv[1] if len(sys.argv) > 1 else 'concat_heads__ssm_conv_s4d__spectral_gfnet__prompt.s'
    open(dst, 'w').write(s)
    print(len(s), 'bytes', s.count('\n'), 'lines')
```

```python
import re
TRANS = ('v_exp_f32','v_log_f32','v_rcp_f32','v_rsq_f32','v_sqrt_f32','v_sin_f32','v_cos_f32','v_rcp_iflag_f32')
def regs_of(tok):
    tok = tok.strip()
    neg = tok.lstrip('-')
    m = re.fullmatch(r'abs\((.*)\)', neg)
    if m: neg = m.group(1)
    if neg.startswith('|') and neg.endswith('|'): neg = neg[1:-1]
    m = re.fullmatch(r'([vsa])(\d+)', neg)
    if m: return [(m.group(1), int(m.group(2)))]
    m = re.fullmatch(r'([vsa])\[(\d+):(\d+)\]', neg)
    if m: return [(m.group(1), i) for i in range(int(m.group(2)), int(m.group(3))+1)]
    if neg == 'vcc': return [('s', 106), ('s', 107)]
    if neg == 'vcc_lo': return [('s', 106)]
    if neg == 'vcc_hi': return [('s', 107)]
    if neg == 'exec': return [('s', 126), ('s', 127)]
    if neg == 'm0': return [('s', 124)]
    return []
def split_ops(s):
    out = []; depth = 0; cur = ''
    for ch in s:
        if ch in '[(': depth += 1
        if ch in '])': depth -= 1
        if ch == ',' and depth == 0: out.append(cur.strip()); cur = ''
        else: cur += ch
    if cur.strip(): out.append(cur.strip())
    return out
class I:
    __slots__ = ('text','mn','ops','cls','dst','src','srcC','passes','label','raw')
def parse(line):
    t = line.split(';')[0].strip()
    ins = I(); ins.text = line; ins.raw = t; ins.dst = []; ins.src = []; ins.srcC = []; ins.passes = 0; ins.label = None
    if not t: ins.cls = 'none'; ins.mn = ''; ins.ops = []; return ins
    if t.endswith(':'): ins.cls = 'label'; ins.mn = ''; ins.ops = []; ins.label = t[:-1]; return ins
    if t.startswith('.'): ins.cls = 'dir'; ins.mn = t; ins.ops = []; return ins
    p = t.split(None, 1); mn = p[0]; rest = p[1] if len(p) > 1 else ''
    ins.mn = mn
    ops = split_ops(rest)
    mods = ''
    if ops:
        q = ops[-1].split(None, 1)
        ops[-1] = q[0]; mods = q[1] if len(q) > 1 else ''
    ins.ops = ops
    R = lambda k: regs_of(ops[k]) if k < len(ops) else []
    allr = lambda a: [r for k in range(a, len(ops)) for r in regs_of(ops[k])]
    base = re.sub(r'_(e32|e64|dpp|sdwa)$', '', mn)
    if mn.startswith('v_mfma') or mn.startswith('v_smfmac'):
        ins.cls = 'mfma'; ins.dst = R(0); ins.src = R(1) + R(2); ins.srcC = R(3)
        ins.passes = 8 if '32x32' in mn else 4
    elif mn.startswith('buffer_load') or mn.startswith('global_load'):
        ins.cls = 'vload'; ins.dst = R(0); ins.src = allr(1)
        if ' lds' in (' ' + mods): ins.cls = 'vloadlds'; ins.dst = []; ins.src = allr(0)
    elif mn.startswith('buffer_store') or mn.startswith('global_store'):
        ins.cls = 'vstore'; ins.src = allr(0)
    elif mn.startswith('buffer_atomic') or mn.startswith('global_atomic'):
        ins.cls = 'vatomic'; ins.src = allr(0)
        if 'sc0' in mods: ins.dst = R(0) if mn.startswith('buffer') else R(0)
    elif mn.startswith('buffer_wbl2') or mn.startswith('buffer_inv'):
        ins.cls = 'vstore'
    elif mn.startswith('ds_read') or mn.startswith('ds_bpermute') or mn.startswith('ds_permute') or mn.startswith('ds_swizzle'):
        ins.cls = 'dsread'; ins.dst = R(0); ins.src = allr(1)
    elif mn.startswith('ds_write') or mn.startswith('ds_add'):
        ins.cls = 'dswrite'; ins.src = allr(0)
    elif mn.startswith('s_load') or mn.startswith('s_buffer_load') or mn in ('s_memtime', 's_memrealtime'):
        ins.cls = 'smem'; ins.dst = R(0); ins.src = allr(1)
    elif mn == 's_waitcnt': ins.cls = 'wait'
    elif mn == 's_barrier': ins.cls = 'barrier'
    elif mn == 's_nop': ins.cls = 'nop'
    elif mn == 's_endpgm': ins.cls = 'end'
    elif mn.startswith('s_cbranch') or mn == 's_branch': ins.cls = 'branch'
    elif mn.startswith('s_'):
        ins.cls = 'salu'
        if mn.startswith('s_cmp') or mn in ('s_setprio', 's_sleep', 's_bitcmp0_b32', 's_bitcmp1_b32'): ins.src = allr(0)
        else: ins.dst = R(0); ins.src = allr(1)
        if 'saveexec' in mn: ins.dst += [('s', 126), ('s', 127)]
    elif mn.startswith('v_'):
        ins.cls = 'valu'
        if base.startswith('v_cmp'):
            ins.dst = R(0); ins.src = allr(1)
        elif base in ('v_add_co_u32', 'v_sub_co_u32', 'v_addc_co_u32', 'v_subb_co_u32', 'v_subrev_co_u32', 'v_mad_u64_u32'):
            ins.dst = R(0) + R(1); ins.src = allr(2)
        elif base.startswith('v_permlane') and 'swap' in base:
            ins.dst = R(0) + R(1); ins.src = R(0) + R(1)
        elif base in ('v_fmac_f32', 'v_mac_f32', 'v_pk_fmac_f16', 'v_fmac_f16', 'v_writelane_b32', 'v_dot2c_f32_bf16'):
            ins.dst = R(0); ins.src = allr(0)
        else:
            ins.dst = R(0); ins.src = allr(1)
        if 'dpp' in mn or 'row_' in mods or 'quad_perm' in mods or 'wave_' in mods: ins.cls = 'valu'; ins.mn = mn + '#dpp'
    else:
        raise ValueError("unknown instr: " + line)
    return ins

class Builder:
    def __init__(self): self.lines = []
    def __call__(self, s, *a):
        for l in s.split('\n'):
            if l.strip(): self.lines.append(l.strip())
    def label(self, n): self.lines.append(n + ':')
    def c(self, s): self.lines.append('; ' + s)

TIMEBASED = True
LGMERGE = 0
HOIST = 90
def process(lines, verbose=False):
    out = []
    vm = []
    lg = []
    lgt = []
    sm = set()
    hist = []
    clk = [0, 0]
    info = []
    def emit(t, kind=''): out.append(t); info.append((kind, clk[0]))
    def tick(n=1):
        clk[0] += 4*n
        for h in hist: h[1] += n
        while hist and hist[0][1] > 20: hist.pop(0)
    def need_nops(ins):
        need = 0
        D = set(ins.dst); Sr = set(ins.src); C = set(ins.srcC)
        isvalu = ins.cls == 'valu'
        tnow = max(clk[0], clk[1]) if ins.cls == 'mfma' else clk[0]
        for (p, age, tp) in hist:
            pd = set(p.dst); req = 0
            if p.cls == 'mfma' and TIMEBASED: age = max(age, (tnow - tp)//4 - 1)
            if p.cls == 'valu':
                trans = re.sub(r'_(e32|e64)$', '', p.mn) in TRANS
                vd = {r for r in pd if r[0] in 'va'}; sd = {r for r in pd if r[0] == 's'}
                if ins.cls == 'mfma' and vd & (Sr | C): req = max(req, 2)
                if trans and ins.cls in ('valu', 'mfma') and vd & Sr: req = max(req, 1)
                if trans and ins.cls in ('vstore','dswrite','vload','dsread','vatomic') and vd & Sr: req = max(req, 1)
                if isvalu and ins.mn.startswith(('v_readfirstlane', 'v_readlane')) and vd & Sr: req = max(req, 1)
                if isvalu and ins.mn.startswith('v_permlane') and vd & Sr: req = max(req, 2)
                if isvalu and '#dpp' in ins.mn and vd & Sr: req = max(req, 2)
                if sd:
                    if isvalu and sd & Sr: req = max(req, 2)
                    if isvalu and ins.mn.startswith(('v_readlane', 'v_writelane')) and sd & Sr: req = max(req, 4)
                    if ins.cls in ('vload', 'vstore', 'vatomic', 'vloadlds') and sd & Sr: req = max(req, 5)
                    if ins.cls in ('salu','branch','smem') and (sd & Sr): req = max(req, 4)
                    if ins.cls == 'branch' and ('vcc' in ins.mn) and (('s',106) in sd or ('s',107) in sd): req = max(req, 4)
            if p.cls == 'mfma':
                w_use = 8 if p.passes == 4 else 12
                w_ovl = 6 if p.passes == 4 else 10
                w_war = 3 if p.passes == 4 else 7
                if ins.cls == 'mfma':
                    if pd & Sr: req = max(req, w_use)
                    if pd & C:
                        if not (p.dst == ins.srcC and p.passes == ins.passes): req = max(req, w_ovl)
                    if pd & D and not (p.dst == ins.dst and p.dst == ins.srcC):
                        if not (pd & C): req = max(req, w_use)
                else:
                    if pd & (Sr | D): req = max(req, w_use)
                    if isvalu and set(p.srcC) & D: req = max(req, w_war)
                    if ins.cls in ('vload','dsread') and set(p.srcC) & D: req = max(req, w_war)
            if p.cls == 'vstore' and ('x4' in p.mn or 'x3' in p.mn):
                data = set(regs_of(p.ops[0])) if p.mn.startswith('buffer') else set(regs_of(p.ops[1]))
                if data & D and ins.cls in ('valu','mfma','vload','dsread'): req = max(req, 2)
            if p.cls == 'dswrite' and ('b128' in p.mn or 'b96' in p.mn):
                if set(p.src) & D and isvalu: req = max(req, 1)
            if p.cls == 'salu' and ('s', 124) in pd and ins.cls == 'vloadlds': req = max(req, 1)
            if p.cls == 'salu' and (('s',126) in pd or ('s',127) in pd) and isvalu and '#dpp' in ins.mn: req = max(req, 1)
            need = max(need, req - age)
        return need
    def do_wait(vmn=None, lgn=None):
        parts = []
        if vmn is not None:
            vmn = min(vmn, 63); parts.append('vmcnt(%d)' % vmn)
            while len(vm) > vmn: vm.pop(0)
        if lgn is not None:
            lgn = min(lgn, 15); parts.append('lgkmcnt(%d)' % lgn)
            while len(lg) > lgn: lg.pop(0)
            if lgn == 0: sm.clear()
        emit('s_waitcnt ' + ' '.join(parts)); tick()
    def flush_all(haz=True, waits=True):
        if waits and (vm_loads_pending() or lg or sm):
            do_wait(0 if vm_loads_pending() else None, 0 if (lg or sm) else None)
        if haz:
            worst = 0
            for (p, age, tp) in hist:
                r = 0
                if p.cls == 'mfma': r = 8 if p.passes == 4 else 12
                elif p.cls == 'valu': r = 5 if any(x[0] == 's' for x in p.dst) else 2
                elif p.cls == 'vstore': r = 2
                worst = max(worst, r - age)
            nop(worst)
    def vm_loads_pending(): return any(x for x in vm)
    def nop(n):
        while n > 0:
            k = min(n, 16); emit('s_nop %d' % (k-1)); tick(k); n -= k
    for line in lines:
        ins = parse(line)
        if ins.cls in ('none', 'dir'): emit(line); continue
        if ins.cls == 'label':
            if 'NOFLUSH' not in line: flush_all()
            emit(line); continue
        if ins.cls == 'wait':
            m = re.search(r'vmcnt\((\d+)\)', ins.raw); n = re.search(r'lgkmcnt\((\d+)\)', ins.raw)
            if m:
                while len(vm) > int(m.group(1)): vm.pop(0)
            if n:
                while len(lg) > int(n.group(1)): lg.pop(0)
                if int(n.group(1)) == 0: sm.clear()
            emit(line); tick(); continue
        if ins.cls == 'nop':
            emit(line); tick(int(ins.ops[0]) + 1); continue
        touched = set(ins.src) | set(ins.srcC) | set(ins.dst)
        if ins.cls == 'vload' and 'd16' in ins.mn: touched = set(ins.src)
        vmn = None
        for idx, d in enumerate(vm):
            if d & touched: vmn = len(vm) - 1 - idx
        lgn = None
        for idx, d in enumerate(lg):
            if d & touched: lgn = len(lg) - 1 - idx
        if lgn is not None and lgn > 0 and LGMERGE:
            tt = lgt[-len(lg):]
            while lgn > 0 and clk[0] - tt[len(lg) - lgn] >= LGMERGE: lgn -= 1
        if sm & touched: lgn = 0
        if sm and lgn is not None: lgn = 0
        if ins.cls == 'barrier':
            if lg or sm: lgn = 0
        if ins.cls == 'branch':
            if 'NOFLUSH' not in line:
                if vm_loads_pending(): vmn = 0
                if lg or sm: lgn = 0
        hoisted = False
        if HOIST and vmn is None and lgn is not None and lgn > 0 and not sm and ins.cls != 'barrier':
            tt = lgt[-len(lg):]; tneed = tt[len(lg) - 1 - lgn]
            k = 0; pos = len(out)
            cand = None
            for back in range(1, 12):
                j = len(out) - back
                if j < 0: break
                kind, tj = info[j]
                if kind == 'stop' or out[j].startswith('s_waitcnt') or out[j].endswith(':'): break
                if kind == 'big':
                    if back > 1 and lgn - k >= 0 and tj - tneed >= HOIST: cand = (j + 1, lgn - k)
                    break
                if kind == 'ds': k += 1
            if cand:
                out.insert(cand[0], 's_waitcnt lgkmcnt(%d)' % min(cand[1], 15)); info.insert(cand[0], ('', 0))
                ln = min(lgn, 15)
                while len(lg) > ln: lg.pop(0)
                tick(0); hoisted = True
        if not hoisted and (vmn is not None or lgn is not None): do_wait(vmn, lgn)
        if ins.cls == 'branch' and 'NOFLUSH' not in line:
            n0 = need_nops(ins); nop(n0); flush_all(waits=False)
        else:
            nop(need_nops(ins))
        emit(line, 'big' if (ins.cls == 'mfma' and ins.passes == 8) else ('ds' if ins.cls in ('dsread', 'dswrite') else ('stop' if ins.cls in ('barrier','branch','smem') or 'exec' in line else '')))
        if ins.cls == 'mfma':
            clk[0] = max(clk[0], clk[1]); clk[1] = clk[0] + 4*ins.passes
        tissue = clk[0]
        tick()
        hist.append([ins, 0, tissue])
        if ins.cls in ('vload',): vm.append(set(ins.dst))
        elif ins.cls in ('vstore', 'vloadlds'): vm.append(set())
        elif ins.cls == 'vatomic': vm.append(set(ins.dst))
        elif ins.cls == 'dsread': lg.append(set(ins.dst)); lgt.append(tissue)
        elif ins.cls == 'dswrite': lg.append(set()); lgt.append(tissue)
        elif ins.cls == 'smem': sm |= set(ins.dst) if ins.dst else {('s', 999)}
        if len(lg) > 15: pass
    return out

class VA:
    def __init__(self, start=0, limit=256): self.n = start; self.limit = limit; self.hi = start
    def a(self, cnt=1, align=1):
        if cnt >= 2 and align < 2: align = 2
        self.n = (self.n + align - 1)//align*align
        r = self.n; self.n += cnt; self.hi = max(self.hi, self.n)
        assert self.n <= self.limit, "out of vgprs"
        return r
    def mark(self): return self.n
    def release(self, m): self.n = m
def vr(b, n=1): return 'v%d' % b if n == 1 else 'v[%d:%d]' % (b, b+n-1)
def sr(b, n=1): return 's%d' % b if n == 1 else 's[%d:%d]' % (b, b+n-1)

def list_schedule(items, lds_lat=110, verbose=False, filler=None, memdep=None):
    n = len(items)
    nodes = []
    for it in items:
        lines = [l for l in it.split('\n') if l.strip()]
        ps = [parse(l) for l in lines]
        dst = set(); src = set(); cls = None; mf = 0
        for p in ps:
            dst |= set(p.dst); src |= set(p.src) | set(p.srcC)
        p0 = ps[0]
        kind = p0.cls if len(ps) == 1 else 'block'
        if kind == 'mfma': mf = p0.passes
        hasdsw = any(p.cls == 'dswrite' for p in ps); hasdsr = any(p.cls == 'dsread' for p in ps)
        if kind == 'block':
            dst = {r for r in dst if r[0] != 's'}; src = {r for r in src if r[0] != 's'}
        acc_chain = (kind == 'mfma' and p0.dst == p0.srcC)
        nodes.append(dict(txt=it, dst=dst, src=src, kind=kind, mf=mf, n=len(ps), dsw=hasdsw, dsr=hasdsr, p=p0, vm=any(p.cls in ('vload','vstore') for p in ps)))
    succ = [[] for _ in range(n)]; npred = [0]*n
    lastw = {}; readers = {}; lastdsw = None; dsr_since = []; lastvm = None
    def edge(a, b_, lat):
        succ[a].append((b_, lat)); npred[b_] += 1
    def lat_raw(a, b_):
        A = nodes[a]; B = nodes[b_]
        if A['kind'] == 'mfma':
            if B['kind'] == 'mfma' and A['p'].dst == B['p'].srcC and not (set(A['p'].dst) & set(B['p'].src)): return 16 if A['mf'] == 4 else 32
            return 40 if A['mf'] == 4 else 56
        if A['dsr']: return lds_lat
        if A['kind'] == 'valu' and B['kind'] == 'mfma': return 12
        return 4*A['n'] + 1
    for i, nd in enumerate(nodes):
        for r in nd['src']:
            if r in lastw: edge(lastw[r], i, lat_raw(lastw[r], i))
        for r in nd['dst']:
            if r in lastw:
                a = lastw[r]
                edge(a, i, lat_raw(a, i) if nodes[a]['kind'] == 'mfma' and not (nd['kind'] == 'mfma' and nodes[a]['p'].dst == nd['p'].srcC) else (lds_lat if nodes[a]['dsr'] else 4))
            for a in readers.get(r, []):
                if a != i: edge(a, i, 8 if nodes[a]['kind'] == 'mfma' else 1)
        for r in nd['src']: readers.setdefault(r, []).append(i)
        for r in nd['dst']: lastw[r] = i; readers[r] = [i] if r in nd['src'] else []
        if memdep is None or memdep(nd['txt']):
            if nd['dsw']:
                if lastdsw is not None: edge(lastdsw, i, 1)
                for a in dsr_since: edge(a, i, 1)
                lastdsw = i; dsr_since = []
            if nd['dsr']:
                if lastdsw is not None and lastdsw != i: edge(lastdsw, i, 1)
                dsr_since.append(i)
        if nd['vm']:
            if lastvm is not None: edge(lastvm, i, 1)
            lastvm = i
    prio = [0]*n
    for i in range(n-1, -1, -1):
        own = (nodes[i]['mf']*4 if nodes[i]['mf'] else 4*nodes[i]['n'])
        prio[i] = own + max([lat + prio[j] - own for j, lat in succ[i]] + [0]) if succ[i] else own
    ready_t = [0]*n; left = npred[:]; ready = [i for i in range(n) if left[i] == 0]
    t = 0; pipe = 0; ldsq = 0; out = []; lastmf = 0
    while ready:
        best = None
        for i in ready:
            nd = nodes[i]
            st = max(t, ready_t[i])
            if nd['mf']: st = max(st, pipe)
            if nd['dsr'] or nd['dsw']: st = max(st, ldsq - 24)
            key = (max(st - t, 0) > 0, st, -(1 if nd['mf'] else 0), -prio[i])
            fl = 1 if (filler and filler(nd['txt'])) else 0
            if st <= t:
                if nd['mf']: key = (0, 0, (0 if (nd['mf'] != lastmf) else 1), -prio[i], i)
                else: key = (0, 1, 1 - fl, -prio[i], i)
            else: key = (1, st, 0, -prio[i], i)
            if best is None or key < best[0]: best = (key, i, st)
        _, i, st = best
        nd = nodes[i]; ready.remove(i); out.append(nd['txt'])
        t = st
        if nd['mf']: pipe = t + nd['mf']*4; tn = t + 8; lastmf = nd['mf']
        else: tn = t + 4*nd['n']
        if nd['dsr'] or nd['dsw']: ldsq = max(ldsq, t) + 16
        for j, lat in succ[i]:
            ready_t[j] = max(ready_t[j], t + lat); left[j] -= 1
            if left[j] == 0: ready.append(j)
        t = tn
    if verbose: print('list_schedule: estimated', t, 'cycles for', n, 'items')
    assert len(out) == n
    return out
```

```python
from common import *
from modelA import CN, O_RN, O_R2E, O_R2O, O_R3E, O_R3O, O_RE, NREC
def pr(x): return f'v[{x}:{x+1}]'
def q4(x): return f'v[{x}:{x+3}]'
KP = 2240
UP = 144; PRE = 9
O_KC = 0
O_UL = 4*KP
O_YF = O_UL + (PRE+32)*UP
CH_SZ = O_YF + 12*272
def merge(a, b_):
    out = []; n = len(a); m = len(b_); k = 0
    for i, g in enumerate(a):
        out += g
        tgt = (m*(i+1))//n
        out += b_[k:tgt]; k = tgt
    return out
def sched(streams, bias=0):
    pos = [0]*len(streams); out = []; t = 0; pipe = 0
    total = [len(x) for x in streams]
    def ismf(x): return x.startswith('v_mfma')
    def cost(x): return 4*(x.count('\n') + 1)
    while any(pos[i] < total[i] for i in range(len(streams))):
        heads = [(i, streams[i][pos[i]]) for i in range(len(streams)) if pos[i] < total[i]]
        mf = [(i, x) for i, x in heads if ismf(x)]; nm = [(i, x) for i, x in heads if not ismf(x)]
        frac = lambda i: pos[i]/total[i]
        if mf and (pipe <= t + 4 or not nm):
            i, x = min(mf, key=lambda p: frac(p[0]))
            t = max(t, pipe); pipe = t + (32 if '32x32' in x else 16); t += 8
        else:
            i, x = min(nm, key=lambda p: frac(p[0])); t += cost(x)
        out.append(x); pos[i] += 1
    return out
def job_conv(b, s_idx, stflag=''):
    srd(b, 44, S_WS, SZ_REC, WS_REC); srd(b, 48, S_WS, SZ_UT, WS_UT); srd(b, 52, S_WS, SZ_TAB, WS_TAB)
    srd(b, 64, S_WS, SZ_UT, WS_YT)
    b('v_and_b32 v1, 63, v0'); b('v_lshrrev_b32 v4, 6, v0'); b('s_nop 0'); b('v_readfirstlane_b32 s60, v4')
    b(f's_lshl_b32 s63, s{s_idx}, 2'); b('s_add_u32 s63, s63, s60')
    b(f's_mul_i32 s68, s60, {CH_SZ}')
    b(f's_mul_i32 s70, s63, {REC_STRIDE}'); b('s_lshl_b32 s71, s63, 12')
    b('v_lshlrev_b32 v3, 3, v1'); b('v_lshlrev_b32 v5, 4, v1')
    ACC0, ACC1 = 8, 24
    AR, NA = 40, 7
    BR, NB = 68, 5
    BC = 88
    D1 = 104
    Y = 120
    S = 144
    YR = 216
    UW, RW = S, S+16
    for i in range(4): b(f'buffer_load_dwordx4 {q4(UW+4*i)}, v5, s[48:51], s71 offen offset:{1024*i}')
    for i in range(5): b(f'buffer_load_dwordx4 {q4(RW+4*i)}, v3, s[44:47], s70 offen offset:{512*i}')
    b(f's_mov_b32 s72, {TAB_BC}')
    for p in range(4): b(f'buffer_load_dwordx4 {q4(BC+4*p)}, v5, s[52:55], s72 offen offset:{1024*p}')
    b('v_mov_b32 v8, 0'); b('v_mov_b32 v9, 0'); b('v_mov_b32 v10, 0'); b('v_mov_b32 v11, 0')
    b('v_add_u32 v6, s68, v5'); b(f'ds_write_b128 v6, v[8:11] offset:{O_UL}')
    b('v_min_u32 v7, 16, v1'); b('v_lshlrev_b32 v7, 4, v7'); b('v_add_u32 v7, s68, v7'); b(f'ds_write_b128 v7, v[8:11] offset:{O_UL + 1024}')
    b('v_and_b32 v2, 15, v1'); b('v_lshrrev_b32 v12, 4, v1')
    b('v_and_b32 v4, 31, v1'); b('v_lshrrev_b32 v13, 5, v1')
    AN, AB, AD2, AT2, AYW, AYR, AOW, AOR = range(248, 256)
    AT3, AD3A, AD3B, ABE16, ABE17, AU, AK = range(Y, Y+7)
    T_ = 14
    def blkaddr(dst, qreg, base):
        b(f'v_lshrrev_b32 v{dst}, 3, v{qreg}'); b(f'v_mul_u32_u24 v{dst}, {UP}, v{dst}'); b(f'v_and_b32 v{T_}, 7, v{qreg}'); b(f'v_lshlrev_b32 v{T_}, 4, v{T_}')
        b(f'v_add3_u32 v{dst}, v{dst}, v{T_}, s68');
        if base: b(f'v_add_u32 v{dst}, {base}, v{dst}')
    blkaddr(AOR, 1, O_UL)
    b(f'v_add_u32 v{AU}, {PRE*UP}, v{AOR}')
    b(f'v_add_u32 v{AK}, s68, v3')
    def copyaddr(dst, x0reg, base):
        b(f'v_and_b32 v{T_}, 3, v{x0reg}'); b(f'v_sub_u32 v{dst}, v{x0reg}, v{T_}'); b(f'v_lshlrev_b32 v{dst}, 1, v{dst}')
        b(f'v_mul_u32_u24 v{T_}, {KP}, v{T_}'); b(f'v_add3_u32 v{dst}, v{dst}, v{T_}, s68')
        if base: b(f'v_add_u32 v{dst}, {2*base}, v{dst}')
    b('v_lshlrev_b32 v15, 2, v12')
    b('v_lshlrev_b32 v7, 1, v2'); b('v_sub_u32 v7, 30, v7'); b('v_add_u32 v7, v7, v15'); copyaddr(AT2, 7, O_R2E)
    b('v_sub_u32 v7, 15, v2'); b('v_add_u32 v7, v7, v15'); copyaddr(AT3, 7, O_R3E)
    b('v_sub_u32 v7, 31, v4'); b('v_lshlrev_b32 v16, 3, v13'); b('v_add_u32 v7, v7, v16'); copyaddr(AN, 7, O_RN)
    q0 = 8*PRE - 3
    b('v_add_u32 v7, v2, v12'); b(f'v_add_u32 v7, {q0}, v7'); blkaddr(AD2, 7, O_UL)
    b('v_lshlrev_b32 v7, 1, v2'); b('v_add_u32 v7, v7, v12'); b(f'v_add_u32 v7, {q0}, v7'); blkaddr(AD3A, 7, O_UL)
    b('v_add_u32 v7, 1, v7'); blkaddr(AD3B, 7, O_UL)
    b('v_lshrrev_b32 v7, 2, v2'); b('v_mul_u32_u24 v7, 272, v7'); b('v_and_b32 v16, 3, v2'); b('v_lshlrev_b32 v16, 6, v16'); b('v_add3_u32 v7, v7, v16, s68')
    b('v_lshlrev_b32 v16, 4, v12'); b('v_add_u32 v7, v7, v16'); b(f'v_add_u32 v{AYW}, {O_YF}, v7')
    b('v_lshlrev_b32 v16, 4, v13')
    b(f'v_mul_u32_u24 v7, {UP}, v4'); b('v_add3_u32 v7, v7, v16, s68'); b(f'v_add_u32 v{AB}, {O_UL}, v7')
    for (dst, dl) in ((ABE16, 16), (ABE17, 17)):
        b(f'v_subrev_u32 v7, {dl}, v4'); b('v_max_i32 v7, -1, v7'); b(f'v_add_u32 v7, {PRE}, v7'); b(f'v_mul_u32_u24 v7, {UP}, v7')
        b('v_add3_u32 v7, v7, v16, s68'); b(f'v_add_u32 v{dst}, {O_UL}, v7')
    b('v_mul_u32_u24 v7, 272, v4'); b('v_add3_u32 v7, v7, v16, s68'); b(f'v_add_u32 v{AYR}, {O_YF - 8*272}, v7')
    b(f'v_mul_u32_u24 v7, {UP}, v4'); b('v_lshlrev_b32 v16, 3, v13'); b('v_add3_u32 v7, v7, v16, s68'); b(f'v_add_u32 v{AOW}, {O_UL}, v7')
    for q in range(16): b(f'v_mov_b32 v{ACC0+q}, 0'); b(f'v_mov_b32 v{ACC1+q}, 0')
    b('STAMP 0 vmcnt(4)')
    for i in range(4): b(f'ds_write_b128 v{AU}, {q4(UW+4*i)} offset:{8*UP*i}')
    for i in range(5):
        w = RW + 4*i; o = 512*i; t0 = AR + 4*(i & 1)
        b(f'v_alignbit_b32 v{t0}, v{w+1}, v{w}, 16'); b(f'v_alignbit_b32 v{t0+1}, v{w+2}, v{w+1}, 16'); b(f'v_alignbit_b32 v{t0+2}, v{w+3}, v{w+2}, 16')
        if i == 4: b('s_mov_b64 s[76:77], exec'); b('s_mov_b64 exec, 0xffffff')
        b(f'ds_write_b64 v{AK}, {pr(w)} offset:{o}')
        b(f'ds_write_b64 v{AK}, {pr(t0)} offset:{KP + o}')
        b(f'v_add_u32 v7, {2*KP + o}, v{AK}'); b(f'ds_write2_b32 v7, v{w+1}, v{w+2} offset0:0 offset1:1')
        b(f'v_add_u32 v6, {3*KP + o}, v{AK}'); b(f'ds_write2_b32 v6, v{t0+1}, v{t0+2} offset0:0 offset1:1')
        if i == 4: b('s_mov_b64 exec, s[76:77]')
    b('STAMP 1')
    F = []
    f = F.append
    T3, G3, DA3 = S, S+16, S+32
    def gpack(d, g):
        f(f'v_cvt_pk_bf16_f32 v{g}, v{d}, v{d+1}'); f(f'v_cvt_pk_bf16_f32 v{g+1}, v{d+2}, v{d+3}')
        f(f'v_cvt_pk_bf16_f32 v{g+2}, v{d+4}, v{d+5}'); f(f'v_cvt_pk_bf16_f32 v{g+3}, v{d+6}, v{d+7}')
    for beta in range(4):
        f(f'ds_read_b128 {q4(DA3+8*beta)}, v{AD3A} offset:{4*UP*beta}'); f(f'ds_read_b128 {q4(DA3+8*beta+4)}, v{AD3B} offset:{4*UP*beta}')
    for s in range(4):
        f(f'ds_read_b64 {pr(T3+4*s)}, v{AT3} offset:{32*(3-s)}'); f(f'ds_read_b64 {pr(T3+4*s+2)}, v{AT3} offset:{32*(3-s) + 2*(O_R3O-O_R3E)}')
    for beta in range(4):
        d = D1 + 8*(beta & 1)
        f(f'v_mfma_f32_16x16x32_bf16 {q4(d)}, {q4(DA3+8*beta)}, {q4(BC+8)}, 0')
        f(f'v_mfma_f32_16x16x32_bf16 {q4(d+4)}, {q4(DA3+8*beta+4)}, {q4(BC+12)}, 0')
        if beta >= 1: gpack(D1 + 8*((beta-1) & 1), G3 + 4*(beta-1))
    T2 = S + 32
    DA = S + 56
    for s in range(6):
        f(f'ds_read_b64 {pr(T2+4*s)}, v{AT2} offset:{32*s}'); f(f'ds_read_b64 {pr(T2+4*s+2)}, v{AT2} offset:{32*s + 2*(O_R2O-O_R2E)}')
    for q in range(4): f(f'ds_read_b128 {q4(DA+4*q)}, v{AD2} offset:{2*UP*q}')
    gpack(D1 + 8, G3 + 12)
    for tp in range(4):
        y = Y + 4*(tp+2)
        for beta in range(tp+1):
            f(f'v_mfma_f32_16x16x32_bf16 {q4(y)}, {q4(G3+4*beta)}, {q4(T3+4*(tp-beta))}, ' + ('0' if beta == 0 else q4(y)))
    def yround(rd):
        if rd == 0:
            for q in range(32): f(f'v_mov_b32 v{YR+q}, 0')
        for tt in range(3*rd, 3*rd+3): f(f'ds_write_b128 v{AYW}, {q4(Y+4*tt)} offset:{(tt-3*rd)*4*272}')
        lo = 8 + 12*rd; mask = ((1 << 12) - 1) << lo
        f('s_mov_b64 s[76:77], exec'); f(f's_mov_b32 s78, {hex(mask)}'); f(f's_mov_b32 s79, {hex(mask)}'); f('s_mov_b64 exec, s[78:79]')
        f(f'v_subrev_u32 v7, {12*272*rd}, v{AYR}' if rd else f'v_mov_b32 v7, v{AYR}')
        for mt in range(2):
            for g in range(4): f(f'ds_read_b128 {q4(YR+16*mt+4*g)}, v7 offset:{128*mt + 32*g}')
        f('s_mov_b64 exec, s[76:77]')
    G = S
    pend = None
    def tile(tt):
        y = Y + 4*tt; first = tt < 2
        for beta in range(max(0, 2*tt-4), 2*tt+2):
            f(f'v_mfma_f32_16x16x32_bf16 {q4(y)}, {q4(G+4*(beta % 8))}, {q4(T2+4*(beta-2*tt+4))}, ' + ('0' if first else q4(y))); first = False
    for tau in range(6):
        for beta in (2*tau, 2*tau+1):
            da = DA + 4*(beta & 3); d = D1 + 8*(beta & 1); g = G + 4*(beta % 8)
            f(f'v_mfma_f32_16x16x32_bf16 {q4(d)}, {q4(da)}, {q4(BC)}, 0')
            f(f'v_mfma_f32_16x16x32_bf16 {q4(d+4)}, {q4(da)}, {q4(BC+4)}, 0')
            if beta + 4 < 12: f(f'ds_read_b128 {q4(da)}, v{AD2} offset:{2*UP*(beta+4)}')
            if pend: gpack(*pend)
            pend = (d, g)
        if tau >= 1: tile(tau - 1)
        if tau == 3: yround(0)
    gpack(*pend)
    tile(5)
    yround(1)
    NS = 37; PF = 4
    def dk(o):
        dl = -((-o)//64); return dl, (64*dl - o)//16
    def issueA(s):
        r = AR + 4*(s % NA)
        return [f'ds_read_b64 {pr(r)}, v{AN} offset:{32*s}', f'ds_read_b64 {pr(r+2)}, v{AN} offset:{32*s+8}']
    def issueB(s):
        dl, ks = dk(528 - 16*s); r = BR + 4*(s % NB)
        return [f'ds_read_b128 {q4(r)}, v{AB} offset:{(9-dl)*UP + 32*ks}']
    groups = []
    for k in range(NS + PF):
        g = []
        if k >= PF:
            s = k - PF; bb = BR + 4*(s % NB)
            if s <= 34: g.append(f'v_mfma_f32_32x32x16_bf16 v[{ACC0}:{ACC0+15}], {q4(AR+4*(s % NA))}, {q4(bb)}, v[{ACC0}:{ACC0+15}]')
            if s >= 2: g.append(f'v_mfma_f32_32x32x16_bf16 v[{ACC1}:{ACC1+15}], {q4(AR+4*((s-2) % NA))}, {q4(bb)}, v[{ACC1}:{ACC1+15}]')
        if k < NS:
            if k <= 34: g += issueA(k)
            g += issueB(k)
        groups.append(g)
    EA = YR; EB = YR + 12
    er = []
    for q, op in enumerate((1040, 1024, 1008)):
        ao = 2*(O_RE + 1087 - op - 31)
        er += [f'ds_read_b64 {pr(EA+4*q)}, v{AN} offset:{ao}', f'ds_read_b64 {pr(EA+4*q+2)}, v{AN} offset:{ao+8}']
    er.append(f'ds_read_b128 {q4(EB)}, v{ABE17} offset:96')
    for ks in range(4): er.append(f'ds_read_b128 {q4(EB+4+4*ks)}, v{ABE16} offset:{32*ks}')
    a0 = f'v[{ACC0}:{ACC0+15}]'; a1 = f'v[{ACC1}:{ACC1+15}]'
    em = [f'v_mfma_f32_32x32x16_bf16 {a0}, {q4(EA)}, {q4(EB)}, {a0}', f'v_mfma_f32_32x32x16_bf16 {a1}, {q4(EA)}, {q4(EB+8)}, {a1}',
          f'v_mfma_f32_32x32x16_bf16 {a0}, {q4(EA+4)}, {q4(EB+4)}, {a0}', f'v_mfma_f32_32x32x16_bf16 {a1}, {q4(EA+4)}, {q4(EB+12)}, {a1}',
          f'v_mfma_f32_32x32x16_bf16 {a0}, {q4(EA+8)}, {q4(EB+8)}, {a0}', f'v_mfma_f32_32x32x16_bf16 {a1}, {q4(EA+8)}, {q4(EB+16)}, {a1}']
    F2 = []; atomic = None
    for x in F:
        if x.startswith('s_mov_b64 s[76:77], exec'): atomic = [x]
        elif atomic is not None:
            atomic.append(x)
            if x.startswith('s_mov_b64 exec, s[76:77]'): F2.append('\n'.join(atomic)); atomic = None
        else: F2.append(x)
    near = [x for g in groups for x in g]
    import os
    ex = os.environ.get('CVEXP', '')
    if ex == 'near': F2 = []
    if ex == 'far': near = []
    if ex == 'nolds': near = [x for x in near if not x.startswith('ds_')]; F2 = [x for x in F2 if not x.startswith('ds_read')]
    if ex == 'nearnolds': near = [x for x in near if not x.startswith('ds_')]; F2 = []
    if ex != 'greedy':
        nearset = set(near) | set(er) | set(em)
        seq = list_schedule(er + em + F2 + near, verbose=True, filler=lambda x: x in nearset, memdep=lambda x: ('ds_write' in x) or ('exec' in x))

    else: seq = sched([x for x in (near, F2) if x])
    for l in seq: b(l)
    b('STAMP 2')
    for mt, acc in ((0, ACC0), (1, ACC1)):
        for q in range(8): b(f'v_pk_add_f32 {pr(acc+2*q)}, {pr(acc+2*q)}, {pr(YR+16*mt+2*q)}')
    b('STAMP 3')
    OB = 88
    for mt, acc in ((0, ACC0), (1, ACC1)):
        for g in range(4):
            o = OB + 8*mt + 2*g
            b(f'v_cvt_pk_bf16_f32 v{o}, v{acc+4*g}, v{acc+4*g+1}'); b(f'v_cvt_pk_bf16_f32 v{o+1}, v{acc+4*g+2}, v{acc+4*g+3}')
            b(f'ds_write_b64 v{AOW}, {pr(o)} offset:{64*mt + 16*g}')
    for i in range(4): b(f'ds_read_b128 {q4(104+4*i)}, v{AOR} offset:{8*UP*i}')
    for i in range(4): b(f'buffer_store_dwordx4 {q4(104+4*i)}, v5, s[64:67], s71 offen offset:{1024*i} {stflag}')
    b('s_endpgm')
```

```python
from common import *
from modelA import CN, O_RN, O_R2E, O_R2O, O_R3E, O_R3O, O_RE, NREC
LOG2E = 1.4426950408889634
INV2PI = 0.15915494309189535
def pr(x): return f'v[{x}:{x+1}]'
def cmul(b, d, x, y):
    assert d != x and d != y
    b(f'v_pk_mul_f32 {pr(d)}, {pr(x)}, {pr(y)} op_sel:[0,0] op_sel_hi:[0,1]')
    b(f'v_pk_fma_f32 {pr(d)}, {pr(x)}, {pr(y)}, {pr(d)} op_sel:[1,1,0] op_sel_hi:[1,0,1] neg_lo:[0,1,0]')
def job_kgen(b, s_idx):
    PITCH = 272; REG = 32*PITCH
    srd(b, 44, S_LOGA, 640*256); srd(b, 48, S_AIM, 640*256); srd(b, 52, S_CRE, 640*256); srd(b, 56, S_CIM, 640*256)
    srd(b, 64, S_LOGDT, 1280); srd(b, 68, S_WS, SZ_REC, WS_REC)
    b('v_and_b32 v1, 63, v0'); b('v_lshrrev_b32 v4, 6, v0'); b('s_nop 0'); b('v_readfirstlane_b32 s60, v4')
    b(f's_lshl_b32 s72, s{s_idx}, 1'); b('s_lshr_b32 s73, s60, 1'); b('s_add_u32 s72, s72, s73')
    b('s_and_b32 s73, s60, 1')
    b('s_lshl_b32 s74, s72, 8'); b('s_lshl_b32 s75, s73, 7'); b('s_add_u32 s74, s74, s75')
    b('v_lshlrev_b32 v5, 1, v1')
    b('buffer_load_ushort v8, v5, s[44:47], s74 offen'); b('buffer_load_ushort v9, v5, s[48:51], s74 offen')
    b('buffer_load_ushort v10, v5, s[52:55], s74 offen'); b('buffer_load_ushort v11, v5, s[56:59], s74 offen')
    b('s_lshl_b32 s75, s72, 1'); b('v_mov_b32 v6, 0')
    b('buffer_load_ushort v12, v6, s[64:67], s75 offen')
    srd(b, 84, S_DSK, 1280)
    b('buffer_load_ushort v30, v6, s[84:87], s75 offen')
    b(f's_mul_i32 s76, s60, {REG}')
    b('v_lshlrev_b32 v2, 2, v1'); b('v_add_u32 v2, s76, v2')
    b('v_and_b32 v3, 31, v1'); b('v_lshrrev_b32 v4, 5, v1')
    b(f'v_mul_u32_u24 v7, {PITCH}, v3'); b('v_lshlrev_b32 v13, 4, v4'); b('v_add_u32 v7, v7, v13'); b('v_add_u32 v7, s76, v7')
    b('STAMP 0 vmcnt(0)')
    b('v_lshlrev_b32 v12, 16, v12'); b(f'v_mul_f32 v12, {fbits(LOG2E)}, v12'); b('v_exp_f32 v12, v12')
    b('v_cvt_pk_bf16_f32 v12, v12, v12'); b('v_lshlrev_b32 v12, 16, v12')
    b('v_lshlrev_b32 v8, 16, v8'); b(f'v_mul_f32 v8, {fbits(LOG2E)}, v8'); b('v_exp_f32 v8, v8')
    b('v_cvt_pk_bf16_f32 v8, v8, v8'); b('v_lshlrev_b32 v8, 16, v8')
    b('v_mul_f32 v8, v8, v12'); b(f'v_mul_f32 v8, {fbits(-LOG2E)}, v8')
    b('v_lshlrev_b32 v9, 16, v9'); b('v_mul_f32 v9, v9, v12'); b(f'v_mul_f32 v9, {fbits(INV2PI)}, v9')
    b('v_add_f32 v12, v12, v12')
    CP = 14
    b('v_lshlrev_b32 v10, 16, v10'); b('v_lshlrev_b32 v11, 16, v11')
    b(f'v_mul_f32 v{CP}, v10, v12'); b(f'v_mul_f32 v{CP+1}, v11, v12')
    W1, W8, Q = 16, 18, 20
    for (dst, p) in ((W8, 8.0), (W1, 1.0), (Q, 256.0)):
        b(f'v_mul_f32 v10, {fbits(p)}, v8'); b(f'v_mul_f32 v11, {fbits(p)}, v9')
        b('v_exp_f32 v10, v10'); b('v_fract_f32 v11, v11')
        b(f'v_cos_f32 v{dst}, v11'); b(f'v_sin_f32 v{dst+1}, v11')
        b(f'v_mul_f32 v{dst}, v{dst}, v10'); b(f'v_mul_f32 v{dst+1}, v{dst+1}, v10')
    TA, TB = 22, 24
    b('v_mov_b32 v26, 0x3f80'); b('ds_write_b32 v2, v26')
    b(f'v_cvt_pk_bf16_f32 v27, v{W8}, v{W8+1}'); b(f'ds_write_b32 v2, v27 offset:{PITCH}')
    cur = W8; pp = [TA, TB]
    for j in range(2, 32):
        nx = pp[j & 1]
        cmul(b, nx, cur, W8)
        tmp = 26 + (j & 3)
        b(f'v_cvt_pk_bf16_f32 v{tmp}, v{nx}, v{nx+1}'); b(f'ds_write_b32 v2, v{tmp} offset:{j*PITCH}')
        cur = nx
    BF = 32
    for ks in range(8): b(f'ds_read_b128 v[{BF+4*ks}:{BF+4*ks+3}], v7 offset:{32*ks}')
    b('STAMP 1')
    cnt = [0]
    def wrow(i, src):
        tmp = 26 + (cnt[0] & 3); cnt[0] += 1
        b(f'v_cvt_pk_bf16_f32 v{tmp}, v{src}, -v{src+1}'); b(f'ds_write_b32 v2, v{tmp} offset:{i*PITCH}')
        return tmp
    W2, W4, W6 = 64, 66, 68
    cmul(b, W2, W1, W1); cmul(b, W4, W2, W2); cmul(b, W6, W4, W2)
    wrow(0, CP); cur = CP
    for r in range(1, 8):
        nx = pp[r & 1]; cmul(b, nx, cur, W1); wrow(r, nx); cur = nx
    PA, PB, TX = 70, 72, 74
    cmul(b, PA, CP, Q)
    t = wrow(8, PA); b(f'ds_write_b32 v2, v{t} offset:{9*PITCH}')
    cmul(b, TX, PA, W2); wrow(10, TX)
    cmul(b, TA, PA, W4); t = wrow(11, TA); b(f'ds_write_b32 v2, v{t} offset:{12*PITCH}'); b(f'ds_write_b32 v2, v{t} offset:{13*PITCH}')
    cmul(b, TX, PA, W6); wrow(14, TX)
    cmul(b, TA, PA, W8); wrow(15, TA)
    cmul(b, PB, PA, Q); wrow(16, PB); cmul(b, TX, PB, W4); wrow(17, TX)
    cmul(b, PA, PB, Q); wrow(18, PA); cmul(b, TX, PA, W4); wrow(19, TX)
    cur, oth = PA, PB
    for i in range(20, 25):
        cmul(b, oth, cur, Q); wrow(i, oth); cur, oth = oth, cur
    b('STAMP 2')
    D = 80; AF = 64
    for ks in range(8):
        a = AF + 4*(ks & 3)
        b(f'ds_read_b128 v[{a}:{a+3}], v7 offset:{32*ks}')
        if ks >= 3:
            k2 = ks - 3; a2 = AF + 4*(k2 & 3)
            b(f'v_mfma_f32_32x32x16_bf16 v[{D}:{D+15}], v[{a2}:{a2+3}], v[{BF+4*k2}:{BF+4*k2+3}], ' + ('0' if k2 == 0 else f'v[{D}:{D+15}]'))
    for k2 in range(5, 8):
        a2 = AF + 4*(k2 & 3)
        b(f'v_mfma_f32_32x32x16_bf16 v[{D}:{D+15}], v[{a2}:{a2+3}], v[{BF+4*k2}:{BF+4*k2+3}], v[{D}:{D+15}]')
    b('STAMP 3')
    b('v_lshlrev_b32 v5, 4, v1')
    b('s_cmp_eq_u32 s73, 0'); b('s_cbranch_scc1 KG_H0')
    b('v_add_u32 v6, s76, v5')
    for g in range(4): b(f'ds_write_b128 v6, v[{D+4*g}:{D+4*g+3}] offset:{g*1024}')
    b('s_barrier')
    b('s_endpgm')
    b.label('KG_H0')
    b('s_barrier')
    b(f's_add_u32 s77, s76, {REG}'); b('v_add_u32 v6, s77, v5')
    for g in range(4): b(f'ds_read_b128 v[{32+4*g}:{32+4*g+3}], v6 offset:{g*1024}')
    b('v_add_u32 v6, s76, v5')
    b('v_mov_b32 v16, 0'); b('v_mov_b32 v17, 0'); b('v_mov_b32 v18, 0'); b('v_mov_b32 v19, 0')
    for i in range(3): b(f'ds_write_b128 v6, v[16:19] offset:{i*1024}')
    for q in range(8): b(f'v_pk_add_f32 {pr(D+2*q)}, {pr(D+2*q)}, {pr(32+2*q)}')
    b('v_lshlrev_b32 v30, 16, v30'); b('v_cmp_eq_u32 vcc, 0, v1'); b('v_cndmask_b32 v30, 0, v30, vcc'); b(f'v_add_f32 v{D}, v{D}, v30')
    b('v_lshlrev_b32 v8, 4, v3'); b('v_lshlrev_b32 v9, 3, v4'); b('v_add_u32 v8, v8, v9')
    b(f'v_sub_u32 v8, {2*(O_RN + CN - 3)}, v8'); b('v_add_u32 v8, s76, v8')
    for g in range(2):
        b(f'v_cvt_pk_bf16_f32 v20, v{D+4*g+3}, v{D+4*g+2}'); b(f'v_cvt_pk_bf16_f32 v21, v{D+4*g+1}, v{D+4*g}')
        b(f'ds_write_b64 v8, v[20:21]' if g == 0 else '')
        if g == 1:
            b(f'v_subrev_u32 v9, 512, v8'); b('ds_write_b64 v9, v[20:21]')
    TR = 2*1400
    b(f'v_cvt_pk_bf16_f32 v20, v{D+8}, v{D+9}'); b(f'v_cvt_pk_bf16_f32 v21, v{D+10}, v{D+11}'); b(f'v_cvt_pk_bf16_f32 v22, v{D+12}, v{D+12}')
    b('v_lshlrev_b32 v9, 1, v3')
    b('v_add_u32 v10, 1, v3'); b('v_and_b32 v10, -2, v10')
    b('v_and_b32 v11, 1, v3'); b(f'v_mul_u32_u24 v11, {2*(O_R3O - O_R3E)}, v11')
    b(f'v_add_u32 v11, {2*(O_R3E + 64)}, v11'); b('v_sub_u32 v11, v11, v10')
    b('v_cmp_eq_u32 s[78:79], 1, v4')
    b('v_cmp_eq_u32 s[80:81], 0, v3')
    h0 = [2*(O_R2E + 96), 2*(O_R2O + 95), 2*(O_R2E + 64), 2*(O_R2O + 63)]
    for k in range(4):
        b(f'v_sub_u32 v12, {h0[k]}, v9')
        b(f'v_subrev_u32 v13, {32*k}, v11' if k else 'v_mov_b32 v13, v11')
        b('v_cndmask_b32 v12, v12, v13, s[78:79]')
        if k == 0:
            b(f'v_mov_b32 v13, {TR}'); b('v_cndmask_b32 v12, v12, v13, s[80:81]')
        b('v_add_u32 v12, s76, v12')
        src = 20 + (k >> 1)
        b(f'ds_write_b16 v12, v{src}' if k % 2 == 0 else f'ds_write_b16_d16_hi v12, v{src}')
    sp = [(O_RN + CN - 512, O_R2E + 32), (O_RN + CN - 513, O_RE + 1087 - 1027), (O_RN + CN - 514, O_RE + 1087 - 1028)]
    for (a0, a1) in sp:
        b(f'v_mov_b32 v12, {2*a0}'); b(f'v_mov_b32 v13, {2*a1}'); b('v_cndmask_b32 v12, v12, v13, s[78:79]')
        b(f'v_mov_b32 v13, {TR}'); b('v_cndmask_b32 v12, v13, v12, s[80:81]'); b('v_add_u32 v12, s76, v12')
        b('ds_write_b16 v12, v20')
    b(f'v_mov_b32 v12, {2*(O_R3E + 0)}'); b(f'v_mov_b32 v13, {TR}'); b('v_cmp_eq_u32 vcc, 0, v1'); b('v_cndmask_b32 v12, v13, v12, vcc')
    b('v_add_u32 v12, s76, v12'); b('ds_write_b16 v12, v22')
    for i in range(3): b(f'ds_read_b128 v[{32+4*i}:{32+4*i+3}], v6 offset:{i*1024}')
    b(f's_mul_i32 s75, s72, {REC_STRIDE}')
    b('v_mov_b32 v12, 0x80000000'); b('v_cmp_gt_u32 vcc, 16, v1'); b('v_cndmask_b32 v12, v12, v5, vcc')
    b('buffer_store_dwordx4 v[32:35], v5, s[68:71], s75 offen')
    b('buffer_store_dwordx4 v[36:39], v5, s[68:71], s75 offen offset:1024')
    b('buffer_store_dwordx4 v[40:43], v12, s[68:71], s75 offen offset:2048')
    b('s_endpgm')
```

```python
from common import *
import math
C8 = 0.70710678118654752
def pk(op, d, a, bb, *rest, neg=None):
    pass
def job_p1(b, s_idx, stflag=''):
    LC = 16384
    srd(b, 44, S_X, 2048*1280); srd(b, 48, S_WS, SZ_T, WS_T)
    b('v_and_b32 v1, 63, v0'); b('v_and_b32 v2, 15, v1'); b('v_lshrrev_b32 v3, 4, v1')
    b('v_lshrrev_b32 v4, 6, v0'); b('s_nop 0'); b('v_readfirstlane_b32 s60, v4')
    b(f's_mul_i32 s61, s{s_idx}, 1280')
    for s1 in range(1, 8): b(f's_add_u32 s{61+s1}, s61, {s1*327680}')
    b('v_lshlrev_b32 v5, 3, v0')
    b('v_mov_b32 v6, 0x80000000')
    b('v_cmp_gt_u32 vcc, 160, v0')
    b('v_cndmask_b32 v6, v6, v5, vcc')
    X = 8
    for s1 in range(8): b(f'buffer_load_dwordx2 v[{X+2*s1}:{X+2*s1+1}], v6, s[44:47], s{61+s1} offen')
    TWC, TWS, A2R, A2I = 24, 32, 40, 44
    T0 = 48
    b('v_cvt_f32_u32 v48, v2')
    b('v_lshlrev_b32 v49, 2, v3'); b('v_cvt_f32_u32 v49, v49')
    for t in range(2):
        b(f'v_add_f32 v50, {fbits(16.0*t)}, v48' if t else 'v_mov_b32 v50, v48')
        b(f'v_mul_f32 v50, {fbits(1/640)}, v50')
        b('v_mul_f32 v51, v49, v50')
        for r in range(4):
            if r == 0: src = 'v51'
            else:
                b(f'v_fmamk_f32 v52, v50, {fbits(float(r))}, v51'); src = 'v52'
            b(f'v_cos_f32 v{TWC+4*t+r}, {src}'); b(f'v_sin_f32 v{TWS+4*t+r}, {src}')
    b(f'v_mul_f32 v50, {fbits(1/16)}, v48'); b('v_mul_f32 v51, v49, v50')
    for r in range(4):
        if r == 0: src = 'v51'
        else:
            b(f'v_fmamk_f32 v52, v50, {fbits(float(r))}, v51'); src = 'v52'
        b(f'v_cos_f32 v53, {src}'); b(f'v_sin_f32 v54, {src}')
        b(f'v_cvt_pk_bf16_f32 v{A2R+r}, v53, v54'); b(f'v_cvt_pk_bf16_f32 v{A2I+r}, -v54, v53')
    b('s_lshr_b32 s70, s60, 1'); b('s_and_b32 s71, s60, 1')
    b('s_lshl_b32 s72, s71, 4'); b('s_lshl_b32 s73, s70, 5')
    b('v_add_u32 v50, s72, v2')
    b('v_cvt_f32_u32 v51, v50'); b(f'v_mul_f32 v51, {fbits(1/40)}, v51')
    b('v_lshlrev_b32 v52, 2, v3'); b('v_add_u32 v52, s73, v52')
    b('v_cmp_gt_u32 vcc, 21, v50'); b('v_cmp_gt_u32 s[74:75], 40, v52'); b('s_and_b64 vcc, vcc, s[74:75]')
    b('v_cvt_f32_u32 v52, v52'); b('v_mul_f32 v52, v52, v51')
    for e in range(8):
        off = (e & 3) + 16*(e >> 2)
        if off == 0: src = 'v52'
        else:
            b(f'v_fmamk_f32 v53, v51, {fbits(float(off))}, v52'); src = 'v53'
        b(f'v_cos_f32 v{56+e}, {src}'); b(f'v_sin_f32 v{64+e}, {src}')
    for q in range(4):
        b(f'v_cvt_pk_bf16_f32 v{72+q}, v{56+2*q}, v{57+2*q}')
        b(f'v_cvt_pk_bf16_f32 v{76+q}, -v{64+2*q}, -v{65+2*q}')
    for q in range(8): b(f'v_cndmask_b32 v{72+q}, 0, v{72+q}, vcc')
    b('s_lshl_b32 s72, s70, 2'); b('s_lshl_b32 s73, s71, 1'); b('s_add_u32 s72, s72, s73'); b('s_lshl_b32 s72, s72, 10')
    b(f's_add_u32 s72, s72, {LC}')
    b('v_lshlrev_b32 v50, 4, v1'); b('v_add_u32 v51, s72, v50')
    b('ds_write_b128 v51, v[72:75]'); b('ds_write_b128 v51, v[76:79] offset:1024')
    b('STAMP 0'); b('STAMP 1 vmcnt(0)')
    b(f's_mov_b32 s76, {fbits(C8)}'); b(f's_mov_b32 s77, {fbits(C8)}')
    P = 80
    TT = 96
    OUT = 56
    def pr(x): return f'v[{x}:{x+1}]'
    NEG = 'neg_lo:[0,1] neg_hi:[0,1]'
    for dw in range(2):
        for s1 in range(8):
            b(f'v_lshlrev_b32 v{P+2*s1}, 16, v{X+2*s1+dw}'); b(f'v_and_b32 v{P+2*s1+1}, 0xffff0000, v{X+2*s1+dw}')
        x = [P+2*s for s in range(8)]
        a_, b_, e_, g_, p_, q_, r_, t_ = [TT+2*i for i in range(8)]
        for (d, i, j, neg) in ((a_,0,4,0),(b_,0,4,1),(e_,2,6,0),(g_,2,6,1),(p_,1,5,0),(q_,1,5,1),(r_,3,7,0),(t_,3,7,1)):
            b(f'v_pk_add_f32 {pr(d)}, {pr(x[i])}, {pr(x[j])} ' + (NEG if neg else ''))
        ae, prr, u_, v_ = P, P+2, P+4, P+6
        R = [P+8, P+10, 112, 114, 116, 118, 120, 122]
        R = [P+8, P+10, P+12, P+14, 112, 114, 116, 118]
        b(f'v_pk_add_f32 {pr(ae)}, {pr(a_)}, {pr(e_)}'); b(f'v_pk_add_f32 {pr(prr)}, {pr(p_)}, {pr(r_)}')
        b(f'v_pk_add_f32 {pr(u_)}, {pr(q_)}, {pr(t_)} {NEG}'); b(f'v_pk_add_f32 {pr(v_)}, {pr(q_)}, {pr(t_)}')
        b(f'v_pk_add_f32 {pr(R[0])}, {pr(ae)}, {pr(prr)}'); b(f'v_pk_add_f32 {pr(R[1])}, {pr(ae)}, {pr(prr)} {NEG}')
        b(f'v_pk_add_f32 {pr(R[4])}, {pr(a_)}, {pr(e_)} {NEG}'); b(f'v_pk_add_f32 {pr(R[5])}, {pr(r_)}, {pr(p_)} {NEG}')
        b(f'v_pk_fma_f32 {pr(R[2])}, {pr(u_)}, s[76:77], {pr(b_)}')
        b(f'v_pk_fma_f32 {pr(R[6])}, {pr(u_)}, s[76:77], {pr(b_)} neg_lo:[1,0,0] neg_hi:[1,0,0]')
        b(f'v_pk_fma_f32 {pr(R[3])}, {pr(v_)}, s[76:77], {pr(g_)} neg_lo:[1,0,1] neg_hi:[1,0,1]')
        b(f'v_pk_fma_f32 {pr(R[7])}, {pr(v_)}, s[76:77], {pr(g_)} neg_lo:[1,0,0] neg_hi:[1,0,0]')
        for j in range(8): b(f'v_cvt_pk_bf16_f32 v{OUT+2*j+dw}, v{R[j]}, v{R[j]+1}')
    for j in range(8): b(f'ds_write_b64 v5, v[{OUT+2*j}:{OUT+2*j+1}] offset:{j*2048}')
    b('s_barrier')
    b('STAMP 2')
    C0, C1 = 56, 72
    b('v_lshlrev_b32 v50, 4, v1'); b(f'v_add_u32 v50, {LC}, v50')
    for f in range(4): b(f'ds_read_b128 v[{C0+4*f}:{C0+4*f+3}], v50 offset:{f*1024}')
    for f in range(4): b(f'ds_read_b64 v[{C1+2*f}:{C1+2*f+1}], v50 offset:{(4+f)*1024}')
    b('s_lshl_b32 s72, s60, 12'); b('v_lshlrev_b32 v51, 3, v1'); b('v_add_u32 v51, s72, v51')
    A = [8, 14]
    for j in range(2):
        b(f'ds_read_b64_tr_b16 v[{A[j]}:{A[j]+1}], v51 offset:{j*2048}')
        b(f'ds_read_b64_tr_b16 v[{A[j]+2}:{A[j]+3}], v51 offset:{j*2048+512}')
        b(f'ds_read_b64_tr_b16 v[{A[j]+4}:{A[j]+5}], v51 offset:{j*2048+1024}')
    D1 = [80, 96]
    for j in range(2):
        for f in range(4):
            d = D1[j] + 4*f
            b(f'v_mfma_f32_16x16x32_bf16 v[{d}:{d+3}], v[{A[j]}:{A[j]+3}], v[{C0+4*f}:{C0+4*f+3}], 0')
        for f in range(4):
            d = D1[j] + 4*f
            b(f'v_mfma_f32_16x16x16_bf16 v[{d}:{d+3}], v[{A[j]+4}:{A[j]+5}], v[{C1+2*f}:{C1+2*f+1}], v[{d}:{d+3}]')
    F = [8, 16]
    TM = 112
    for j in range(2):
        for t in range(2):
            re, im = D1[j] + 8*t, D1[j] + 8*t + 4
            for h in range(2):
                c, s = TWC + 4*t + 2*h, TWS + 4*t + 2*h
                r0, i0 = re + 2*h, im + 2*h
                b(f'v_pk_mul_f32 {pr(TM)}, {pr(r0)}, {pr(c)}'); b(f'v_pk_mul_f32 {pr(TM+2)}, {pr(i0)}, {pr(c)}')
                b(f'v_pk_fma_f32 {pr(TM)}, {pr(i0)}, {pr(s)}, {pr(TM)}')
                b(f'v_pk_fma_f32 {pr(TM+2)}, {pr(r0)}, {pr(s)}, {pr(TM+2)} neg_lo:[1,0,0] neg_hi:[1,0,0]')
                b(f'v_cvt_pk_bf16_f32 v{F[j]+4*t+2*h}, v{TM}, v{TM+2}'); b(f'v_cvt_pk_bf16_f32 v{F[j]+4*t+2*h+1}, v{TM+1}, v{TM+3}')
    D2 = [80, 96]
    for j in range(2):
        for t in range(2):
            b(f'v_mfma_f32_16x16x32_bf16 v[{D2[j]+8*t}:{D2[j]+8*t+3}], v[{A2R}:{A2R+3}], v[{F[j]+4*t}:{F[j]+4*t+3}], 0')
            b(f'v_mfma_f32_16x16x32_bf16 v[{D2[j]+8*t+4}:{D2[j]+8*t+7}], v[{A2I}:{A2I+3}], v[{F[j]+4*t}:{F[j]+4*t+3}], 0')
    b('STAMP 3')
    b('v_mul_u32_u24 v50, 84, v3'); b('v_add_u32 v50, v50, v2')
    b('v_cmp_gt_u32 vcc, 5, v2')
    SAD = 112
    SAD = 120
    for t in range(2):
        for r in range(4):
            d = SAD + 4*t + r
            b(f'v_add_u32 v51, {21*r + 16*t}, v50')
            b(f'v_lshrrev_b32 v52, 4, v51'); b('v_lshlrev_b32 v52, 14, v52'); b('v_and_b32 v51, 15, v51'); b(f'v_lshl_add_u32 v{d}, v51, 2, v52')
            if t == 1:
                b('v_mov_b32 v52, 0x80000000'); b(f'v_cndmask_b32 v{d}, v52, v{d}, vcc')
    b('s_sub_u32 s70, 8, s60'); b('s_cmp_eq_u32 s60, 0'); b('s_cselect_b32 s70, 4, s70')
    b(f's_lshl_b32 s73, s{s_idx}, 6')
    b(f's_mul_i32 s71, s60, {21*16384}'); b('s_add_u32 s71, s71, s73')
    b(f's_mul_i32 s72, s70, {21*16384}'); b('s_add_u32 s72, s72, s73')
    O = [24, 40]
    b('s_cmp_eq_u32 s60, 0'); b('s_cbranch_scc1 P1_W0')
    for t in range(2):
        for h in range(2):
            ar, ai = D2[0]+8*t+2*h, D2[0]+8*t+4+2*h
            br, bi = D2[1]+8*t+2*h, D2[1]+8*t+4+2*h
            b(f'v_pk_add_f32 {pr(TM)}, {pr(ar)}, {pr(bi)} {NEG}'); b(f'v_pk_add_f32 {pr(TM+2)}, {pr(ai)}, {pr(br)}')
            b(f'v_pk_add_f32 {pr(TM+4)}, {pr(ar)}, {pr(bi)}'); b(f'v_pk_add_f32 {pr(TM+6)}, {pr(ai)}, {pr(br)} {NEG}')
            for q in range(2):
                b(f'v_cvt_pk_bf16_f32 v{O[0]+4*t+2*h+q}, v{TM+q}, v{TM+2+q}')
                b(f'v_cvt_pk_bf16_f32 v{O[1]+4*t+2*h+q}, v{TM+4+q}, v{TM+6+q}')
    b('s_branch P1_ST')
    b.label('P1_W0')
    for j in range(2):
        for t in range(2):
            for r in range(4):
                b(f'v_cvt_pk_bf16_f32 v{O[j]+4*t+r}, v{D2[j]+8*t+r}, v{D2[j]+8*t+4+r}')
    b.label('P1_ST')
    for j in range(2):
        for t in range(2):
            for r in range(4):
                b(f'buffer_store_dword v{O[j]+4*t+r}, v{SAD+4*t+r}, s[48:51], s{71+j} offen {stflag}')
    b('s_endpgm')
```

```python
from common import *
def pr(x): return f'v[{x}:{x+1}]'
def q4(x): return f'v[{x}:{x+3}]'
def interleave(a, b_):
    out = []; n = len(a); m = len(b_); k = 0
    for i, x in enumerate(a):
        out.append(x); tgt = (m*(i+1))//n
        out += b_[k:tgt]; k = tgt
    return out
def job_p2(b, s_k1, s_ct, stflag=''):
    EP = 80; E2 = 256*EP
    srd(b, 44, S_WS, SZ_T, WS_T); srd(b, 48, S_WS, SZ_T, WS_Z)
    b('v_and_b32 v1, 63, v0'); b('v_and_b32 v2, 15, v1'); b('v_lshrrev_b32 v3, 4, v1')
    b('v_lshrrev_b32 v4, 6, v0'); b('s_nop 0'); b('v_readfirstlane_b32 s60, v4')
    b(f's_mov_b32 s61, s{s_k1}'); b(f's_mov_b32 s62, s{s_ct}')
    b('s_lshl_b32 s72, s61, 8'); b('s_lshl_b32 s73, s60, 2'); b('s_add_u32 s72, s72, s73'); b('s_mul_i32 s72, s72, 1344')
    b('s_lshl_b32 s73, s62, 6'); b('s_add_u32 s72, s72, s73')
    for r in range(1, 4): b(f's_add_u32 s{72+r}, s72, {r*16*1344}')
    b(f'v_mul_u32_u24 v5, {64*1344}, v3'); b('v_lshlrev_b32 v6, 2, v2'); b('v_add_u32 v5, v5, v6')
    DAT = 8
    srd(b, 64, S_WS, SZ_T, WS_WP)
    b('s_mul_i32 s82, s61, 21'); b('s_add_u32 s82, s82, s62'); b('s_lshl_b32 s82, s82, 14'); b('s_lshl_b32 s83, s60, 8'); b('s_add_u32 s82, s82, s83')
    b('v_lshlrev_b32 v7, 12, v3'); b('v_lshl_add_u32 v7, v2, 2, v7')
    for j in range(4):
        for r in range(4):
            b(f'buffer_load_dword v{DAT+4*j+r}, v7, s[44:47], s82 offen offset:{r*1024 + j*64}')
    WP = 112
    for j in range(4):
        for r in range(4):
            b(f'buffer_load_dword v{WP+4*j+r}, v7, s[64:67], s82 offen offset:{r*1024 + j*64}')
    WL = []
    M1, M4, M2, M3 = 24, 32, 40, 72
    TR = []
    t = TR.append
    t('v_cvt_f32_u32 v104, v2')
    t('v_lshlrev_b32 v105, 2, v3'); t('v_cvt_f32_u32 v105, v105')
    t('s_nop 0')
    tog = [0]
    def angles(dst, fwd):
        for r in range(4):
            th = 108 if (tog[0] & 1) == 0 else 111
            tog[0] += 1
            cc, ss = (109, 110) if th == 108 else (138, 139)
            if r == 0: src = 'v107'
            else: t(f'v_fmamk_f32 v{th}, v106, {fbits(float(r))}, v107'); src = f'v{th}'
            t(f'v_cos_f32 v{cc}, {src}'); t(f'v_sin_f32 v{ss}, {src}')
            if fwd: t(f'v_cvt_pk_bf16_f32 v{dst+r}, v{cc}, v{ss}'); t(f'v_cvt_pk_bf16_f32 v{dst+4+r}, -v{ss}, v{cc}')
            else: t(f'v_cvt_pk_bf16_f32 v{dst+r}, v{cc}, -v{ss}'); t(f'v_cvt_pk_bf16_f32 v{dst+4+r}, v{ss}, v{cc}')
    return_dummy = None
    b('v_cvt_f32_u32 v136, s61')
    b('s_lshl_b32 s79, s60, 5'); b('s_add_u32 s79, s79, s61'); b('v_cvt_f32_u32 v137, s79')
    t(f'v_fmamk_f32 v106, v104, {fbits(8.0)}, v136'); t(f'v_mul_f32 v106, {fbits(1/128)}, v106'); t('v_mul_f32 v107, v105, v106'); angles(M1, True)
    for j in range(4):
        t(f'v_fmamk_f32 v106, v104, {fbits(128.0)}, v137'); t(f'v_add_f32 v106, {fbits(8.0*j)}, v106' if j else 'v_nop'); t(f'v_mul_f32 v106, {fbits(1/2048)}, v106')
        t('v_mul_f32 v107, v105, v106'); angles(M2+8*j, True)
    for j in range(4):
        t(f'v_mul_f32 v106, {fbits(1/16)}, v104'); t(f'v_add_f32 v107, {fbits(8.0*j)}, v137' if j else 'v_mov_b32 v107, v137')
        t('v_mul_f32 v107, v107, v104'); t(f'v_mul_f32 v107, {fbits(1/2048)}, v107'); t('v_fmac_f32 v107, v105, v106'); angles(M3+8*j, False)
    t(f'v_mul_f32 v106, {fbits(1/16)}, v104'); t('v_mul_f32 v107, v136, v104'); t(f'v_mul_f32 v107, {fbits(1/128)}, v107'); t('v_fmac_f32 v107, v105, v106'); angles(M4, False)
    TR = [x for x in TR if x != 'v_nop']
    for x in TR: b(x)
    b(f'v_mul_u32_u24 v104, {64*EP}, v3'); b(f'v_mul_u32_u24 v105, {EP}, v2'); b('v_add_u32 v104, v104, v105')
    b('s_lshl_b32 s81, s60, 4'); b('v_add_u32 v104, s81, v104')
    b(f's_mul_i32 s81, s60, {64*EP}'); b('v_lshlrev_b32 v106, 4, v3'); b('v_add_u32 v105, v105, v106'); b('v_add_u32 v105, s81, v105')
    ACC = 136; EO = 168
    def stage(A_of_j, Bsrc_of_j):
        for j in range(4):
            a = A_of_j(j); d = ACC + 8*j
            b(f'v_mfma_f32_16x16x32_bf16 {q4(d)}, {q4(a)}, {q4(Bsrc_of_j(j))}, 0')
            b(f'v_mfma_f32_16x16x32_bf16 {q4(d+4)}, {q4(a+4)}, {q4(Bsrc_of_j(j))}, 0')
    b('STAMP 0 vmcnt(16)')
    stage(lambda j: M1, lambda j: DAT+4*j)
    for j in range(4):
        for r in range(4): b(f'v_cvt_pk_bf16_f32 v{EO+4*r+j}, v{ACC+8*j+r}, v{ACC+8*j+4+r}')
    for r in range(4): b(f'ds_write_b128 v104, {q4(EO+4*r)} offset:{r*16*EP}')
    b('s_barrier')
    for j in range(4): b(f'ds_read_b128 {q4(DAT+4*j)}, v105 offset:{j*16*EP}')
    b('STAMP 1')
    stage(lambda j: M2+8*j, lambda j: DAT+4*j)
    b('STAMP 2 vmcnt(0)')
    TM = 128; WR = 132; WI = 134
    for j in range(4):
        for h in range(2):
            i0 = 4*j + 2*h
            for q in range(2):
                b(f'v_lshlrev_b32 v{WR+q}, 16, v{WP+i0+q}'); b(f'v_and_b32 v{WI+q}, 0xffff0000, v{WP+i0+q}')
            dr, di = ACC+8*j+2*h, ACC+8*j+4+2*h
            b(f'v_pk_mul_f32 {pr(TM)}, {pr(dr)}, {pr(WR)}'); b(f'v_pk_mul_f32 {pr(TM+2)}, {pr(dr)}, {pr(WI)}')
            b(f'v_pk_fma_f32 {pr(TM)}, {pr(di)}, {pr(WI)}, {pr(TM)} neg_lo:[1,0,0] neg_hi:[1,0,0]')
            b(f'v_pk_fma_f32 {pr(TM+2)}, {pr(di)}, {pr(WR)}, {pr(TM+2)}')
            b(f'v_cvt_pk_bf16_f32 v{DAT+i0}, v{TM}, v{TM+2}'); b(f'v_cvt_pk_bf16_f32 v{DAT+i0+1}, v{TM+1}, v{TM+3}')
    stage(lambda j: M3+8*j, lambda j: DAT+4*j)
    for j in range(4):
        for r in range(4): b(f'v_cvt_pk_bf16_f32 v{EO+4*r+j}, v{ACC+8*j+r}, v{ACC+8*j+4+r}')
    for r in range(4): b(f'ds_write_b128 v104, {q4(EO+4*r)} offset:{E2 + r*16*EP}')
    b('s_barrier')
    for j in range(4): b(f'ds_read_b128 {q4(DAT+4*j)}, v105 offset:{E2 + j*16*EP}')
    b('STAMP 3')
    stage(lambda j: M4, lambda j: DAT+4*j)
    for j in range(4):
        for r in range(4):
            b(f'v_cvt_pk_bf16_f32 v{EO+4*j+r}, v{ACC+8*j+r}, v{ACC+8*j+4+r}')
            b(f'buffer_store_dword v{EO+4*j+r}, v5, s[48:51], s{72+r} offen offset:{j*1344} {stflag}')
    b('s_endpgm')
```

```python
from common import *
C8 = 0.70710678118654752
def pr(x): return f'v[{x}:{x+1}]'
def q4(x): return f'v[{x}:{x+3}]'
NEG = 'neg_lo:[0,1] neg_hi:[0,1]'
def job_p3(b, s_idx, stflag=''):
    RP = 3840
    srd(b, 44, S_WS, SZ_T, WS_Z); srd(b, 48, S_OUT, 2048*2560)
    b('v_and_b32 v1, 63, v0'); b('v_and_b32 v2, 15, v1'); b('v_lshrrev_b32 v3, 4, v1')
    b('v_lshrrev_b32 v4, 6, v0'); b('s_nop 0'); b('v_readfirstlane_b32 s60, v4')
    b('v_mul_u32_u24 v50, 336, v3'); b('v_lshlrev_b32 v51, 2, v2'); b('v_add_u32 v50, v50, v51')
    b('v_mov_b32 v52, 0x80000000'); b('v_cmp_gt_u32 vcc, 5, v2'); b('v_cndmask_b32 v52, v52, v50, vcc')
    b('s_sub_u32 s70, 8, s60'); b('s_cmp_eq_u32 s60, 0'); b('s_cselect_b32 s70, 4, s70')
    b(f's_lshl_b32 s71, s60, 8'); b(f's_add_u32 s71, s71, s{s_idx}'); b('s_mul_i32 s71, s71, 1344')
    b(f's_lshl_b32 s72, s70, 8'); b(f's_add_u32 s72, s72, s{s_idx}'); b('s_mul_i32 s72, s72, 1344')
    ZF = 8
    for j in range(2):
        for t in range(2):
            for r in range(4):
                b(f'buffer_load_dword v{ZF+(2*j+t)*4+r}, v{50 if t == 0 else 52}, s[44:47], s{71+j} offen offset:{84*r+64*t}')
    SA, TW, SB = 24, 32, 56
    b('v_cvt_f32_u32 v80, v2'); b('v_lshlrev_b32 v81, 2, v3'); b('v_cvt_f32_u32 v82, v81')
    b(f'v_mul_f32 v83, {fbits(1/16)}, v80'); b('v_mul_f32 v84, v82, v83')
    for r in range(4):
        if r: b(f'v_fmamk_f32 v85, v83, {fbits(float(r))}, v84')
        src = 'v85' if r else 'v84'
        b(f'v_cos_f32 v86, {src}'); b(f'v_sin_f32 v87, {src}')
        b(f'v_cvt_pk_bf16_f32 v{SA+r}, v86, -v87'); b(f'v_cvt_pk_bf16_f32 v{SA+4+r}, v87, v86')
    sc = 1.0/(2048*640)
    b('v_cmp_eq_u32 s[82:83], 0, v3'); b('v_cmp_ge_u32 s[84:85], 1, v3')
    b(f'v_mul_f32 v83, {fbits(1/640)}, v80')
    for t in range(2):
        b(f'v_add_f32 v84, {fbits(16.0*t)}, v82' if t else 'v_mov_b32 v84, v82'); b('v_mul_f32 v84, v84, v83')
        for r in range(4):
            if r: b(f'v_fmamk_f32 v85, v83, {fbits(float(r))}, v84')
            src = 'v85' if r else 'v84'
            b(f'v_cos_f32 v86, {src}'); b(f'v_sin_f32 v87, {src}')
            b(f'v_mov_b32 v88, {fbits(2*sc)}')
            if t == 0 and r == 0:
                b(f'v_mov_b32 v89, {fbits(sc)}'); b('v_cndmask_b32 v88, v88, v89, s[82:83]')
            if t == 1:
                if r == 0:
                    b(f'v_mov_b32 v89, {fbits(sc)}'); b('v_cndmask_b32 v88, v89, v88, s[82:83]')
                    b('v_cndmask_b32 v88, 0, v88, s[84:85]')
                else: b('v_cndmask_b32 v88, 0, v88, s[82:83]')
            b(f'v_mul_f32 v{TW+8*t+r}, v86, v88'); b(f'v_mul_f32 v{TW+8*t+4+r}, v87, v88')
    b('v_cmp_gt_u32 s[86:87], 8, v2')
    b('s_and_b64 s[88:89], s[86:87], s[82:83]'); b('s_and_b64 s[76:77], s[86:87], s[84:85]')
    for tau in range(3):
        b(f'v_add_f32 v83, {fbits(16.0*tau)}, v80' if tau else 'v_mov_b32 v83, v80'); b(f'v_mul_f32 v83, {fbits(1/40)}, v83')
        for t in range(2):
            b(f'v_add_f32 v84, {fbits(16.0*t)}, v82' if t else 'v_mov_b32 v84, v82'); b('v_mul_f32 v84, v84, v83')
            for r in range(4):
                if r: b(f'v_fmamk_f32 v85, v83, {fbits(float(r))}, v84')
                src = 'v85' if r else 'v84'
                d = SB + 4*(2*tau+t) + r
                b(f'v_cos_f32 v86, {src}'); b(f'v_sin_f32 v87, {src}'); b(f'v_cvt_pk_bf16_f32 v{d}, v86, -v87')
                msk = None
                if t == 1: msk = ('s[84:85]' if r == 0 else 's[82:83]') if tau < 2 else ('s[76:77]' if r == 0 else 's[88:89]')
                elif tau == 2: msk = 's[86:87]'
                if msk: b(f'v_cndmask_b32 v{d}, 0, v{d}, {msk}')
    E = 80
    for j in range(2):
        for t in range(2):
            d = E + (2*j+t)*8; z = ZF + (2*j+t)*4
            b(f'v_mfma_f32_16x16x32_bf16 {q4(d)}, {q4(z)}, {q4(SA)}, 0')
            b(f'v_mfma_f32_16x16x32_bf16 {q4(d+4)}, {q4(z)}, {q4(SA+4)}, 0')
    TM = 112
    b('s_cmp_eq_u32 s60, 0'); b('s_cbranch_scc1 P3_W0')
    for t in range(2):
        for h in range(2):
            ar, ai = E + t*8 + 2*h, E + t*8 + 4 + 2*h
            br, bi = E + 16 + t*8 + 2*h, E + 16 + t*8 + 4 + 2*h
            b(f'v_pk_add_f32 {pr(TM)}, {pr(ai)}, {pr(bi)} {NEG}'); b(f'v_pk_add_f32 {pr(TM+2)}, {pr(br)}, {pr(ar)} {NEG}')
            b(f'v_pk_add_f32 {pr(ar)}, {pr(ar)}, {pr(br)}'); b(f'v_pk_add_f32 {pr(ai)}, {pr(ai)}, {pr(bi)}')
            b(f'v_mov_b32 v{br}, v{TM}'); b(f'v_mov_b32 v{br+1}, v{TM+1}'); b(f'v_mov_b32 v{bi}, v{TM+2}'); b(f'v_mov_b32 v{bi+1}, v{TM+3}')
    b.label('P3_W0')
    VF = 8
    for j in range(2):
        for t in range(2):
            for h in range(2):
                sr_, si_ = E + (2*j+t)*8 + 2*h, E + (2*j+t)*8 + 4 + 2*h
                c, s = TW + 8*t + 2*h, TW + 8*t + 4 + 2*h
                b(f'v_pk_mul_f32 {pr(TM)}, {pr(sr_)}, {pr(c)}'); b(f'v_pk_mul_f32 {pr(TM+2)}, {pr(si_)}, {pr(c)}')
                b(f'v_pk_fma_f32 {pr(TM)}, {pr(si_)}, {pr(s)}, {pr(TM)} neg_lo:[1,0,0] neg_hi:[1,0,0]')
                b(f'v_pk_fma_f32 {pr(TM+2)}, {pr(sr_)}, {pr(s)}, {pr(TM+2)}')
                o = VF + (2*j+t)*4 + 2*h
                b(f'v_cvt_pk_bf16_f32 v{o}, v{TM}, v{TM+2}'); b(f'v_cvt_pk_bf16_f32 v{o+1}, v{TM+1}, v{TM+3}')
    RH = 80
    for j in range(2):
        for tau in range(3):
            d = RH + (3*j+tau)*4
            b(f'v_mfma_f32_16x16x32_bf16 {q4(d)}, {q4(VF+(2*j)*4)}, {q4(SB+4*(2*tau))}, 0')
            b(f'v_mfma_f32_16x16x32_bf16 {q4(d)}, {q4(VF+(2*j+1)*4)}, {q4(SB+4*(2*tau+1))}, {q4(d)}')
    b(f's_mul_i32 s73, s60, {2*RP}'); b('v_mul_u32_u24 v50, 80, v2'); b('v_lshlrev_b32 v51, 4, v3'); b('v_add_u32 v50, v50, v51'); b('v_add_u32 v50, s73, v50')
    for j in range(2):
        for tau in range(3):
            b(f'ds_write_b128 v50, {q4(RH+(3*j+tau)*4)} offset:{j*RP + tau*16*80}')
    b('s_barrier')
    b('v_lshrrev_b32 v51, 2, v0'); b('v_mul_u32_u24 v51, 80, v51'); b('v_and_b32 v52, 3, v0'); b('v_lshlrev_b32 v52, 4, v52'); b('v_add_u32 v51, v51, v52')
    RR = 8
    for j in range(8): b(f'ds_read_b128 {q4(RR+4*j)}, v51 offset:{j*RP}')
    b(f's_mov_b32 s76, {fbits(C8)}'); b(f's_mov_b32 s77, {fbits(C8)}')
    OUTR = 64
    T = 40
    for hp in range(2):
        rho = [RR + 4*j + 2*hp for j in range(8)]
        A_, B_, E0, E2_, O1, O3, G, H, I_, J_ = [T + 2*i for i in range(10)]
        M_, N_, Y = 60, 62, 80
        b(f'v_pk_add_f32 {pr(A_)}, {pr(rho[0])}, {pr(rho[1])}'); b(f'v_pk_add_f32 {pr(B_)}, {pr(rho[0])}, {pr(rho[1])} {NEG}')
        b(f'v_pk_add_f32 {pr(E0)}, {pr(A_)}, {pr(rho[4])}'); b(f'v_pk_add_f32 {pr(E2_)}, {pr(A_)}, {pr(rho[4])} {NEG}')
        b(f'v_pk_add_f32 {pr(O1)}, {pr(B_)}, {pr(rho[5])} {NEG}'); b(f'v_pk_add_f32 {pr(O3)}, {pr(B_)}, {pr(rho[5])}')
        b(f'v_pk_add_f32 {pr(G)}, {pr(rho[2])}, {pr(rho[6])}'); b(f'v_pk_add_f32 {pr(H)}, {pr(rho[7])}, {pr(rho[3])} {NEG}')
        b(f'v_pk_add_f32 {pr(I_)}, {pr(rho[2])}, {pr(rho[6])} {NEG}'); b(f'v_pk_add_f32 {pr(J_)}, {pr(rho[3])}, {pr(rho[7])}')
        b(f'v_pk_add_f32 {pr(M_)}, {pr(I_)}, {pr(J_)} {NEG}'); b(f'v_pk_add_f32 {pr(N_)}, {pr(I_)}, {pr(J_)}')
        y = [Y + 2*i for i in range(8)]
        b(f'v_pk_add_f32 {pr(y[0])}, {pr(E0)}, {pr(G)}'); b(f'v_pk_add_f32 {pr(y[4])}, {pr(E0)}, {pr(G)} {NEG}')
        b(f'v_pk_add_f32 {pr(y[2])}, {pr(E2_)}, {pr(H)}'); b(f'v_pk_add_f32 {pr(y[6])}, {pr(E2_)}, {pr(H)} {NEG}')
        b(f'v_pk_fma_f32 {pr(y[1])}, {pr(M_)}, s[76:77], {pr(O1)}'); b(f'v_pk_fma_f32 {pr(y[5])}, {pr(M_)}, s[76:77], {pr(O1)} neg_lo:[1,0,0] neg_hi:[1,0,0]')
        b(f'v_pk_fma_f32 {pr(y[3])}, {pr(N_)}, s[76:77], {pr(O3)} neg_lo:[1,0,0] neg_hi:[1,0,0]'); b(f'v_pk_fma_f32 {pr(y[7])}, {pr(N_)}, s[76:77], {pr(O3)}')
        for s1 in range(8): b(f'v_cvt_pk_bf16_f32 v{OUTR+2*s1+hp}, v{y[s1]}, v{y[s1]+1}')
    b('v_lshlrev_b32 v5, 3, v0'); b('v_mov_b32 v6, 0x80000000'); b('v_cmp_gt_u32 vcc, 160, v0'); b('v_cndmask_b32 v6, v6, v5, vcc')
    b(f's_mul_i32 s61, s{s_idx}, 2560'); b('s_add_u32 s61, s61, 1280')
    for s1 in range(8):
        if s1: b(f's_add_u32 s61, s61, {256*2560}')
        b(f'buffer_store_dwordx2 v[{OUTR+2*s1}:{OUTR+2*s1+1}], v6, s[48:51], s61 offen')
    b('s_endpgm')
```

```python
from common import *
NPF = 81
def job_pf(b, s_idx):
    srd(b, 44, S_WR, 2048*642); srd(b, 48, S_WI, 2048*642)
    b('v_lshlrev_b32 v1, 4, v0'); b(f's_lshl_b32 s61, s{s_idx}, 14')
    for i in range(4):
        b(f's_add_u32 s62, s61, {4096*i}')
        b(f'buffer_load_dwordx4 v[{8+8*i}:{11+8*i}], v1, s[44:47], s62 offen')
        b(f'buffer_load_dwordx4 v[{12+8*i}:{15+8*i}], v1, s[48:51], s62 offen')
    b('s_waitcnt vmcnt(0)')
    b('s_endpgm')
```

```python
from common import *
NTAB = 1
def job_tab(b, s_idx):
    srd(b, 44, S_WS, SZ_TAB, WS_TAB)
    b('v_and_b32 v1, 63, v0'); b('v_and_b32 v2, 15, v1'); b('v_lshrrev_b32 v3, 4, v1')
    b('v_lshrrev_b32 v4, 6, v0'); b('s_nop 0'); b('v_readfirstlane_b32 s60, v4')
    b('v_lshlrev_b32 v10, 4, v1')
    b('s_and_b32 s61, s60, 1'); b('s_lshr_b32 s62, s60, 1')
    b('s_lshl_b32 s63, s62, 1'); b('s_add_u32 s63, s63, 2'); b('s_sub_u32 s63, s63, s61')
    b('s_lshl_b32 s64, s61, 2'); b('s_cmp_eq_u32 s62, 0'); b('s_cselect_b32 s64, s64, 0')
    b('s_add_u32 s64, s64, s63'); b('s_lshl_b32 s65, s63, 1')
    b('v_lshlrev_b32 v22, 3, v3'); b('v_subrev_u32 v22, 8, v22'); b('v_sub_u32 v22, v2, v22'); b('v_add_u32 v22, s64, v22')
    for q in range(4):
        for hlf in range(2):
            rho = 2*q + hlf
            b(f'v_subrev_u32 v24, {rho}, v22'); b('v_cmp_ge_u32 vcc, s65, v24')
            b(f'v_mov_b32 v25, {hex(0x3F80 << (16*hlf))}'); b(f'v_cndmask_b32 v{26+hlf}, 0, v25, vcc')
        b(f'v_or_b32 v{12+q}, v26, v27')
    b('s_lshl_b32 s63, s60, 10'); b(f's_add_u32 s63, s63, {TAB_BC}')
    b('buffer_store_dwordx4 v[12:15], v10, s[44:47], s63 offen')
    b('s_endpgm')
```

```python
from common import *
def job_transpose(b, name, s_idx, kind, stflag="", ntile=2):
    if kind == 'UT':
        srd(b, 44, S_U, 2048*1280); srd(b, 48, S_WS, SZ_UT, WS_UT); sp, dp = 1280, 4096
    else:
        srd(b, 44, S_WS, SZ_UT, WS_YT); srd(b, 48, S_OUT, 2048*2560); sp, dp = 4096, 2560
    b('v_lshrrev_b32 v1, 3, v0'); b('v_and_b32 v2, 7, v0')
    b(f'v_mul_u32_u24 v3, {2*sp}, v1'); b('v_lshlrev_b32 v4, 4, v2'); b('v_add_u32 v3, v3, v4')
    for t in range(ntile):
        b(f's_mul_i32 s60, s{s_idx}, {ntile}');
        if t: b(f's_add_u32 s60, s60, {t}')
        b('s_mul_hi_u32 s52, s60, 0x1999999a'); b('s_mul_i32 s53, s52, 10'); b('s_sub_u32 s53, s60, s53')
        tr, tc = ('s52', 's53') if kind == 'UT' else ('s53', 's52')
        b(f's_mul_i32 s54, {tr}, {64*sp}'); b(f's_lshl_b32 s55, {tc}, 7'); b('s_add_u32 s54, s54, s55')
        b(f's_mul_i32 s{62+t}, {tc}, {64*dp}'); b(f's_lshl_b32 s55, {tr}, 7'); b(f's_add_u32 s{62+t}, s{62+t}, s55')
        b(f'buffer_load_dwordx4 v[{8+8*t}:{11+8*t}], v3, s[44:47], s54 offen')
        b(f's_add_u32 s57, s54, {sp}')
        b(f'buffer_load_dwordx4 v[{12+8*t}:{15+8*t}], v3, s[44:47], s57 offen')
    b('v_lshrrev_b32 v4, 2, v1'); b('v_xor_b32 v4, v4, v2'); b('v_lshlrev_b32 v4, 4, v4')
    b('v_and_b32 v5, 3, v1'); b('v_lshlrev_b32 v5, 2, v5'); b('v_add_u32 v4, v4, v5')
    b('v_lshlrev_b32 v5, 10, v2'); b('v_add_u32 v4, v4, v5')
    b('v_lshrrev_b32 v5, 3, v1')
    b('v_xor_b32 v6, v5, v2'); b('v_lshlrev_b32 v6, 4, v6'); b('v_lshlrev_b32 v7, 7, v1'); b('v_add_u32 v6, v6, v7')
    b('v_add_u32 v5, 4, v5'); b('v_xor_b32 v5, v5, v2'); b('v_lshlrev_b32 v5, 4, v5'); b('v_add_u32 v5, v5, v7')
    R = 8 + 8*ntile
    b(f'v_mul_u32_u24 v7, {dp}, v1'); b(f'v_lshlrev_b32 v{R}, 4, v2'); b(f'v_add_u32 v7, v7, v{R}')
    b('s_mov_b32 s58, 0x05040100'); b('s_mov_b32 s59, 0x07060302')
    for t in range(ntile):
        for e in range(8):
            sel = 's58' if e % 2 == 0 else 's59'
            b(f'v_perm_b32 v{R+e}, v{12+8*t+e//2}, v{8+8*t+e//2}, {sel}')
        for e in range(8):
            b(f'ds_write_b32 v4, v{R+e} offset:{e*128 + 8192*t}')
    b('s_barrier')
    for t in range(ntile):
        b(f'ds_read_b128 v[{8+8*t}:{11+8*t}], v6 offset:{8192*t}')
        b(f'ds_read_b128 v[{12+8*t}:{15+8*t}], v5 offset:{4096 + 8192*t}')
    for t in range(ntile):
        b(f's_add_u32 s57, s{62+t}, {32*dp}')
        b(f'buffer_store_dwordx4 v[{8+8*t}:{11+8*t}], v7, s[48:51], s{62+t} offen ' + stflag)
        b(f'buffer_store_dwordx4 v[{12+8*t}:{15+8*t}], v7, s[48:51], s57 offen ' + stflag)
    b('s_endpgm')
```

```python
from common import *
NWP = 256
def job_wp(b, s_idx, stflag=''):
    srd(b, 44, S_WR, 2048*642); srd(b, 48, S_WI, 2048*642); srd(b, 52, S_WS, SZ_T, WS_WP)
    b('v_and_b32 v1, 63, v0'); b('v_lshrrev_b32 v4, 6, v0'); b('s_nop 0'); b('v_readfirstlane_b32 s60, v4')
    FC, FL, SM = 8, 14, 20
    NR = 2
    b(f's_mul_i32 s61, s{s_idx}, {4*NR}'); b(f's_mul_i32 s62, s60, {NR}'); b('s_add_u32 s61, s61, s62')
    for rr in range(NR):
        b(f's_add_u32 s62, s61, {rr}')
        b(f's_sub_u32 s{70+rr}, 2048, s62'); b(f's_and_b32 s{70+rr}, s{70+rr}, 2047'); b(f's_sub_u32 s{70+rr}, s{70+rr}, s62'); b(f's_mul_i32 s{70+rr}, s{70+rr}, 642')
        b(f's_mul_i32 s{64+rr}, s62, 642')
    DAT = 32; AD = 26
    for p in range(6):
        b(f'v_add_u32 v2, {64*p}, v1')
        b('v_mul_u32_u24 v3, 3121, v2'); b('v_lshrrev_b32 v3, 16, v3'); b('v_mul_u32_u24 v3, 19, v3'); b('v_add_u32 v3, v3, v2')
        b('v_cmp_lt_u32 vcc, 320, v3'); b('v_sub_u32 v5, 640, v3'); b('v_cndmask_b32 v3, v3, v5, vcc'); b(f'v_lshlrev_b32 v{FC+p}, 1, v3')
        b(f'v_cndmask_b32 v{FL+p}, 0, 1, vcc'); b(f'v_lshlrev_b32 v{SM+p}, 31, v{FL+p}')
        if p == 5:
            b('v_mov_b32 v5, 0x40000000'); b('v_cmp_gt_u32 vcc, 16, v1'); b(f'v_cndmask_b32 v{FC+p}, v5, v{FC+p}, vcc')
        for rr in range(NR):
            a = AD + (2*p+rr) % 6
            b(f'v_mad_i32_i24 v{a}, v{FL+p}, s{70+rr}, v{FC+p}'); b(f'v_add_u32 v{a}, s{64+rr}, v{a}')
            b(f'buffer_load_ushort v{DAT+6*rr+p}, v{a}, s[44:47], 0 offen')
            b(f'buffer_load_ushort v{DAT+12+6*rr+p}, v{a}, s[48:51], 0 offen')
    b('v_lshrrev_b32 v6, 4, v1'); b('v_lshlrev_b32 v6, 14, v6'); b('v_and_b32 v7, 15, v1'); b('v_lshl_add_u32 v6, v7, 2, v6')
    b('v_mov_b32 v7, 0x40000000'); b('v_cmp_gt_u32 vcc, 16, v1'); b('v_cndmask_b32 v7, v7, v6, vcc')
    for rr in range(NR):
        b(f's_add_u32 s62, s61, {rr}')
        b('s_and_b32 s63, s62, 7'); b(f's_mul_i32 s63, s63, {21*16384}'); b('s_lshr_b32 s62, s62, 3'); b('s_lshl_b32 s62, s62, 6'); b('s_add_u32 s62, s62, s63')
        for p in range(6):
            d = DAT+6*rr+p
            b(f'v_lshl_add_u32 v{d}, v{d+12}, 16, v{d}'); b(f'v_xor_b32 v{d}, v{d}, v{SM+p}')
            b(f's_add_u32 s63, s62, {p*4*16384}')
            b(f'buffer_store_dword v{d}, v{6 if p < 5 else 7}, s[52:55], s63 offen {stflag}')
    b('s_endpgm')
```

```python
import sys
from common import *
from jobs_tr import job_transpose
from jobs_p1 import job_p1
from jobs_tab import job_tab, NTAB
from jobs_kgen import job_kgen
from jobs_p2 import job_p2
from jobs_p3 import job_p3
from jobs_wp import job_wp, NWP
from jobs_pf import job_pf, NPF
from jobs_conv3 import job_conv, CH_SZ
HEADER = open('concat_heads__ssm_conv_s4d__spectral_gfnet__prompt.s.ref').read().split('\n')
hdr = [l for l in HEADER if l.startswith(';') and '@launch' not in l and 'Override launch' not in l and 'grid=ceil' not in l]
hdr = hdr[:14]
def dispatch(b, kname, jobs):
    prologue(b)
    start = 0
    for (name, cnt, fn) in jobs:
        b(f's_cmp_lt_u32 s2, {start+cnt}'); b(f's_cbranch_scc1 {kname}_{name}')
        start += cnt
    b('EXITPATH'); b('s_endpgm')
    start = 0
    for (name, cnt, fn) in jobs:
        b.label(f'{kname}_{name}')
        b(f's_sub_u32 s3, s2, {start}')
        fn(b)
        start += cnt
    return start
def uniq(lines, pre):
    return lines
kernels = []
JOBMAP = {}
INSTR = False
WS_PROF = 0x2000000
def instrument(lines, kidx):
    out = []
    first = True
    for l in lines:
        if l.strip() == 's_waitcnt lgkmcnt(0)' and first:
            out.append(l); first = False
            out += ['s_memrealtime s[90:91]', 's_mov_b32 s92, 0', 's_mov_b32 s93, 0', 's_mov_b32 s94, 0', 's_mov_b32 s95, 0', 's_waitcnt lgkmcnt(0)']
            continue
        if l.strip().startswith('STAMP'):
            k = int(l.split()[1])
            if len(l.split()) > 2: out.append('s_waitcnt ' + l.split()[2])
            out += ['s_memrealtime s[96:97]', 's_waitcnt lgkmcnt(0)', f's_mov_b32 s{92+k}, s96']
            continue
        if l.strip() == 's_endpgm' and not first and out[-1].strip() != 'EXITPATH':
            out += ['s_waitcnt vmcnt(0) lgkmcnt(0)', 's_memrealtime s[96:97]', 's_waitcnt lgkmcnt(0)',
                    f's_add_u32 s84, s40, {hex(WS_PROF + kidx*0x40000)}', 's_addc_u32 s85, s41, 0', 's_and_b32 s85, s85, 0xffff', 's_mov_b32 s86, 0x40000', 's_mov_b32 s87, 0x20000',
                    'v_lshrrev_b32 v1, 6, v0', 'v_lshlrev_b32 v1, 5, v1', 's_lshl_b32 s88, s2, 7', 'v_add_u32 v1, s88, v1',
                    's_getreg_b32 s89, hwreg(HW_REG_XCC_ID)', 's_getreg_b32 s88, hwreg(HW_REG_HW_ID)',
                    'v_mov_b32 v2, s90', 'v_mov_b32 v3, s96', 'v_mov_b32 v4, s89', 'v_mov_b32 v5, s88', 'v_mov_b32 v6, s92', 'v_mov_b32 v7, s93', 'v_mov_b32 v8, s94', 'v_mov_b32 v9, s95',
                    'v_and_b32 v10, 63, v0', 'v_cmp_eq_u32 vcc, 0, v10', 's_and_saveexec_b64 s[98:99], vcc',
                    'buffer_store_dwordx4 v[2:5], v1, s[84:87], 0 offen', 'buffer_store_dwordx4 v[6:9], v1, s[84:87], 0 offen offset:16', 's_endpgm']
            continue
        if l.strip() == 'EXITPATH': out.append(l); continue
        out.append(l)
    return [l for l in out if l.strip() != 'EXITPATH']
def make(kname, jobs, lds, vg):
    b = Builder()
    n = dispatch(b, kname, jobs)
    lines = b.lines
    if INSTR: lines = instrument(lines, len(kernels))
    else: lines = [l for l in lines if not l.strip().startswith('STAMP') and l.strip() != 'EXITPATH']
    body = process(lines)
    kernels.append((kname, n, lds, vg, body)); JOBMAP[kname] = [[j[0], j[1]] for j in jobs]
def build(cfg=None):
    make('k1_kernel', [('KG', 320, lambda b: job_kgen(b, 3)), ('P1', 256, lambda b: job_p1(b, 3)),
                       ('UT', 160, lambda b: job_transpose(b, 'UT', 3, 'UT')), ('TB', NTAB, lambda b: job_tab(b, 3)), ('WP', NWP, lambda b: job_wp(b, 3))], 34816, 128)
    def p2a(b):
        b('s_and_b32 s4, s3, 7'); b('s_lshr_b32 s5, s3, 3'); b('s_branch P2_BODY')
    def p2b(b):
        b('s_and_b32 s4, s3, 7'); b('s_lshr_b32 s5, s3, 3'); b('s_add_u32 s5, s5, 12'); b.label('P2_BODY'); job_p2(b, 4, 5)
    make('k2_kernel', [('P2a', 96, p2a), ('CV', 160, lambda b: job_conv(b, 3)), ('P2b', 72, p2b)], 4*CH_SZ, 256)
    make('k3_kernel', [('P3', 256, lambda b: job_p3(b, 3)), ('YT', 160, lambda b: job_transpose(b, 'YT', 3, 'YT'))], 32768, 128)
    out = list(hdr)
    for (k, n, lds, vg, body) in kernels:
        out.append(f'; @launch kernel={k} grid=({n},1,1) block=(256,1,1) lds={lds}')
    import json
    if INSTR: out.append('; JOBS=' + json.dumps(JOBMAP))
    out.append('.amdgcn_target "amdgcn-amd-amdhsa--gfx950"'); out.append('.text')
    for (k, n, lds, vg, body) in kernels:
        out += [f'.globl {k}', '.p2align 8', f'.type {k},@function', f'{k}:'] + body
    out.append('.section .rodata,"a"')
    for (k, n, lds, vg, body) in kernels:
        acc = (vg + 3)//4*4
        out += ['.p2align 6', f'.amdhsa_kernel {k}', f'  .amdhsa_next_free_vgpr {vg}', '  .amdhsa_next_free_sgpr 102', f'  .amdhsa_accum_offset {acc}',
                '  .amdhsa_group_segment_fixed_size 0', '  .amdhsa_kernarg_size 104', '  .amdhsa_user_sgpr_count 2',
                '  .amdhsa_user_sgpr_kernarg_segment_ptr 1', '  .amdhsa_system_sgpr_workgroup_id_x 1', '.end_amdhsa_kernel']
    return '\n'.join(out) + '\n'
if __name__ == '__main__':
    if len(sys.argv) > 2 and sys.argv[2] == 'instr': INSTR = True
    s = build()
    dst = sys.argv[1] if len(sys.argv) > 1 else 'concat_heads__ssm_conv_s4d__spectral_gfnet__prompt.s'
    open(dst, 'w').write(s)
    print(len(s), 'bytes', s.count('\n'), 'lines')
```

```python
import sys
from common import *
from jobs_tr import job_transpose
from jobs_p1 import job_p1
from jobs_tab import job_tab, NTAB
from jobs_kgen import job_kgen
from jobs_p2 import job_p2
from jobs_p3 import job_p3
from jobs_wp import job_wp, NWP
from jobs_pf import job_pf, NPF
from jobs_conv3 import job_conv, CH_SZ
HEADER = open('concat_heads__ssm_conv_s4d__spectral_gfnet__prompt.s.ref').read().split('\n')
hdr = [l for l in HEADER if l.startswith(';') and '@launch' not in l and 'Override launch' not in l and 'grid=ceil' not in l]
hdr = hdr[:14]
def dispatch(b, kname, jobs):
    prologue(b)
    start = 0
    for (name, cnt, fn) in jobs:
        b(f's_cmp_lt_u32 s2, {start+cnt}'); b(f's_cbranch_scc1 {kname}_{name}')
        start += cnt
    b('EXITPATH'); b('s_endpgm')
    start = 0
    for (name, cnt, fn) in jobs:
        b.label(f'{kname}_{name}')
        b(f's_sub_u32 s3, s2, {start}')
        fn(b)
        start += cnt
    return start
def uniq(lines, pre):
    return lines
kernels = []
JOBMAP = {}
INSTR = False
WS_PROF = 0x2000000
def instrument(lines, kidx):
    out = []
    first = True
    for l in lines:
        if l.strip() == 's_waitcnt lgkmcnt(0)' and first:
            out.append(l); first = False
            out += ['s_memrealtime s[90:91]', 's_mov_b32 s92, 0', 's_mov_b32 s93, 0', 's_mov_b32 s94, 0', 's_mov_b32 s95, 0', 's_waitcnt lgkmcnt(0)']
            continue
        if l.strip().startswith('STAMP'):
            k = int(l.split()[1])
            if len(l.split()) > 2: out.append('s_waitcnt ' + l.split()[2])
            out += ['s_memrealtime s[96:97]', 's_waitcnt lgkmcnt(0)', f's_mov_b32 s{92+k}, s96']
            continue
        if l.strip() == 's_endpgm' and not first and out[-1].strip() != 'EXITPATH':
            out += ['s_waitcnt vmcnt(0) lgkmcnt(0)', 's_memrealtime s[96:97]', 's_waitcnt lgkmcnt(0)',
                    f's_add_u32 s84, s40, {hex(WS_PROF + kidx*0x40000)}', 's_addc_u32 s85, s41, 0', 's_and_b32 s85, s85, 0xffff', 's_mov_b32 s86, 0x40000', 's_mov_b32 s87, 0x20000',
                    'v_lshrrev_b32 v1, 6, v0', 'v_lshlrev_b32 v1, 5, v1', 's_lshl_b32 s88, s2, 7', 'v_add_u32 v1, s88, v1',
                    's_getreg_b32 s89, hwreg(HW_REG_XCC_ID)', 's_getreg_b32 s88, hwreg(HW_REG_HW_ID)',
                    'v_mov_b32 v2, s90', 'v_mov_b32 v3, s96', 'v_mov_b32 v4, s89', 'v_mov_b32 v5, s88', 'v_mov_b32 v6, s92', 'v_mov_b32 v7, s93', 'v_mov_b32 v8, s94', 'v_mov_b32 v9, s95',
                    'v_and_b32 v10, 63, v0', 'v_cmp_eq_u32 vcc, 0, v10', 's_and_saveexec_b64 s[98:99], vcc',
                    'buffer_store_dwordx4 v[2:5], v1, s[84:87], 0 offen', 'buffer_store_dwordx4 v[6:9], v1, s[84:87], 0 offen offset:16', 's_endpgm']
            continue
        if l.strip() == 'EXITPATH': out.append(l); continue
        out.append(l)
    return [l for l in out if l.strip() != 'EXITPATH']
DBG = False
def dbgstamp(lines, kidx, picks):
    out = []; first = True
    for l in lines:
        t = l.strip()
        if t == 's_waitcnt lgkmcnt(0)' and first:
            out.append(l); first = False
            out += ['s_memrealtime s[90:91]', 's_waitcnt lgkmcnt(0)']
            continue
        if t.startswith('STAMP'): continue
        if t == 'EXITPATH': out.append(l); continue
        if t == 's_endpgm' and not first and out[-1].strip() != 'EXITPATH':
            lab = 'DBGE_%d_%d' % (kidx, len(out))
            out += ['s_mov_b32 s88, -1']
            for wg, word in picks.items():
                if wg == 'start': continue
                out += [f's_cmp_eq_u32 s2, {wg}', f's_cselect_b32 s88, {word*4}, s88']
            out += ['s_cmp_eq_u32 s2, 0', f's_cselect_b32 s89, 1, 0', 's_or_b32 s87, s89, 0',
                    's_cmp_eq_u32 s88, -1', 's_cselect_b32 s86, 0, 1', 's_or_b32 s86, s86, s89', 's_cmp_eq_u32 s86, 0', f's_cbranch_scc1 {lab}',
                    's_waitcnt vmcnt(0) lgkmcnt(0)', 's_memrealtime s[96:97]', 's_waitcnt lgkmcnt(0)',
                    f's_sub_u32 s84, s38, {512*kidx}', 's_subb_u32 s85, s39, 0', 's_and_b32 s85, s85, 0xffff', 's_mov_b32 s86, 64', 's_mov_b32 s87, 0x20000',
                    'v_mov_b32 v2, s96', 'v_mov_b32 v3, s88', 'v_mov_b32 v4, s90', f'v_mov_b32 v5, {picks["start"]*4}', 'v_mov_b32 v6, 0x1000',
                    'v_cmp_eq_u32 vcc, 0, v0', 's_and_saveexec_b64 s[98:99], vcc',
                    'buffer_store_dword v2, v3, s[84:87], 0 offen',
                    's_cmp_eq_u32 s2, 0', 's_cselect_b32 s88, 0, 1', 'v_mov_b32 v7, s88', 'v_lshlrev_b32 v7, 12, v7', 'v_add_u32 v5, v5, v7',
                    'buffer_store_dword v4, v5, s[84:87], 0 offen',
                    f'{lab}:', 's_endpgm']
            continue
        out.append(l)
    return [l for l in out if l.strip() != 'EXITPATH']
PICKS = [{'start': 0, 319: 1, 575: 2, 735: 3, 992: 4, 160: 12}, {'start': 5, 255: 6, 327: 7, 95: 8, 100: 13}, {'start': 9, 255: 10, 415: 11, 128: 14}]
def make(kname, jobs, lds, vg):
    b = Builder()
    n = dispatch(b, kname, jobs)
    lines = b.lines
    if DBG: lines = dbgstamp(lines, len(kernels), PICKS[len(kernels)])
    elif INSTR: lines = instrument(lines, len(kernels))
    else: lines = [l for l in lines if not l.strip().startswith('STAMP') and l.strip() != 'EXITPATH']
    body = process(lines)
    kernels.append((kname, n, lds, vg, body)); JOBMAP[kname] = [[j[0], j[1]] for j in jobs]
def build(cfg=None):
    make('k1_kernel', [('KG', 320, lambda b: job_kgen(b, 3)), ('P1', 256, lambda b: job_p1(b, 3)),
                       ('UT', 160, lambda b: job_transpose(b, 'UT', 3, 'UT')), ('TB', NTAB, lambda b: job_tab(b, 3)), ('WP', NWP, lambda b: job_wp(b, 3))], 34816, 128)
    def p2a(b):
        b('s_and_b32 s4, s3, 7'); b('s_lshr_b32 s5, s3, 3'); b('s_branch P2_BODY')
    def p2b(b):
        b('s_and_b32 s4, s3, 7'); b('s_lshr_b32 s5, s3, 3'); b('s_add_u32 s5, s5, 12'); b.label('P2_BODY'); job_p2(b, 4, 5)
    make('k2_kernel', [('P2a', 96, p2a), ('CV', 160, lambda b: job_conv(b, 3)), ('P2b', 72, p2b)], 4*CH_SZ, 256)
    make('k3_kernel', [('P3', 256, lambda b: job_p3(b, 3)), ('YT', 160, lambda b: job_transpose(b, 'YT', 3, 'YT'))], 32768, 128)
    out = list(hdr)
    for (k, n, lds, vg, body) in kernels:
        out.append(f'; @launch kernel={k} grid=({n},1,1) block=(256,1,1) lds={lds}')
    import json
    if INSTR: out.append('; JOBS=' + json.dumps(JOBMAP))
    out.append('.amdgcn_target "amdgcn-amd-amdhsa--gfx950"'); out.append('.text')
    for (k, n, lds, vg, body) in kernels:
        out += [f'.globl {k}', '.p2align 8', f'.type {k},@function', f'{k}:'] + body
    out.append('.section .rodata,"a"')
    for (k, n, lds, vg, body) in kernels:
        acc = (vg + 3)//4*4
        out += ['.p2align 6', f'.amdhsa_kernel {k}', f'  .amdhsa_next_free_vgpr {vg}', '  .amdhsa_next_free_sgpr 102', f'  .amdhsa_accum_offset {acc}',
                '  .amdhsa_group_segment_fixed_size 0', '  .amdhsa_kernarg_size 104', '  .amdhsa_user_sgpr_count 2',
                '  .amdhsa_user_sgpr_kernarg_segment_ptr 1', '  .amdhsa_system_sgpr_workgroup_id_x 1', '.end_amdhsa_kernel']
    return '\n'.join(out) + '\n'
if __name__ == '__main__':
    if len(sys.argv) > 2 and sys.argv[2] == 'instr': INSTR = True
    if len(sys.argv) > 2 and sys.argv[2] == 'dbg': DBG = True
    s = build()
    dst = sys.argv[1] if len(sys.argv) > 1 else 'concat_heads__ssm_conv_s4d__spectral_gfnet__prompt.s'
    open(dst, 'w').write(s)
    print(len(s), 'bytes', s.count('\n'), 'lines')
```

```python
import sys
from common import *
from jobs_tr import job_transpose
from jobs_p1 import job_p1
from jobs_tab import job_tab, NTAB
from jobs_kgen import job_kgen
from jobs_p2 import job_p2
from jobs_p3 import job_p3
from jobs_wp import job_wp, NWP
from jobs_pf import job_pf, NPF
from jobs_conv3 import job_conv, CH_SZ
HEADER = open('concat_heads__ssm_conv_s4d__spectral_gfnet__prompt.s.ref').read().split('\n')
hdr = [l for l in HEADER if l.startswith(';') and '@launch' not in l and 'Override launch' not in l and 'grid=ceil' not in l]
hdr = hdr[:14]
def dispatch(b, kname, jobs):
    prologue(b)
    start = 0
    for (name, cnt, fn) in jobs:
        b(f's_cmp_lt_u32 s2, {start+cnt}'); b(f's_cbranch_scc1 {kname}_{name}')
        start += cnt
    b('EXITPATH'); b('s_endpgm')
    start = 0
    for (name, cnt, fn) in jobs:
        b.label(f'{kname}_{name}')
        b(f's_sub_u32 s3, s2, {start}')
        fn(b)
        start += cnt
    return start
def uniq(lines, pre):
    return lines
kernels = []
JOBMAP = {}
INSTR = False
WS_PROF = 0x2000000
def instrument(lines, kidx):
    out = []
    first = True
    for l in lines:
        if l.strip() == 's_waitcnt lgkmcnt(0)' and first:
            out.append(l); first = False
            out += ['s_memrealtime s[90:91]', 's_mov_b32 s92, 0', 's_mov_b32 s93, 0', 's_mov_b32 s94, 0', 's_mov_b32 s95, 0', 's_waitcnt lgkmcnt(0)']
            continue
        if l.strip().startswith('STAMP'):
            k = int(l.split()[1])
            if len(l.split()) > 2: out.append('s_waitcnt ' + l.split()[2])
            out += ['s_memrealtime s[96:97]', 's_waitcnt lgkmcnt(0)', f's_mov_b32 s{92+k}, s96']
            continue
        if l.strip() == 's_endpgm' and not first and out[-1].strip() != 'EXITPATH':
            out += ['s_waitcnt vmcnt(0) lgkmcnt(0)', 's_memrealtime s[96:97]', 's_waitcnt lgkmcnt(0)',
                    f's_add_u32 s84, s40, {hex(WS_PROF + kidx*0x40000)}', 's_addc_u32 s85, s41, 0', 's_and_b32 s85, s85, 0xffff', 's_mov_b32 s86, 0x40000', 's_mov_b32 s87, 0x20000',
                    'v_lshrrev_b32 v1, 6, v0', 'v_lshlrev_b32 v1, 5, v1', 's_lshl_b32 s88, s2, 7', 'v_add_u32 v1, s88, v1',
                    's_getreg_b32 s89, hwreg(HW_REG_XCC_ID)', 's_getreg_b32 s88, hwreg(HW_REG_HW_ID)',
                    'v_mov_b32 v2, s90', 'v_mov_b32 v3, s96', 'v_mov_b32 v4, s89', 'v_mov_b32 v5, s88', 'v_mov_b32 v6, s92', 'v_mov_b32 v7, s93', 'v_mov_b32 v8, s94', 'v_mov_b32 v9, s95',
                    'v_and_b32 v10, 63, v0', 'v_cmp_eq_u32 vcc, 0, v10', 's_and_saveexec_b64 s[98:99], vcc',
                    'buffer_store_dwordx4 v[2:5], v1, s[84:87], 0 offen', 'buffer_store_dwordx4 v[6:9], v1, s[84:87], 0 offen offset:16', 's_endpgm']
            continue
        if l.strip() == 'EXITPATH': out.append(l); continue
        out.append(l)
    return [l for l in out if l.strip() != 'EXITPATH']
DBG = False
def dbgstamp(lines, kidx, picks):
    out = []; first = True
    for l in lines:
        t = l.strip()
        if t == 's_waitcnt lgkmcnt(0)' and first:
            out.append(l); first = False
            out += ['s_memrealtime s[90:91]', 's_waitcnt lgkmcnt(0)']
            continue
        if t.startswith('STAMP'): continue
        if t == 'EXITPATH': out.append(l); continue
        if t == 's_endpgm' and not first and out[-1].strip() != 'EXITPATH':
            lab = 'DBGE_%d_%d' % (kidx, len(out))
            out += ['s_mov_b32 s88, -1']
            for wg, word in picks.items():
                if wg == 'start': continue
                out += [f's_cmp_eq_u32 s2, {wg}', f's_cselect_b32 s88, {word*4}, s88']
            out += ['s_cmp_eq_u32 s2, 0', f's_cselect_b32 s89, 1, 0', 's_or_b32 s87, s89, 0',
                    's_cmp_eq_u32 s88, -1', 's_cselect_b32 s86, 0, 1', 's_or_b32 s86, s86, s89', 's_cmp_eq_u32 s86, 0', f's_cbranch_scc1 {lab}',
                    's_waitcnt vmcnt(0) lgkmcnt(0)', 's_memrealtime s[96:97]', 's_waitcnt lgkmcnt(0)',
                    f's_add_u32 s84, s40, {hex(WS_PROF)}', 's_addc_u32 s85, s41, 0', 's_and_b32 s85, s85, 0xffff', 's_mov_b32 s86, 64', 's_mov_b32 s87, 0x20000',
                    'v_mov_b32 v2, s96', 'v_mov_b32 v3, s88', 'v_mov_b32 v4, s90', f'v_mov_b32 v5, {picks["start"]*4}', 'v_mov_b32 v6, 0x1000',
                    'v_cmp_eq_u32 vcc, 0, v0', 's_and_saveexec_b64 s[98:99], vcc',
                    'buffer_store_dword v2, v3, s[84:87], 0 offen',
                    's_cmp_eq_u32 s2, 0', 's_cselect_b32 s88, 0, 1', 'v_mov_b32 v7, s88', 'v_lshlrev_b32 v7, 12, v7', 'v_add_u32 v5, v5, v7',
                    'buffer_store_dword v4, v5, s[84:87], 0 offen',
                    ] + (['s_cmp_lg_u32 s2, 0', f's_cbranch_scc1 {lab}', 's_waitcnt vmcnt(0)', 's_mov_b64 exec, s[98:99]', 'v_lshlrev_b32 v2, 2, v0',
                          'buffer_load_dword v3, v2, s[84:87], 0 offen sc1', 's_mov_b32 s80, s38', 's_and_b32 s81, s39, 0xffff', 's_mov_b32 s82, 64', 's_mov_b32 s83, 0x20000',
                          's_waitcnt vmcnt(0)', 'buffer_store_dword v3, v2, s[80:83], 0 offen'] if kidx == 2 else []) + [f'{lab}:', 's_endpgm']
            continue
        out.append(l)
    return [l for l in out if l.strip() != 'EXITPATH']
PICKS = [{'start': 0, 319: 1, 575: 2, 735: 3, 992: 4, 160: 12}, {'start': 5, 255: 6, 327: 7, 95: 8, 100: 13}, {'start': 9, 255: 10, 415: 11, 128: 14}]
def make(kname, jobs, lds, vg):
    b = Builder()
    n = dispatch(b, kname, jobs)
    lines = b.lines
    if DBG: lines = dbgstamp(lines, len(kernels), PICKS[len(kernels)])
    elif INSTR: lines = instrument(lines, len(kernels))
    else: lines = [l for l in lines if not l.strip().startswith('STAMP') and l.strip() != 'EXITPATH']
    body = process(lines)
    kernels.append((kname, n, lds, vg, body)); JOBMAP[kname] = [[j[0], j[1]] for j in jobs]
def build(cfg=None):
    make('k1_kernel', [('KG', 320, lambda b: job_kgen(b, 3)), ('P1', 256, lambda b: job_p1(b, 3)),
                       ('UT', 160, lambda b: job_transpose(b, 'UT', 3, 'UT')), ('TB', NTAB, lambda b: job_tab(b, 3)), ('WP', NWP, lambda b: job_wp(b, 3))], 34816, 128)
    def p2a(b):
        b('s_and_b32 s4, s3, 7'); b('s_lshr_b32 s5, s3, 3'); b('s_branch P2_BODY')
    def p2b(b):
        b('s_and_b32 s4, s3, 7'); b('s_lshr_b32 s5, s3, 3'); b('s_add_u32 s5, s5, 12'); b.label('P2_BODY'); job_p2(b, 4, 5)
    make('k2_kernel', [('P2a', 96, p2a), ('CV', 160, lambda b: job_conv(b, 3)), ('P2b', 72, p2b)], 4*CH_SZ, 256)
    make('k3_kernel', [('P3', 256, lambda b: job_p3(b, 3)), ('YT', 160, lambda b: job_transpose(b, 'YT', 3, 'YT'))], 32768, 128)
    out = list(hdr)
    for (k, n, lds, vg, body) in kernels:
        out.append(f'; @launch kernel={k} grid=({n},1,1) block=(256,1,1) lds={lds}')
    import json
    if INSTR: out.append('; JOBS=' + json.dumps(JOBMAP))
    out.append('.amdgcn_target "amdgcn-amd-amdhsa--gfx950"'); out.append('.text')
    for (k, n, lds, vg, body) in kernels:
        out += [f'.globl {k}', '.p2align 8', f'.type {k},@function', f'{k}:'] + body
    out.append('.section .rodata,"a"')
    for (k, n, lds, vg, body) in kernels:
        acc = (vg + 3)//4*4
        out += ['.p2align 6', f'.amdhsa_kernel {k}', f'  .amdhsa_next_free_vgpr {vg}', '  .amdhsa_next_free_sgpr 102', f'  .amdhsa_accum_offset {acc}',
                '  .amdhsa_group_segment_fixed_size 0', '  .amdhsa_kernarg_size 104', '  .amdhsa_user_sgpr_count 2',
                '  .amdhsa_user_sgpr_kernarg_segment_ptr 1', '  .amdhsa_system_sgpr_workgroup_id_x 1', '.end_amdhsa_kernel']
    return '\n'.join(out) + '\n'
if __name__ == '__main__':
    if len(sys.argv) > 2 and sys.argv[2] == 'instr': INSTR = True
    if len(sys.argv) > 2 and sys.argv[2] == 'dbg': DBG = True
    s = build()
    dst = sys.argv[1] if len(sys.argv) > 1 else 'concat_heads__ssm_conv_s4d__spectral_gfnet__prompt.s'
    open(dst, 'w').write(s)
    print(len(s), 'bytes', s.count('\n'), 'lines')
```

```python
from common import *
def pr(x): return f'v[{x}:{x+1}]'
def q4(x): return f'v[{x}:{x+3}]'
def interleave(a, b_):
    out = []; n = len(a); m = len(b_); k = 0
    for i, x in enumerate(a):
        out.append(x); tgt = (m*(i+1))//n
        out += b_[k:tgt]; k = tgt
    return out
def job_p2(b, s_k1, s_ct, stflag='', wmode='wp'):
    EP = 80; E2 = 256*EP
    srd(b, 44, S_WS, SZ_T, WS_T); srd(b, 48, S_WS, SZ_T, WS_Z)
    b('v_and_b32 v1, 63, v0'); b('v_and_b32 v2, 15, v1'); b('v_lshrrev_b32 v3, 4, v1')
    b('v_lshrrev_b32 v4, 6, v0'); b('s_nop 0'); b('v_readfirstlane_b32 s60, v4')
    b(f's_mov_b32 s61, s{s_k1}'); b(f's_mov_b32 s62, s{s_ct}')
    b('s_lshl_b32 s72, s61, 8'); b('s_lshl_b32 s73, s60, 2'); b('s_add_u32 s72, s72, s73'); b('s_mul_i32 s72, s72, 1344')
    b('s_lshl_b32 s73, s62, 6'); b('s_add_u32 s72, s72, s73')
    for r in range(1, 4): b(f's_add_u32 s{72+r}, s72, {r*16*1344}')
    b(f'v_mul_u32_u24 v5, {64*1344}, v3'); b('v_lshlrev_b32 v6, 2, v2'); b('v_add_u32 v5, v5, v6')
    DAT = 8
    if wmode == 'wp': srd(b, 64, S_WS, SZ_T, WS_WP)
    b('s_mul_i32 s82, s61, 21'); b('s_add_u32 s82, s82, s62'); b('s_lshl_b32 s82, s82, 14'); b('s_lshl_b32 s83, s60, 8'); b('s_add_u32 s82, s82, s83')
    b('v_lshlrev_b32 v7, 12, v3'); b('v_lshl_add_u32 v7, v2, 2, v7')
    for j in range(4):
        for r in range(4):
            b(f'buffer_load_dword v{DAT+4*j+r}, v7, s[44:47], s82 offen offset:{r*1024 + j*64}')
    WP = 112
    WRR, WIR = 112, 184
    WL = []
    if wmode == 'wp':
        for j in range(4):
            for r in range(4):
                b(f'buffer_load_dword v{WP+4*j+r}, v7, s[64:67], s82 offen offset:{r*1024 + j*64}')
    else:
        srd(b, 64, S_WR, 2048*642); srd(b, 68, S_WI, 2048*642)
        b('s_lshl_b32 s78, s62, 4'); b('v_add_u32 v7, s78, v2')
        b('v_mul_u32_u24 v200, 3121, v7'); b('v_lshrrev_b32 v200, 16, v200')
        b('v_mul_u32_u24 v201, 19, v200'); b('v_add_u32 v7, v7, v201')
        b('v_cmp_lt_u32 vcc, 320, v7')
        b('v_sub_u32 v200, 640, v7'); b('v_cndmask_b32 v7, v7, v200, vcc'); b('v_lshlrev_b32 v7, 1, v7')
        b('s_lshl_b32 s78, s60, 5'); b('s_add_u32 s78, s78, s61'); b('v_lshlrev_b32 v200, 9, v3'); b('v_add_u32 v200, s78, v200')
        b('v_sub_u32 v201, 2048, v200'); b('v_cndmask_b32 v201, v200, v201, vcc')
        b('v_mul_u32_u24 v202, 642, v201'); b('v_add_u32 v202, v202, v7')
        b('v_and_b32 v201, 2047, v201'); b('v_mul_u32_u24 v201, 642, v201'); b('v_add_u32 v201, v201, v7')
        b(f'v_mov_b32 v203, {8*642}'); b(f'v_mov_b32 v204, {-8*642 & 0xffffffff}'); b('v_cndmask_b32 v203, v203, v204, vcc')
        b(f'v_mov_b32 v204, {128*642}'); b(f'v_mov_b32 v205, {-128*642 & 0xffffffff}'); b('v_cndmask_b32 v204, v204, v205, vcc')
        b('v_mov_b32 v205, 0x80000000'); b('v_cndmask_b32 v205, 0, v205, vcc')
        for j in range(4):
            for r in range(4):
                grp = []
                if j == 0 and r == 0: a_ = 'v201'
                else:
                    a_ = f'v{206 + ((4*j+r) & 1)}'
                    if r == 0: grp.append('v_add_u32 v202, v202, v203'); grp.append(f'v_mov_b32 {a_}, v202')
                    else:
                        prev = 'v202' if (j == 0 and r == 1) else f'v{206 + ((4*j+r-1) & 1)}'
                        grp.append(f'v_add_u32 {a_}, {prev}, v204')
                grp.append(f'buffer_load_ushort v{WRR+4*j+r}, {a_}, s[64:67], 0 offen')
                grp.append(f'buffer_load_ushort v{WIR+4*j+r}, {a_}, s[68:71], 0 offen')
                WL.append(grp)
    M1, M4, M2, M3 = 24, 32, 40, 72
    TR = []
    t = TR.append
    t('v_cvt_f32_u32 v104, v2')
    t('v_lshlrev_b32 v105, 2, v3'); t('v_cvt_f32_u32 v105, v105')
    t('s_nop 0')
    tog = [0]
    def angles(dst, fwd):
        for r in range(4):
            th = 108 if (tog[0] & 1) == 0 else 111
            tog[0] += 1
            cc, ss = (109, 110) if th == 108 else (138, 139)
            if r == 0: src = 'v107'
            else: t(f'v_fmamk_f32 v{th}, v106, {fbits(float(r))}, v107'); src = f'v{th}'
            t(f'v_cos_f32 v{cc}, {src}'); t(f'v_sin_f32 v{ss}, {src}')
            if fwd: t(f'v_cvt_pk_bf16_f32 v{dst+r}, v{cc}, v{ss}'); t(f'v_cvt_pk_bf16_f32 v{dst+4+r}, -v{ss}, v{cc}')
            else: t(f'v_cvt_pk_bf16_f32 v{dst+r}, v{cc}, -v{ss}'); t(f'v_cvt_pk_bf16_f32 v{dst+4+r}, v{ss}, v{cc}')
    return_dummy = None
    b('v_cvt_f32_u32 v136, s61')
    b('s_lshl_b32 s79, s60, 5'); b('s_add_u32 s79, s79, s61'); b('v_cvt_f32_u32 v137, s79')
    t(f'v_fmamk_f32 v106, v104, {fbits(8.0)}, v136'); t(f'v_mul_f32 v106, {fbits(1/128)}, v106'); t('v_mul_f32 v107, v105, v106'); angles(M1, True)
    for j in range(4):
        t(f'v_fmamk_f32 v106, v104, {fbits(128.0)}, v137'); t(f'v_add_f32 v106, {fbits(8.0*j)}, v106' if j else 'v_nop'); t(f'v_mul_f32 v106, {fbits(1/2048)}, v106')
        t('v_mul_f32 v107, v105, v106'); angles(M2+8*j, True)
    for j in range(4):
        t(f'v_mul_f32 v106, {fbits(1/16)}, v104'); t(f'v_add_f32 v107, {fbits(8.0*j)}, v137' if j else 'v_mov_b32 v107, v137')
        t('v_mul_f32 v107, v107, v104'); t(f'v_mul_f32 v107, {fbits(1/2048)}, v107'); t('v_fmac_f32 v107, v105, v106'); angles(M3+8*j, False)
    t(f'v_mul_f32 v106, {fbits(1/16)}, v104'); t('v_mul_f32 v107, v136, v104'); t(f'v_mul_f32 v107, {fbits(1/128)}, v107'); t('v_fmac_f32 v107, v105, v106'); angles(M4, False)
    TR = [x for x in TR if x != 'v_nop']
    if not WL:
        for x in TR: b(x)
    else:
        n = len(WL); m = len(TR); k = 0
        for i, g in enumerate(WL):
            for x in g: b(x)
            tgt = (m*(i+1))//n
            for x in TR[k:tgt]: b(x)
            k = tgt
    b(f'v_mul_u32_u24 v104, {64*EP}, v3'); b(f'v_mul_u32_u24 v105, {EP}, v2'); b('v_add_u32 v104, v104, v105')
    b('s_lshl_b32 s81, s60, 4'); b('v_add_u32 v104, s81, v104')
    b(f's_mul_i32 s81, s60, {64*EP}'); b('v_lshlrev_b32 v106, 4, v3'); b('v_add_u32 v105, v105, v106'); b('v_add_u32 v105, s81, v105')
    ACC = 136; EO = 168
    def stage(A_of_j, Bsrc_of_j):
        for j in range(4):
            a = A_of_j(j); d = ACC + 8*j
            b(f'v_mfma_f32_16x16x32_bf16 {q4(d)}, {q4(a)}, {q4(Bsrc_of_j(j))}, 0')
            b(f'v_mfma_f32_16x16x32_bf16 {q4(d+4)}, {q4(a+4)}, {q4(Bsrc_of_j(j))}, 0')
    b('STAMP 0 vmcnt(%d)' % (16 if wmode == 'wp' else 32))
    stage(lambda j: M1, lambda j: DAT+4*j)
    for j in range(4):
        for r in range(4): b(f'v_cvt_pk_bf16_f32 v{EO+4*r+j}, v{ACC+8*j+r}, v{ACC+8*j+4+r}')
    for r in range(4): b(f'ds_write_b128 v104, {q4(EO+4*r)} offset:{r*16*EP}')
    b('s_barrier')
    for j in range(4): b(f'ds_read_b128 {q4(DAT+4*j)}, v105 offset:{j*16*EP}')
    b('STAMP 1')
    stage(lambda j: M2+8*j, lambda j: DAT+4*j)
    b('STAMP 2 vmcnt(0)')
    TM = 128; WR = 132; WI = 134
    for j in range(4):
        for h in range(2):
            i0 = 4*j + 2*h
            for q in range(2):
                if wmode == 'wp': b(f'v_lshlrev_b32 v{WR+q}, 16, v{WP+i0+q}'); b(f'v_and_b32 v{WI+q}, 0xffff0000, v{WP+i0+q}')
                else: b(f'v_lshlrev_b32 v{WR+q}, 16, v{WRR+i0+q}'); b(f'v_lshl_add_u32 v{WI+q}, v{WIR+i0+q}, 16, v205')
            dr, di = ACC+8*j+2*h, ACC+8*j+4+2*h
            b(f'v_pk_mul_f32 {pr(TM)}, {pr(dr)}, {pr(WR)}'); b(f'v_pk_mul_f32 {pr(TM+2)}, {pr(dr)}, {pr(WI)}')
            b(f'v_pk_fma_f32 {pr(TM)}, {pr(di)}, {pr(WI)}, {pr(TM)} neg_lo:[1,0,0] neg_hi:[1,0,0]')
            b(f'v_pk_fma_f32 {pr(TM+2)}, {pr(di)}, {pr(WR)}, {pr(TM+2)}')
            b(f'v_cvt_pk_bf16_f32 v{DAT+i0}, v{TM}, v{TM+2}'); b(f'v_cvt_pk_bf16_f32 v{DAT+i0+1}, v{TM+1}, v{TM+3}')
    stage(lambda j: M3+8*j, lambda j: DAT+4*j)
    for j in range(4):
        for r in range(4): b(f'v_cvt_pk_bf16_f32 v{EO+4*r+j}, v{ACC+8*j+r}, v{ACC+8*j+4+r}')
    for r in range(4): b(f'ds_write_b128 v104, {q4(EO+4*r)} offset:{E2 + r*16*EP}')
    b('s_barrier')
    for j in range(4): b(f'ds_read_b128 {q4(DAT+4*j)}, v105 offset:{E2 + j*16*EP}')
    b('STAMP 3')
    stage(lambda j: M4, lambda j: DAT+4*j)
    for j in range(4):
        for r in range(4):
            b(f'v_cvt_pk_bf16_f32 v{EO+4*j+r}, v{ACC+8*j+r}, v{ACC+8*j+4+r}')
            b(f'buffer_store_dword v{EO+4*j+r}, v5, s[48:51], s{72+r} offen offset:{j*1344} {stflag}')
    b('s_endpgm')
```

```python
from common import *
NPF = 81
def job_pf(b, s_idx):
    srd(b, 44, S_WR, 2048*642); srd(b, 48, S_WI, 2048*642)
    b('v_lshlrev_b32 v1, 4, v0'); b(f's_lshl_b32 s61, s{s_idx}, 14')
    for i in range(4):
        b(f's_add_u32 s62, s61, {4096*i}')
        b(f'buffer_load_dwordx4 v[{8+8*i}:{11+8*i}], v1, s[44:47], s62 offen')
        b(f'buffer_load_dwordx4 v[{12+8*i}:{15+8*i}], v1, s[48:51], s62 offen')
    b('s_waitcnt vmcnt(0)')
    b('s_endpgm')

def pf_tail(b, s_idx, nwg, base_reg=96):
    share = ((2048*642 + nwg - 1)//nwg + 4095)//4096*4096
    n = share//4096
    srd(b, 84, S_WR, 2048*642); srd(b, 88, S_WI, 2048*642)
    b('v_lshlrev_b32 v1, 4, v0'); b(f's_mul_i32 s61, s{s_idx}, {share}')
    for i in range(n):
        b(f's_add_u32 s62, s61, {4096*i}')
        b(f'buffer_load_dwordx4 v[{base_reg+8*i}:{base_reg+8*i+3}], v1, s[84:87], s62 offen')
        b(f'buffer_load_dwordx4 v[{base_reg+8*i+4}:{base_reg+8*i+7}], v1, s[88:91], s62 offen')
```

```python
import sys
from common import *
from jobs_tr import job_transpose
from jobs_p1 import job_p1
from jobs_tab import job_tab, NTAB
from jobs_kgen import job_kgen
from jobs_p2 import job_p2
from jobs_p3 import job_p3
from jobs_wp import job_wp, NWP
from jobs_pf import job_pf, NPF
from jobs_conv3 import job_conv, CH_SZ
HEADER = open('concat_heads__ssm_conv_s4d__spectral_gfnet__prompt.s.ref').read().split('\n')
hdr = [l for l in HEADER if l.startswith(';') and '@launch' not in l and 'Override launch' not in l and 'grid=ceil' not in l]
hdr = hdr[:14]
def dispatch(b, kname, jobs):
    prologue(b)
    start = 0
    for (name, cnt, fn) in jobs:
        b(f's_cmp_lt_u32 s2, {start+cnt}'); b(f's_cbranch_scc1 {kname}_{name}')
        start += cnt
    b('EXITPATH'); b('s_endpgm')
    start = 0
    for (name, cnt, fn) in jobs:
        b.label(f'{kname}_{name}')
        b(f's_sub_u32 s3, s2, {start}')
        fn(b)
        start += cnt
    return start
def uniq(lines, pre):
    return lines
kernels = []
JOBMAP = {}
INSTR = False
WS_PROF = 0x2000000
def instrument(lines, kidx):
    out = []
    first = True
    for l in lines:
        if l.strip() == 's_waitcnt lgkmcnt(0)' and first:
            out.append(l); first = False
            out += ['s_memrealtime s[90:91]', 's_mov_b32 s92, 0', 's_mov_b32 s93, 0', 's_mov_b32 s94, 0', 's_mov_b32 s95, 0', 's_waitcnt lgkmcnt(0)']
            continue
        if l.strip().startswith('STAMP'):
            k = int(l.split()[1])
            if len(l.split()) > 2: out.append('s_waitcnt ' + l.split()[2])
            out += ['s_memrealtime s[96:97]', 's_waitcnt lgkmcnt(0)', f's_mov_b32 s{92+k}, s96']
            continue
        if l.strip() == 's_endpgm' and not first and out[-1].strip() != 'EXITPATH':
            out += ['s_waitcnt vmcnt(0) lgkmcnt(0)', 's_memrealtime s[96:97]', 's_waitcnt lgkmcnt(0)',
                    f's_add_u32 s84, s40, {hex(WS_PROF + kidx*0x40000)}', 's_addc_u32 s85, s41, 0', 's_and_b32 s85, s85, 0xffff', 's_mov_b32 s86, 0x40000', 's_mov_b32 s87, 0x20000',
                    'v_lshrrev_b32 v1, 6, v0', 'v_lshlrev_b32 v1, 5, v1', 's_lshl_b32 s88, s2, 7', 'v_add_u32 v1, s88, v1',
                    's_getreg_b32 s89, hwreg(HW_REG_XCC_ID)', 's_getreg_b32 s88, hwreg(HW_REG_HW_ID)',
                    'v_mov_b32 v2, s90', 'v_mov_b32 v3, s96', 'v_mov_b32 v4, s89', 'v_mov_b32 v5, s88', 'v_mov_b32 v6, s92', 'v_mov_b32 v7, s93', 'v_mov_b32 v8, s94', 'v_mov_b32 v9, s95',
                    'v_and_b32 v10, 63, v0', 'v_cmp_eq_u32 vcc, 0, v10', 's_and_saveexec_b64 s[98:99], vcc',
                    'buffer_store_dwordx4 v[2:5], v1, s[84:87], 0 offen', 'buffer_store_dwordx4 v[6:9], v1, s[84:87], 0 offen offset:16', 's_endpgm']
            continue
        if l.strip() == 'EXITPATH': out.append(l); continue
        out.append(l)
    return [l for l in out if l.strip() != 'EXITPATH']
DBG = False
def dbgstamp(lines, kidx, picks):
    out = []; first = True
    for l in lines:
        t = l.strip()
        if t == 's_waitcnt lgkmcnt(0)' and first:
            out.append(l); first = False
            out += ['s_memrealtime s[90:91]', 's_waitcnt lgkmcnt(0)']
            continue
        if t.startswith('STAMP'): continue
        if t == 'EXITPATH': out.append(l); continue
        if t == 's_endpgm' and not first and out[-1].strip() != 'EXITPATH':
            lab = 'DBGE_%d_%d' % (kidx, len(out))
            out += ['s_mov_b32 s88, -1']
            for wg, word in picks.items():
                if wg == 'start': continue
                out += [f's_cmp_eq_u32 s2, {wg}', f's_cselect_b32 s88, {word*4}, s88']
            out += ['s_cmp_eq_u32 s2, 0', f's_cselect_b32 s89, 1, 0', 's_or_b32 s87, s89, 0',
                    's_cmp_eq_u32 s88, -1', 's_cselect_b32 s86, 0, 1', 's_or_b32 s86, s86, s89', 's_cmp_eq_u32 s86, 0', f's_cbranch_scc1 {lab}',
                    's_waitcnt vmcnt(0) lgkmcnt(0)', 's_memrealtime s[96:97]', 's_waitcnt lgkmcnt(0)',
                    f's_add_u32 s84, s40, {hex(WS_PROF)}', 's_addc_u32 s85, s41, 0', 's_and_b32 s85, s85, 0xffff', 's_mov_b32 s86, 64', 's_mov_b32 s87, 0x20000',
                    'v_mov_b32 v2, s96', 'v_mov_b32 v3, s88', 'v_mov_b32 v4, s90', f'v_mov_b32 v5, {picks["start"]*4}', 'v_mov_b32 v6, 0x1000',
                    'v_cmp_eq_u32 vcc, 0, v0', 's_and_saveexec_b64 s[98:99], vcc',
                    'buffer_store_dword v2, v3, s[84:87], 0 offen',
                    's_cmp_eq_u32 s2, 0', 's_cselect_b32 s88, 0, 1', 'v_mov_b32 v7, s88', 'v_lshlrev_b32 v7, 12, v7', 'v_add_u32 v5, v5, v7',
                    'buffer_store_dword v4, v5, s[84:87], 0 offen',
                    ] + (['s_cmp_lg_u32 s2, 0', f's_cbranch_scc1 {lab}', 's_waitcnt vmcnt(0)', 's_mov_b64 exec, s[98:99]', 'v_lshlrev_b32 v2, 2, v0',
                          'buffer_load_dword v3, v2, s[84:87], 0 offen sc1', 's_mov_b32 s80, s38', 's_and_b32 s81, s39, 0xffff', 's_mov_b32 s82, 64', 's_mov_b32 s83, 0x20000',
                          's_waitcnt vmcnt(0)', 'buffer_store_dword v3, v2, s[80:83], 0 offen'] if kidx == 2 else []) + [f'{lab}:', 's_endpgm']
            continue
        out.append(l)
    return [l for l in out if l.strip() != 'EXITPATH']
PICKS = [{'start': 0, 319: 1, 575: 2, 735: 3, 992: 4, 160: 12}, {'start': 5, 255: 6, 327: 7, 95: 8, 100: 13}, {'start': 9, 255: 10, 415: 11, 128: 14}]
def make(kname, jobs, lds, vg):
    b = Builder()
    n = dispatch(b, kname, jobs)
    lines = b.lines
    if DBG: lines = dbgstamp(lines, len(kernels), PICKS[len(kernels)])
    elif INSTR: lines = instrument(lines, len(kernels))
    else: lines = [l for l in lines if not l.strip().startswith('STAMP') and l.strip() != 'EXITPATH']
    body = process(lines)
    kernels.append((kname, n, lds, vg, body)); JOBMAP[kname] = [[j[0], j[1]] for j in jobs]
import os
VAR = os.environ.get('VAR', 'wp')
def build(cfg=None):
    wm = 'wp' if VAR == 'wp' else 'gather'
    def ut(b):
        if VAR == 'pftail':
            bb = Builder(); job_transpose(bb, 'UT', 3, 'UT')
            assert bb.lines[-1] == 's_endpgm'
            for l in bb.lines[:-1]: b(l)
            from jobs_pf import pf_tail
            pf_tail(b, 3, 160); b('s_endpgm')
        else: job_transpose(b, 'UT', 3, 'UT')
    jobs1 = [('KG', 320, lambda b: job_kgen(b, 3)), ('P1', 256, lambda b: job_p1(b, 3)), ('UT', 160, ut), ('TB', NTAB, lambda b: job_tab(b, 3))]
    if VAR == 'wp': jobs1.append(('WP', NWP, lambda b: job_wp(b, 3)))
    if VAR == 'pf': jobs1.append(('PF', NPF, lambda b: job_pf(b, 3)))
    make('k1_kernel', jobs1, 34816, 128)
    def p2a(b):
        b('s_and_b32 s4, s3, 7'); b('s_lshr_b32 s5, s3, 3'); b('s_branch P2_BODY')
    def p2b(b):
        b('s_and_b32 s4, s3, 7'); b('s_lshr_b32 s5, s3, 3'); b('s_add_u32 s5, s5, 12'); b.label('P2_BODY'); job_p2(b, 4, 5, wmode=wm)
    if wm == 'wp': make('k2_kernel', [('P2a', 96, p2a), ('CV', 160, lambda b: job_conv(b, 3)), ('P2b', 72, p2b)], 4*CH_SZ, 256)
    else:
        def p2all(b):
            b('s_and_b32 s4, s3, 7'); b('s_lshr_b32 s5, s3, 3'); job_p2(b, 4, 5, wmode=wm)
        make('k2_kernel', [('CV', 160, lambda b: job_conv(b, 3)), ('P2', 168, p2all)], 4*CH_SZ, 256)
    make('k3_kernel', [('P3', 256, lambda b: job_p3(b, 3)), ('YT', 160, lambda b: job_transpose(b, 'YT', 3, 'YT'))], 32768, 128)
    out = list(hdr)
    for (k, n, lds, vg, body) in kernels:
        out.append(f'; @launch kernel={k} grid=({n},1,1) block=(256,1,1) lds={lds}')
    import json
    if INSTR: out.append('; JOBS=' + json.dumps(JOBMAP))
    out.append('.amdgcn_target "amdgcn-amd-amdhsa--gfx950"'); out.append('.text')
    for (k, n, lds, vg, body) in kernels:
        out += [f'.globl {k}', '.p2align 8', f'.type {k},@function', f'{k}:'] + body
    out.append('.section .rodata,"a"')
    for (k, n, lds, vg, body) in kernels:
        acc = (vg + 3)//4*4
        out += ['.p2align 6', f'.amdhsa_kernel {k}', f'  .amdhsa_next_free_vgpr {vg}', '  .amdhsa_next_free_sgpr 102', f'  .amdhsa_accum_offset {acc}',
                '  .amdhsa_group_segment_fixed_size 0', '  .amdhsa_kernarg_size 104', '  .amdhsa_user_sgpr_count 2',
                '  .amdhsa_user_sgpr_kernarg_segment_ptr 1', '  .amdhsa_system_sgpr_workgroup_id_x 1', '.end_amdhsa_kernel']
    return '\n'.join(out) + '\n'
if __name__ == '__main__':
    if len(sys.argv) > 2 and sys.argv[2] == 'instr': INSTR = True
    if len(sys.argv) > 2 and sys.argv[2] == 'dbg': DBG = True
    s = build()
    dst = sys.argv[1] if len(sys.argv) > 1 else 'concat_heads__ssm_conv_s4d__spectral_gfnet__prompt.s'
    open(dst, 'w').write(s)
    print(len(s), 'bytes', s.count('\n'), 'lines')
```

```python
from common import *
from modelA import CN, O_RN, O_R2E, O_R2O, O_R3E, O_R3O, O_RE, NREC
def pr(x): return f'v[{x}:{x+1}]'
def q4(x): return f'v[{x}:{x+3}]'
KP = 2240
UP = 144; PRE = 9
O_KC = 0
O_UL = 4*KP
O_YF = O_UL + (PRE+32)*UP
CH_SZ = O_YF + 12*272
def merge(a, b_):
    out = []; n = len(a); m = len(b_); k = 0
    for i, g in enumerate(a):
        out += g
        tgt = (m*(i+1))//n
        out += b_[k:tgt]; k = tgt
    return out
def sched(streams, bias=0):
    pos = [0]*len(streams); out = []; t = 0; pipe = 0
    total = [len(x) for x in streams]
    def ismf(x): return x.startswith('v_mfma')
    def cost(x): return 4*(x.count('\n') + 1)
    while any(pos[i] < total[i] for i in range(len(streams))):
        heads = [(i, streams[i][pos[i]]) for i in range(len(streams)) if pos[i] < total[i]]
        mf = [(i, x) for i, x in heads if ismf(x)]; nm = [(i, x) for i, x in heads if not ismf(x)]
        frac = lambda i: pos[i]/total[i]
        if mf and (pipe <= t + 4 or not nm):
            i, x = min(mf, key=lambda p: frac(p[0]))
            t = max(t, pipe); pipe = t + (32 if '32x32' in x else 16); t += 8
        else:
            i, x = min(nm, key=lambda p: frac(p[0])); t += cost(x)
        out.append(x); pos[i] += 1
    return out
def job_conv(b, s_idx, stflag='', wtouch=False):
    srd(b, 44, S_WS, SZ_REC, WS_REC); srd(b, 48, S_WS, SZ_UT, WS_UT); srd(b, 52, S_WS, SZ_TAB, WS_TAB)
    srd(b, 64, S_WS, SZ_UT, WS_YT)
    import os
    if os.environ.get('CVPRIO'): b('s_setprio 3')
    b('v_and_b32 v1, 63, v0'); b('v_lshrrev_b32 v4, 6, v0'); b('s_nop 0'); b('v_readfirstlane_b32 s60, v4')
    b(f's_lshl_b32 s63, s{s_idx}, 2'); b('s_add_u32 s63, s63, s60')
    b(f's_mul_i32 s68, s60, {CH_SZ}')
    b(f's_mul_i32 s70, s63, {REC_STRIDE}'); b('s_lshl_b32 s71, s63, 12')
    b('v_lshlrev_b32 v3, 3, v1'); b('v_lshlrev_b32 v5, 4, v1')
    ACC0, ACC1 = 8, 24
    AR, NA = 40, 7
    BR, NB = 68, 5
    BC = 88
    D1 = 104
    Y = 120
    S = 144
    YR = 216
    UW, RW = S, S+16
    for i in range(4): b(f'buffer_load_dwordx4 {q4(UW+4*i)}, v5, s[48:51], s71 offen offset:{1024*i}')
    for i in range(5): b(f'buffer_load_dwordx4 {q4(RW+4*i)}, v3, s[44:47], s70 offen offset:{512*i}')
    b(f's_mov_b32 s72, {TAB_BC}')
    for p in range(4): b(f'buffer_load_dwordx4 {q4(BC+4*p)}, v5, s[52:55], s72 offen offset:{1024*p}')
    b('v_mov_b32 v8, 0'); b('v_mov_b32 v9, 0'); b('v_mov_b32 v10, 0'); b('v_mov_b32 v11, 0')
    b('v_add_u32 v6, s68, v5'); b(f'ds_write_b128 v6, v[8:11] offset:{O_UL}')
    b('v_min_u32 v7, 16, v1'); b('v_lshlrev_b32 v7, 4, v7'); b('v_add_u32 v7, s68, v7'); b(f'ds_write_b128 v7, v[8:11] offset:{O_UL + 1024}')
    b('v_and_b32 v2, 15, v1'); b('v_lshrrev_b32 v12, 4, v1')
    b('v_and_b32 v4, 31, v1'); b('v_lshrrev_b32 v13, 5, v1')
    AN, AB, AD2, AT2, AYW, AYR, AOW, AOR = range(248, 256)
    AT3, AD3A, AD3B, ABE16, ABE17, AU, AK = range(Y, Y+7)
    T_ = 14
    def blkaddr(dst, qreg, base):
        b(f'v_lshrrev_b32 v{dst}, 3, v{qreg}'); b(f'v_mul_u32_u24 v{dst}, {UP}, v{dst}'); b(f'v_and_b32 v{T_}, 7, v{qreg}'); b(f'v_lshlrev_b32 v{T_}, 4, v{T_}')
        b(f'v_add3_u32 v{dst}, v{dst}, v{T_}, s68');
        if base: b(f'v_add_u32 v{dst}, {base}, v{dst}')
    blkaddr(AOR, 1, O_UL)
    b(f'v_add_u32 v{AU}, {PRE*UP}, v{AOR}')
    b(f'v_add_u32 v{AK}, s68, v3')
    def copyaddr(dst, x0reg, base):
        b(f'v_and_b32 v{T_}, 3, v{x0reg}'); b(f'v_sub_u32 v{dst}, v{x0reg}, v{T_}'); b(f'v_lshlrev_b32 v{dst}, 1, v{dst}')
        b(f'v_mul_u32_u24 v{T_}, {KP}, v{T_}'); b(f'v_add3_u32 v{dst}, v{dst}, v{T_}, s68')
        if base: b(f'v_add_u32 v{dst}, {2*base}, v{dst}')
    b('v_lshlrev_b32 v15, 2, v12')
    b('v_lshlrev_b32 v7, 1, v2'); b('v_sub_u32 v7, 30, v7'); b('v_add_u32 v7, v7, v15'); copyaddr(AT2, 7, O_R2E)
    b('v_sub_u32 v7, 15, v2'); b('v_add_u32 v7, v7, v15'); copyaddr(AT3, 7, O_R3E)
    b('v_sub_u32 v7, 31, v4'); b('v_lshlrev_b32 v16, 3, v13'); b('v_add_u32 v7, v7, v16'); copyaddr(AN, 7, O_RN)
    q0 = 8*PRE - 3
    b('v_add_u32 v7, v2, v12'); b(f'v_add_u32 v7, {q0}, v7'); blkaddr(AD2, 7, O_UL)
    b('v_lshlrev_b32 v7, 1, v2'); b('v_add_u32 v7, v7, v12'); b(f'v_add_u32 v7, {q0}, v7'); blkaddr(AD3A, 7, O_UL)
    b('v_add_u32 v7, 1, v7'); blkaddr(AD3B, 7, O_UL)
    b('v_lshrrev_b32 v7, 2, v2'); b('v_mul_u32_u24 v7, 272, v7'); b('v_and_b32 v16, 3, v2'); b('v_lshlrev_b32 v16, 6, v16'); b('v_add3_u32 v7, v7, v16, s68')
    b('v_lshlrev_b32 v16, 4, v12'); b('v_add_u32 v7, v7, v16'); b(f'v_add_u32 v{AYW}, {O_YF}, v7')
    b('v_lshlrev_b32 v16, 4, v13')
    b(f'v_mul_u32_u24 v7, {UP}, v4'); b('v_add3_u32 v7, v7, v16, s68'); b(f'v_add_u32 v{AB}, {O_UL}, v7')
    for (dst, dl) in ((ABE16, 16), (ABE17, 17)):
        b(f'v_subrev_u32 v7, {dl}, v4'); b('v_max_i32 v7, -1, v7'); b(f'v_add_u32 v7, {PRE}, v7'); b(f'v_mul_u32_u24 v7, {UP}, v7')
        b('v_add3_u32 v7, v7, v16, s68'); b(f'v_add_u32 v{dst}, {O_UL}, v7')
    b('v_mul_u32_u24 v7, 272, v4'); b('v_add3_u32 v7, v7, v16, s68'); b(f'v_add_u32 v{AYR}, {O_YF - 8*272}, v7')
    b(f'v_mul_u32_u24 v7, {UP}, v4'); b('v_lshlrev_b32 v16, 3, v13'); b('v_add3_u32 v7, v7, v16, s68'); b(f'v_add_u32 v{AOW}, {O_UL}, v7')
    if wtouch:
        srd(b, 84, S_WR, 2048*642); srd(b, 88, S_WI, 2048*642)
        b(f's_lshr_b32 s73, s{s_idx}, 3'); b('s_mul_i32 s73, s73, 77'); b('s_and_b32 s74, s60, 1'); b('s_lshl_b32 s74, s74, 6')
        b('v_add_u32 v17, s74, v1'); b('v_cmp_gt_u32 vcc, 77, v17'); b('v_add_u32 v17, s73, v17')
        b('v_mul_u32_u24 v7, 10923, v17'); b('v_lshrrev_b32 v7, 16, v7')
        b('v_mul_u32_u24 v18, 6, v7'); b('v_sub_u32 v18, v17, v18'); b('v_lshlrev_b32 v18, 7, v18')
        b(f's_and_b32 s74, s{s_idx}, 7'); b('v_lshlrev_b32 v7, 3, v7'); b('v_add_u32 v7, s74, v7'); b('v_mul_u32_u24 v7, 642, v7'); b('v_add_u32 v7, v7, v18')
        b('v_and_b32 v7, -4, v7'); b('v_mov_b32 v18, 0x80000000'); b('v_cndmask_b32 v7, v18, v7, vcc')
        b('s_cmp_lt_u32 s60, 2'); b('s_cbranch_scc0 CV_NOTOUCH ; NOFLUSH')
        b('buffer_load_dword v3, v7, s[84:87], 0 offen'); b('buffer_load_dword v2, v7, s[88:91], 0 offen')
        b('CV_NOTOUCH: ; NOFLUSH')
    for q in range(16): b(f'v_mov_b32 v{ACC0+q}, 0'); b(f'v_mov_b32 v{ACC1+q}, 0')
    b('STAMP 0 vmcnt(4)')
    for i in range(4): b(f'ds_write_b128 v{AU}, {q4(UW+4*i)} offset:{8*UP*i}')
    for i in range(5):
        w = RW + 4*i; o = 512*i; t0 = AR + 4*(i & 1)
        b(f'v_alignbit_b32 v{t0}, v{w+1}, v{w}, 16'); b(f'v_alignbit_b32 v{t0+1}, v{w+2}, v{w+1}, 16'); b(f'v_alignbit_b32 v{t0+2}, v{w+3}, v{w+2}, 16')
        if i == 4: b('s_mov_b64 s[76:77], exec'); b('s_mov_b64 exec, 0xffffff')
        b(f'ds_write_b64 v{AK}, {pr(w)} offset:{o}')
        b(f'ds_write_b64 v{AK}, {pr(t0)} offset:{KP + o}')
        b(f'v_add_u32 v7, {2*KP + o}, v{AK}'); b(f'ds_write2_b32 v7, v{w+1}, v{w+2} offset0:0 offset1:1')
        b(f'v_add_u32 v6, {3*KP + o}, v{AK}'); b(f'ds_write2_b32 v6, v{t0+1}, v{t0+2} offset0:0 offset1:1')
        if i == 4: b('s_mov_b64 exec, s[76:77]')
    b('STAMP 1')
    F = []
    f = F.append
    T3, G3, DA3 = S, S+16, S+32
    def gpack(d, g):
        f(f'v_cvt_pk_bf16_f32 v{g}, v{d}, v{d+1}'); f(f'v_cvt_pk_bf16_f32 v{g+1}, v{d+2}, v{d+3}')
        f(f'v_cvt_pk_bf16_f32 v{g+2}, v{d+4}, v{d+5}'); f(f'v_cvt_pk_bf16_f32 v{g+3}, v{d+6}, v{d+7}')
    for beta in range(4):
        f(f'ds_read_b128 {q4(DA3+8*beta)}, v{AD3A} offset:{4*UP*beta}'); f(f'ds_read_b128 {q4(DA3+8*beta+4)}, v{AD3B} offset:{4*UP*beta}')
    for s in range(4):
        f(f'ds_read_b64 {pr(T3+4*s)}, v{AT3} offset:{32*(3-s)}'); f(f'ds_read_b64 {pr(T3+4*s+2)}, v{AT3} offset:{32*(3-s) + 2*(O_R3O-O_R3E)}')
    for beta in range(4):
        d = D1 + 8*(beta & 1)
        f(f'v_mfma_f32_16x16x32_bf16 {q4(d)}, {q4(DA3+8*beta)}, {q4(BC+8)}, 0')
        f(f'v_mfma_f32_16x16x32_bf16 {q4(d+4)}, {q4(DA3+8*beta+4)}, {q4(BC+12)}, 0')
        if beta >= 1: gpack(D1 + 8*((beta-1) & 1), G3 + 4*(beta-1))
    T2 = S + 32
    DA = S + 56
    for s in range(6):
        f(f'ds_read_b64 {pr(T2+4*s)}, v{AT2} offset:{32*s}'); f(f'ds_read_b64 {pr(T2+4*s+2)}, v{AT2} offset:{32*s + 2*(O_R2O-O_R2E)}')
    for q in range(4): f(f'ds_read_b128 {q4(DA+4*q)}, v{AD2} offset:{2*UP*q}')
    gpack(D1 + 8, G3 + 12)
    for tp in range(4):
        y = Y + 4*(tp+2)
        for beta in range(tp+1):
            f(f'v_mfma_f32_16x16x32_bf16 {q4(y)}, {q4(G3+4*beta)}, {q4(T3+4*(tp-beta))}, ' + ('0' if beta == 0 else q4(y)))
    def yround(rd):
        if rd == 0:
            for q in range(32): f(f'v_mov_b32 v{YR+q}, 0')
        for tt in range(3*rd, 3*rd+3): f(f'ds_write_b128 v{AYW}, {q4(Y+4*tt)} offset:{(tt-3*rd)*4*272}')
        lo = 8 + 12*rd; mask = ((1 << 12) - 1) << lo
        f('s_mov_b64 s[76:77], exec'); f(f's_mov_b32 s78, {hex(mask)}'); f(f's_mov_b32 s79, {hex(mask)}'); f('s_mov_b64 exec, s[78:79]')
        f(f'v_subrev_u32 v7, {12*272*rd}, v{AYR}' if rd else f'v_mov_b32 v7, v{AYR}')
        for mt in range(2):
            for g in range(4): f(f'ds_read_b128 {q4(YR+16*mt+4*g)}, v7 offset:{128*mt + 32*g}')
        f('s_mov_b64 exec, s[76:77]')
    G = S
    pend = None
    def tile(tt):
        y = Y + 4*tt; first = tt < 2
        for beta in range(max(0, 2*tt-4), 2*tt+2):
            f(f'v_mfma_f32_16x16x32_bf16 {q4(y)}, {q4(G+4*(beta % 8))}, {q4(T2+4*(beta-2*tt+4))}, ' + ('0' if first else q4(y))); first = False
    for tau in range(6):
        for beta in (2*tau, 2*tau+1):
            da = DA + 4*(beta & 3); d = D1 + 8*(beta & 1); g = G + 4*(beta % 8)
            f(f'v_mfma_f32_16x16x32_bf16 {q4(d)}, {q4(da)}, {q4(BC)}, 0')
            f(f'v_mfma_f32_16x16x32_bf16 {q4(d+4)}, {q4(da)}, {q4(BC+4)}, 0')
            if beta + 4 < 12: f(f'ds_read_b128 {q4(da)}, v{AD2} offset:{2*UP*(beta+4)}')
            if pend: gpack(*pend)
            pend = (d, g)
        if tau >= 1: tile(tau - 1)
        if tau == 3: yround(0)
    gpack(*pend)
    tile(5)
    yround(1)
    NS = 37; PF = 4
    def dk(o):
        dl = -((-o)//64); return dl, (64*dl - o)//16
    def issueA(s):
        r = AR + 4*(s % NA)
        return [f'ds_read_b64 {pr(r)}, v{AN} offset:{32*s}', f'ds_read_b64 {pr(r+2)}, v{AN} offset:{32*s+8}']
    def issueB(s):
        dl, ks = dk(528 - 16*s); r = BR + 4*(s % NB)
        return [f'ds_read_b128 {q4(r)}, v{AB} offset:{(9-dl)*UP + 32*ks}']
    groups = []
    for k in range(NS + PF):
        g = []
        if k >= PF:
            s = k - PF; bb = BR + 4*(s % NB)
            if s <= 34: g.append(f'v_mfma_f32_32x32x16_bf16 v[{ACC0}:{ACC0+15}], {q4(AR+4*(s % NA))}, {q4(bb)}, v[{ACC0}:{ACC0+15}]')
            if s >= 2: g.append(f'v_mfma_f32_32x32x16_bf16 v[{ACC1}:{ACC1+15}], {q4(AR+4*((s-2) % NA))}, {q4(bb)}, v[{ACC1}:{ACC1+15}]')
        if k < NS:
            if k <= 34: g += issueA(k)
            g += issueB(k)
        groups.append(g)
    EA = YR; EB = YR + 12
    er = []
    for q, op in enumerate((1040, 1024, 1008)):
        ao = 2*(O_RE + 1087 - op - 31)
        er += [f'ds_read_b64 {pr(EA+4*q)}, v{AN} offset:{ao}', f'ds_read_b64 {pr(EA+4*q+2)}, v{AN} offset:{ao+8}']
    er.append(f'ds_read_b128 {q4(EB)}, v{ABE17} offset:96')
    for ks in range(4): er.append(f'ds_read_b128 {q4(EB+4+4*ks)}, v{ABE16} offset:{32*ks}')
    a0 = f'v[{ACC0}:{ACC0+15}]'; a1 = f'v[{ACC1}:{ACC1+15}]'
    em = [f'v_mfma_f32_32x32x16_bf16 {a0}, {q4(EA)}, {q4(EB)}, {a0}', f'v_mfma_f32_32x32x16_bf16 {a1}, {q4(EA)}, {q4(EB+8)}, {a1}',
          f'v_mfma_f32_32x32x16_bf16 {a0}, {q4(EA+4)}, {q4(EB+4)}, {a0}', f'v_mfma_f32_32x32x16_bf16 {a1}, {q4(EA+4)}, {q4(EB+12)}, {a1}',
          f'v_mfma_f32_32x32x16_bf16 {a0}, {q4(EA+8)}, {q4(EB+8)}, {a0}', f'v_mfma_f32_32x32x16_bf16 {a1}, {q4(EA+8)}, {q4(EB+16)}, {a1}']
    F2 = []; atomic = None
    for x in F:
        if x.startswith('s_mov_b64 s[76:77], exec'): atomic = [x]
        elif atomic is not None:
            atomic.append(x)
            if x.startswith('s_mov_b64 exec, s[76:77]'): F2.append('\n'.join(atomic)); atomic = None
        else: F2.append(x)
    near = [x for g in groups for x in g]
    import os
    ex = os.environ.get('CVEXP', '')
    if ex == 'near': F2 = []
    if ex == 'far': near = []
    if ex == 'nolds': near = [x for x in near if not x.startswith('ds_')]; F2 = [x for x in F2 if not x.startswith('ds_read')]
    if ex == 'nearnolds': near = [x for x in near if not x.startswith('ds_')]; F2 = []
    if ex != 'greedy':
        nearset = set(near) | set(er) | set(em)
        seq = list_schedule(er + em + F2 + near, verbose=True, filler=lambda x: x in nearset, memdep=lambda x: ('ds_write' in x) or ('exec' in x))

    else: seq = sched([x for x in (near, F2) if x])
    for l in seq: b(l)
    b('STAMP 2')
    for mt, acc in ((0, ACC0), (1, ACC1)):
        for q in range(8): b(f'v_pk_add_f32 {pr(acc+2*q)}, {pr(acc+2*q)}, {pr(YR+16*mt+2*q)}')
    b('STAMP 3')
    OB = 88
    for mt, acc in ((0, ACC0), (1, ACC1)):
        for g in range(4):
            o = OB + 8*mt + 2*g
            b(f'v_cvt_pk_bf16_f32 v{o}, v{acc+4*g}, v{acc+4*g+1}'); b(f'v_cvt_pk_bf16_f32 v{o+1}, v{acc+4*g+2}, v{acc+4*g+3}')
            b(f'ds_write_b64 v{AOW}, {pr(o)} offset:{64*mt + 16*g}')
    for i in range(4): b(f'ds_read_b128 {q4(104+4*i)}, v{AOR} offset:{8*UP*i}')
    for i in range(4): b(f'buffer_store_dwordx4 {q4(104+4*i)}, v5, s[64:67], s71 offen offset:{1024*i} {stflag}')
    b('s_endpgm')
```

```python
from common import *
from modelA import CN, O_RN, O_R2E, O_R2O, O_R3E, O_R3O, O_RE, NREC
LOG2E = 1.4426950408889634
INV2PI = 0.15915494309189535
def pr(x): return f'v[{x}:{x+1}]'
def cmul(b, d, x, y):
    assert d != x and d != y
    b(f'v_pk_mul_f32 {pr(d)}, {pr(x)}, {pr(y)} op_sel:[0,0] op_sel_hi:[0,1]')
    b(f'v_pk_fma_f32 {pr(d)}, {pr(x)}, {pr(y)}, {pr(d)} op_sel:[1,1,0] op_sel_hi:[1,0,1] neg_lo:[0,1,0]')
def job_kgen(b, s_idx, stflag=''):
    PITCH = 272; REG = 32*PITCH
    srd(b, 44, S_LOGA, 640*256); srd(b, 48, S_AIM, 640*256); srd(b, 52, S_CRE, 640*256); srd(b, 56, S_CIM, 640*256)
    srd(b, 64, S_LOGDT, 1280); srd(b, 68, REC_BASE[0], SZ_REC, REC_BASE[1])
    b('v_and_b32 v1, 63, v0'); b('v_lshrrev_b32 v4, 6, v0'); b('s_nop 0'); b('v_readfirstlane_b32 s60, v4')
    b(f's_lshl_b32 s72, s{s_idx}, 1'); b('s_lshr_b32 s73, s60, 1'); b('s_add_u32 s72, s72, s73')
    b('s_and_b32 s73, s60, 1')
    b('s_lshl_b32 s74, s72, 8'); b('s_lshl_b32 s75, s73, 7'); b('s_add_u32 s74, s74, s75')
    b('v_lshlrev_b32 v5, 1, v1')
    b('buffer_load_ushort v8, v5, s[44:47], s74 offen'); b('buffer_load_ushort v9, v5, s[48:51], s74 offen')
    b('buffer_load_ushort v10, v5, s[52:55], s74 offen'); b('buffer_load_ushort v11, v5, s[56:59], s74 offen')
    b('s_lshl_b32 s75, s72, 1'); b('v_mov_b32 v6, 0')
    b('buffer_load_ushort v12, v6, s[64:67], s75 offen')
    srd(b, 84, S_DSK, 1280)
    b('buffer_load_ushort v30, v6, s[84:87], s75 offen')
    b(f's_mul_i32 s76, s60, {REG}')
    b('v_lshlrev_b32 v2, 2, v1'); b('v_add_u32 v2, s76, v2')
    b('v_and_b32 v3, 31, v1'); b('v_lshrrev_b32 v4, 5, v1')
    b(f'v_mul_u32_u24 v7, {PITCH}, v3'); b('v_lshlrev_b32 v13, 4, v4'); b('v_add_u32 v7, v7, v13'); b('v_add_u32 v7, s76, v7')
    b('STAMP 0 vmcnt(0)')
    b('v_lshlrev_b32 v12, 16, v12'); b(f'v_mul_f32 v12, {fbits(LOG2E)}, v12'); b('v_exp_f32 v12, v12')
    b('v_cvt_pk_bf16_f32 v12, v12, v12'); b('v_lshlrev_b32 v12, 16, v12')
    b('v_lshlrev_b32 v8, 16, v8'); b(f'v_mul_f32 v8, {fbits(LOG2E)}, v8'); b('v_exp_f32 v8, v8')
    b('v_cvt_pk_bf16_f32 v8, v8, v8'); b('v_lshlrev_b32 v8, 16, v8')
    b('v_mul_f32 v8, v8, v12'); b(f'v_mul_f32 v8, {fbits(-LOG2E)}, v8')
    b('v_lshlrev_b32 v9, 16, v9'); b('v_mul_f32 v9, v9, v12'); b(f'v_mul_f32 v9, {fbits(INV2PI)}, v9')
    b('v_add_f32 v12, v12, v12')
    CP = 14
    b('v_lshlrev_b32 v10, 16, v10'); b('v_lshlrev_b32 v11, 16, v11')
    b(f'v_mul_f32 v{CP}, v10, v12'); b(f'v_mul_f32 v{CP+1}, v11, v12')
    W1, W8, Q = 16, 18, 20
    for (dst, p) in ((W8, 8.0), (W1, 1.0), (Q, 256.0)):
        b(f'v_mul_f32 v10, {fbits(p)}, v8'); b(f'v_mul_f32 v11, {fbits(p)}, v9')
        b('v_exp_f32 v10, v10'); b('v_fract_f32 v11, v11')
        b(f'v_cos_f32 v{dst}, v11'); b(f'v_sin_f32 v{dst+1}, v11')
        b(f'v_mul_f32 v{dst}, v{dst}, v10'); b(f'v_mul_f32 v{dst+1}, v{dst+1}, v10')
    TA, TB = 22, 24
    b('v_mov_b32 v26, 0x3f80'); b('ds_write_b32 v2, v26')
    b(f'v_cvt_pk_bf16_f32 v27, v{W8}, v{W8+1}'); b(f'ds_write_b32 v2, v27 offset:{PITCH}')
    cur = W8; pp = [TA, TB]
    for j in range(2, 32):
        nx = pp[j & 1]
        cmul(b, nx, cur, W8)
        tmp = 26 + (j & 3)
        b(f'v_cvt_pk_bf16_f32 v{tmp}, v{nx}, v{nx+1}'); b(f'ds_write_b32 v2, v{tmp} offset:{j*PITCH}')
        cur = nx
    BF = 32
    for ks in range(8): b(f'ds_read_b128 v[{BF+4*ks}:{BF+4*ks+3}], v7 offset:{32*ks}')
    b('STAMP 1')
    cnt = [0]
    def wrow(i, src):
        tmp = 26 + (cnt[0] & 3); cnt[0] += 1
        b(f'v_cvt_pk_bf16_f32 v{tmp}, v{src}, -v{src+1}'); b(f'ds_write_b32 v2, v{tmp} offset:{i*PITCH}')
        return tmp
    W2, W4, W6 = 64, 66, 68
    cmul(b, W2, W1, W1); cmul(b, W4, W2, W2); cmul(b, W6, W4, W2)
    wrow(0, CP); cur = CP
    for r in range(1, 8):
        nx = pp[r & 1]; cmul(b, nx, cur, W1); wrow(r, nx); cur = nx
    PA, PB, TX = 70, 72, 74
    cmul(b, PA, CP, Q)
    t = wrow(8, PA); b(f'ds_write_b32 v2, v{t} offset:{9*PITCH}')
    cmul(b, TX, PA, W2); wrow(10, TX)
    cmul(b, TA, PA, W4); t = wrow(11, TA); b(f'ds_write_b32 v2, v{t} offset:{12*PITCH}'); b(f'ds_write_b32 v2, v{t} offset:{13*PITCH}')
    cmul(b, TX, PA, W6); wrow(14, TX)
    cmul(b, TA, PA, W8); wrow(15, TA)
    cmul(b, PB, PA, Q); wrow(16, PB); cmul(b, TX, PB, W4); wrow(17, TX)
    cmul(b, PA, PB, Q); wrow(18, PA); cmul(b, TX, PA, W4); wrow(19, TX)
    cur, oth = PA, PB
    for i in range(20, 25):
        cmul(b, oth, cur, Q); wrow(i, oth); cur, oth = oth, cur
    b('STAMP 2')
    D = 80; AF = 64
    for ks in range(8):
        a = AF + 4*(ks & 3)
        b(f'ds_read_b128 v[{a}:{a+3}], v7 offset:{32*ks}')
        if ks >= 3:
            k2 = ks - 3; a2 = AF + 4*(k2 & 3)
            b(f'v_mfma_f32_32x32x16_bf16 v[{D}:{D+15}], v[{a2}:{a2+3}], v[{BF+4*k2}:{BF+4*k2+3}], ' + ('0' if k2 == 0 else f'v[{D}:{D+15}]'))
    for k2 in range(5, 8):
        a2 = AF + 4*(k2 & 3)
        b(f'v_mfma_f32_32x32x16_bf16 v[{D}:{D+15}], v[{a2}:{a2+3}], v[{BF+4*k2}:{BF+4*k2+3}], v[{D}:{D+15}]')
    b('STAMP 3')
    b('v_lshlrev_b32 v5, 4, v1')
    b('s_cmp_eq_u32 s73, 0'); b('s_cbranch_scc1 KG_H0')
    b('v_add_u32 v6, s76, v5')
    for g in range(4): b(f'ds_write_b128 v6, v[{D+4*g}:{D+4*g+3}] offset:{g*1024}')
    b('s_barrier')
    b('s_endpgm')
    b.label('KG_H0')
    b('s_barrier')
    b(f's_add_u32 s77, s76, {REG}'); b('v_add_u32 v6, s77, v5')
    for g in range(4): b(f'ds_read_b128 v[{32+4*g}:{32+4*g+3}], v6 offset:{g*1024}')
    b('v_add_u32 v6, s76, v5')
    b('v_mov_b32 v16, 0'); b('v_mov_b32 v17, 0'); b('v_mov_b32 v18, 0'); b('v_mov_b32 v19, 0')
    for i in range(3): b(f'ds_write_b128 v6, v[16:19] offset:{i*1024}')
    for q in range(8): b(f'v_pk_add_f32 {pr(D+2*q)}, {pr(D+2*q)}, {pr(32+2*q)}')
    b('v_lshlrev_b32 v30, 16, v30'); b('v_cmp_eq_u32 vcc, 0, v1'); b('v_cndmask_b32 v30, 0, v30, vcc'); b(f'v_add_f32 v{D}, v{D}, v30')
    b('v_lshlrev_b32 v8, 4, v3'); b('v_lshlrev_b32 v9, 3, v4'); b('v_add_u32 v8, v8, v9')
    b(f'v_sub_u32 v8, {2*(O_RN + CN - 3)}, v8'); b('v_add_u32 v8, s76, v8')
    for g in range(2):
        b(f'v_cvt_pk_bf16_f32 v20, v{D+4*g+3}, v{D+4*g+2}'); b(f'v_cvt_pk_bf16_f32 v21, v{D+4*g+1}, v{D+4*g}')
        b(f'ds_write_b64 v8, v[20:21]' if g == 0 else '')
        if g == 1:
            b(f'v_subrev_u32 v9, 512, v8'); b('ds_write_b64 v9, v[20:21]')
    TR = 2*1400
    b(f'v_cvt_pk_bf16_f32 v20, v{D+8}, v{D+9}'); b(f'v_cvt_pk_bf16_f32 v21, v{D+10}, v{D+11}'); b(f'v_cvt_pk_bf16_f32 v22, v{D+12}, v{D+12}')
    b('v_lshlrev_b32 v9, 1, v3')
    b('v_add_u32 v10, 1, v3'); b('v_and_b32 v10, -2, v10')
    b('v_and_b32 v11, 1, v3'); b(f'v_mul_u32_u24 v11, {2*(O_R3O - O_R3E)}, v11')
    b(f'v_add_u32 v11, {2*(O_R3E + 64)}, v11'); b('v_sub_u32 v11, v11, v10')
    b('v_cmp_eq_u32 s[78:79], 1, v4')
    b('v_cmp_eq_u32 s[80:81], 0, v3')
    h0 = [2*(O_R2E + 96), 2*(O_R2O + 95), 2*(O_R2E + 64), 2*(O_R2O + 63)]
    for k in range(4):
        b(f'v_sub_u32 v12, {h0[k]}, v9')
        b(f'v_subrev_u32 v13, {32*k}, v11' if k else 'v_mov_b32 v13, v11')
        b('v_cndmask_b32 v12, v12, v13, s[78:79]')
        if k == 0:
            b(f'v_mov_b32 v13, {TR}'); b('v_cndmask_b32 v12, v12, v13, s[80:81]')
        b('v_add_u32 v12, s76, v12')
        src = 20 + (k >> 1)
        b(f'ds_write_b16 v12, v{src}' if k % 2 == 0 else f'ds_write_b16_d16_hi v12, v{src}')
    sp = [(O_RN + CN - 512, O_R2E + 32), (O_RN + CN - 513, O_RE + 1087 - 1027), (O_RN + CN - 514, O_RE + 1087 - 1028)]
    for (a0, a1) in sp:
        b(f'v_mov_b32 v12, {2*a0}'); b(f'v_mov_b32 v13, {2*a1}'); b('v_cndmask_b32 v12, v12, v13, s[78:79]')
        b(f'v_mov_b32 v13, {TR}'); b('v_cndmask_b32 v12, v13, v12, s[80:81]'); b('v_add_u32 v12, s76, v12')
        b('ds_write_b16 v12, v20')
    b(f'v_mov_b32 v12, {2*(O_R3E + 0)}'); b(f'v_mov_b32 v13, {TR}'); b('v_cmp_eq_u32 vcc, 0, v1'); b('v_cndmask_b32 v12, v13, v12, vcc')
    b('v_add_u32 v12, s76, v12'); b('ds_write_b16 v12, v22')
    for i in range(3): b(f'ds_read_b128 v[{32+4*i}:{32+4*i+3}], v6 offset:{i*1024}')
    b(f's_mul_i32 s75, s72, {REC_STRIDE}')
    b('v_mov_b32 v12, 0x80000000'); b('v_cmp_gt_u32 vcc, 16, v1'); b('v_cndmask_b32 v12, v12, v5, vcc')
    b('buffer_store_dwordx4 v[32:35], v5, s[68:71], s75 offen ' + stflag)
    b('buffer_store_dwordx4 v[36:39], v5, s[68:71], s75 offen offset:1024 ' + stflag)
    b('buffer_store_dwordx4 v[40:43], v12, s[68:71], s75 offen offset:2048 ' + stflag)
    b('s_endpgm')
```

```python
from common import *
import math
C8 = 0.70710678118654752
def pk(op, d, a, bb, *rest, neg=None):
    pass
import os
TMAJOR = os.environ.get('TMAJOR', 'row')
def job_p1(b, s_idx, stflag='sc1'):
    LC = 16384
    if os.environ.get('P1PRIO'): b('s_setprio 3')
    srd(b, 44, S_X, 2048*1280); srd(b, 48, T_BASE[0], SZ_T, T_BASE[1])
    b('v_and_b32 v1, 63, v0'); b('v_and_b32 v2, 15, v1'); b('v_lshrrev_b32 v3, 4, v1')
    b('v_lshrrev_b32 v4, 6, v0'); b('s_nop 0'); b('v_readfirstlane_b32 s60, v4')
    b(f's_mul_i32 s61, s{s_idx}, 1280')
    for s1 in range(1, 8): b(f's_add_u32 s{61+s1}, s61, {s1*327680}')
    b('v_lshlrev_b32 v5, 3, v0')
    b('v_mov_b32 v6, 0x80000000')
    b('v_cmp_gt_u32 vcc, 160, v0')
    b('v_cndmask_b32 v6, v6, v5, vcc')
    X = 8
    for s1 in range(8): b(f'buffer_load_dwordx2 v[{X+2*s1}:{X+2*s1+1}], v6, s[44:47], s{61+s1} offen')
    TWC, TWS, A2R, A2I = 24, 32, 40, 44
    T0 = 48
    b('v_cvt_f32_u32 v48, v2')
    b('v_lshlrev_b32 v49, 2, v3'); b('v_cvt_f32_u32 v49, v49')
    for t in range(2):
        b(f'v_add_f32 v50, {fbits(16.0*t)}, v48' if t else 'v_mov_b32 v50, v48')
        b(f'v_mul_f32 v50, {fbits(1/640)}, v50')
        b('v_mul_f32 v51, v49, v50')
        for r in range(4):
            if r == 0: src = 'v51'
            else:
                b(f'v_fmamk_f32 v52, v50, {fbits(float(r))}, v51'); src = 'v52'
            b(f'v_cos_f32 v{TWC+4*t+r}, {src}'); b(f'v_sin_f32 v{TWS+4*t+r}, {src}')
    b('v_lshrrev_b32 v55, 3, v2'); b('v_mul_u32_u24 v55, 0x8000, v55'); b('v_lshl_or_b32 v55, v55, 16, v55')
    b(f'v_mul_f32 v50, {fbits(1/16)}, v48'); b('v_mul_f32 v51, v49, v50')
    for r in range(4):
        if r == 0: src = 'v51'
        else:
            b(f'v_fmamk_f32 v52, v50, {fbits(float(r))}, v51'); src = 'v52'
        b(f'v_cos_f32 v53, {src}'); b(f'v_sin_f32 v54, {src}')
        b(f'v_cvt_pk_bf16_f32 v{A2R+r}, v53, v54'); b(f'v_cvt_pk_bf16_f32 v{A2I+r}, -v54, v53'); b(f'v_xor_b32 v{A2I+r}, v{A2I+r}, v55')
    b('s_lshr_b32 s70, s60, 1'); b('s_and_b32 s71, s60, 1')
    b('s_lshl_b32 s72, s71, 4'); b('s_lshl_b32 s73, s70, 5')
    b('v_add_u32 v50, s72, v2')
    b('v_cvt_f32_u32 v51, v50'); b(f'v_mul_f32 v51, {fbits(1/40)}, v51')
    b('v_lshlrev_b32 v52, 2, v3'); b('v_add_u32 v52, s73, v52')
    b('v_cmp_gt_u32 vcc, 21, v50'); b('v_cmp_gt_u32 s[74:75], 40, v52'); b('s_and_b64 vcc, vcc, s[74:75]')
    b('v_cvt_f32_u32 v52, v52'); b('v_mul_f32 v52, v52, v51')
    for e in range(8):
        off = (e & 3) + 16*(e >> 2)
        if off == 0: src = 'v52'
        else:
            b(f'v_fmamk_f32 v53, v51, {fbits(float(off))}, v52'); src = 'v53'
        b(f'v_cos_f32 v{56+e}, {src}'); b(f'v_sin_f32 v{64+e}, {src}')
    for q in range(4):
        b(f'v_cvt_pk_bf16_f32 v{72+q}, v{56+2*q}, v{57+2*q}')
        b(f'v_cvt_pk_bf16_f32 v{76+q}, -v{64+2*q}, -v{65+2*q}')
    for q in range(8): b(f'v_cndmask_b32 v{72+q}, 0, v{72+q}, vcc')
    b('s_lshl_b32 s72, s70, 2'); b('s_lshl_b32 s73, s71, 1'); b('s_add_u32 s72, s72, s73'); b('s_lshl_b32 s72, s72, 10')
    b(f's_add_u32 s72, s72, {LC}')
    b('v_lshlrev_b32 v50, 4, v1'); b('v_add_u32 v51, s72, v50')
    b('ds_write_b128 v51, v[72:75]'); b('ds_write_b128 v51, v[76:79] offset:1024')
    b('STAMP 0'); b('STAMP 1 vmcnt(0)')
    b(f's_mov_b32 s76, {fbits(C8)}'); b(f's_mov_b32 s77, {fbits(C8)}')
    P = 80
    TT = 96
    OUT = 56
    def pr(x): return f'v[{x}:{x+1}]'
    NEG = 'neg_lo:[0,1] neg_hi:[0,1]'
    for dw in range(2):
        for s1 in range(8):
            b(f'v_lshlrev_b32 v{P+2*s1}, 16, v{X+2*s1+dw}'); b(f'v_and_b32 v{P+2*s1+1}, 0xffff0000, v{X+2*s1+dw}')
        x = [P+2*s for s in range(8)]
        a_, b_, e_, g_, p_, q_, r_, t_ = [TT+2*i for i in range(8)]
        for (d, i, j, neg) in ((a_,0,4,0),(b_,0,4,1),(e_,2,6,0),(g_,2,6,1),(p_,1,5,0),(q_,1,5,1),(r_,3,7,0),(t_,3,7,1)):
            b(f'v_pk_add_f32 {pr(d)}, {pr(x[i])}, {pr(x[j])} ' + (NEG if neg else ''))
        ae, prr, u_, v_ = P, P+2, P+4, P+6
        R = [P+8, P+10, 112, 114, 116, 118, 120, 122]
        R = [P+8, P+10, P+12, P+14, 112, 114, 116, 118]
        b(f'v_pk_add_f32 {pr(ae)}, {pr(a_)}, {pr(e_)}'); b(f'v_pk_add_f32 {pr(prr)}, {pr(p_)}, {pr(r_)}')
        b(f'v_pk_add_f32 {pr(u_)}, {pr(q_)}, {pr(t_)} {NEG}'); b(f'v_pk_add_f32 {pr(v_)}, {pr(q_)}, {pr(t_)}')
        b(f'v_pk_add_f32 {pr(R[0])}, {pr(ae)}, {pr(prr)}'); b(f'v_pk_add_f32 {pr(R[1])}, {pr(ae)}, {pr(prr)} {NEG}')
        b(f'v_pk_add_f32 {pr(R[4])}, {pr(a_)}, {pr(e_)} {NEG}'); b(f'v_pk_add_f32 {pr(R[5])}, {pr(r_)}, {pr(p_)} {NEG}')
        b(f'v_pk_fma_f32 {pr(R[2])}, {pr(u_)}, s[76:77], {pr(b_)}')
        b(f'v_pk_fma_f32 {pr(R[6])}, {pr(u_)}, s[76:77], {pr(b_)} neg_lo:[1,0,0] neg_hi:[1,0,0]')
        b(f'v_pk_fma_f32 {pr(R[3])}, {pr(v_)}, s[76:77], {pr(g_)} neg_lo:[1,0,1] neg_hi:[1,0,1]')
        b(f'v_pk_fma_f32 {pr(R[7])}, {pr(v_)}, s[76:77], {pr(g_)} neg_lo:[1,0,0] neg_hi:[1,0,0]')
        for j in range(8): b(f'v_cvt_pk_bf16_f32 v{OUT+2*j+dw}, v{R[j]}, v{R[j]+1}')
    for j in range(8): b(f'ds_write_b64 v5, v[{OUT+2*j}:{OUT+2*j+1}] offset:{j*2048}')
    b('s_barrier')
    b('STAMP 2')
    C0, C1 = 56, 72
    b('v_lshlrev_b32 v50, 4, v1'); b(f'v_add_u32 v50, {LC}, v50')
    for f in range(4): b(f'ds_read_b128 v[{C0+4*f}:{C0+4*f+3}], v50 offset:{f*1024}')
    for f in range(4): b(f'ds_read_b64 v[{C1+2*f}:{C1+2*f+1}], v50 offset:{(4+f)*1024}')
    b('s_lshl_b32 s72, s60, 12'); b('v_lshlrev_b32 v51, 3, v1'); b('v_add_u32 v51, s72, v51')
    A = [8, 14]
    for j in range(2):
        b(f'ds_read_b64_tr_b16 v[{A[j]}:{A[j]+1}], v51 offset:{j*2048}')
        b(f'ds_read_b64_tr_b16 v[{A[j]+2}:{A[j]+3}], v51 offset:{j*2048+512}')
        b(f'ds_read_b64_tr_b16 v[{A[j]+4}:{A[j]+5}], v51 offset:{j*2048+1024}')
    D1 = [80, 96]
    for j in range(2):
        for f in range(4):
            d = D1[j] + 4*f
            b(f'v_mfma_f32_16x16x32_bf16 v[{d}:{d+3}], v[{A[j]}:{A[j]+3}], v[{C0+4*f}:{C0+4*f+3}], 0')
        for f in range(4):
            d = D1[j] + 4*f
            b(f'v_mfma_f32_16x16x16_bf16 v[{d}:{d+3}], v[{A[j]+4}:{A[j]+5}], v[{C1+2*f}:{C1+2*f+1}], v[{d}:{d+3}]')
    F = [8, 16]
    TM = 112
    for j in range(2):
        for t in range(2):
            re, im = D1[j] + 8*t, D1[j] + 8*t + 4
            for h in range(2):
                c, s = TWC + 4*t + 2*h, TWS + 4*t + 2*h
                r0, i0 = re + 2*h, im + 2*h
                b(f'v_pk_mul_f32 {pr(TM)}, {pr(r0)}, {pr(c)}'); b(f'v_pk_mul_f32 {pr(TM+2)}, {pr(i0)}, {pr(c)}')
                b(f'v_pk_fma_f32 {pr(TM)}, {pr(i0)}, {pr(s)}, {pr(TM)}')
                b(f'v_pk_fma_f32 {pr(TM+2)}, {pr(r0)}, {pr(s)}, {pr(TM+2)} neg_lo:[1,0,0] neg_hi:[1,0,0]')
                b(f'v_cvt_pk_bf16_f32 v{F[j]+4*t+2*h}, v{TM}, v{TM+2}'); b(f'v_cvt_pk_bf16_f32 v{F[j]+4*t+2*h+1}, v{TM+1}, v{TM+3}')
    D2 = [80, 96]
    for j in range(2):
        for t in range(2):
            b(f'v_mfma_f32_16x16x32_bf16 v[{D2[j]+8*t}:{D2[j]+8*t+3}], v[{A2R}:{A2R+3}], v[{F[j]+4*t}:{F[j]+4*t+3}], 0')
            b(f'v_mfma_f32_16x16x32_bf16 v[{D2[j]+8*t+4}:{D2[j]+8*t+7}], v[{A2I}:{A2I+3}], v[{F[j]+4*t}:{F[j]+4*t+3}], 0')
    b('STAMP 3')
    b('v_mul_u32_u24 v50, 336, v3'); b('v_lshlrev_b32 v51, 2, v2'); b('v_add_u32 v50, v50, v51')
    b('s_lshl_b32 s73, s60, 12'); b('v_add_u32 v50, s73, v50')
    b('v_cmp_gt_u32 vcc, 5, v2'); b('v_lshlrev_b32 v52, 2, v1'); b('v_add_u32 v52, s73, v52'); b('v_add_u32 v52, 1344, v52')
    b('v_subrev_u32 v52, 64, v52'); b('v_cndmask_b32 v52, v52, v50, vcc')
    b('s_sub_u32 s70, 8, s60'); b('s_cmp_eq_u32 s60, 0'); b('s_cselect_b32 s70, 4, s70')
    if TMAJOR == 'tile':
        b(f's_lshl_b32 s73, s{s_idx}, 6')
        b(f's_mul_i32 s71, s60, {21*16384}'); b('s_add_u32 s71, s71, s73')
        b(f's_mul_i32 s72, s70, {21*16384}'); b('s_add_u32 s72, s72, s73')
    else:
        b(f's_lshl_b32 s71, s60, 8'); b(f's_add_u32 s71, s71, s{s_idx}'); b('s_mul_i32 s71, s71, 1344')
        b(f's_lshl_b32 s72, s70, 8'); b(f's_add_u32 s72, s72, s{s_idx}'); b('s_mul_i32 s72, s72, 1344')
    O = [24, 40]
    b('s_cmp_eq_u32 s60, 0'); b('s_cbranch_scc1 P1_W0')
    for t in range(2):
        for h in range(2):
            ar, ai = D2[0]+8*t+2*h, D2[0]+8*t+4+2*h
            br, bi = D2[1]+8*t+2*h, D2[1]+8*t+4+2*h
            b(f'v_pk_add_f32 {pr(TM)}, {pr(ar)}, {pr(bi)} {NEG}'); b(f'v_pk_add_f32 {pr(TM+2)}, {pr(ai)}, {pr(br)}')
            b(f'v_pk_add_f32 {pr(TM+4)}, {pr(ar)}, {pr(bi)}'); b(f'v_pk_add_f32 {pr(TM+6)}, {pr(ai)}, {pr(br)} {NEG}')
            for q in range(2):
                b(f'v_cvt_pk_bf16_f32 v{O[0]+4*t+2*h+q}, v{TM+q}, v{TM+2+q}')
                b(f'v_cvt_pk_bf16_f32 v{O[1]+4*t+2*h+q}, v{TM+4+q}, v{TM+6+q}')
    b('s_branch P1_ST')
    b.label('P1_W0')
    for j in range(2):
        for t in range(2):
            for r in range(4):
                b(f'v_cvt_pk_bf16_f32 v{O[j]+4*t+r}, v{D2[j]+8*t+r}, v{D2[j]+8*t+4+r}')
    b.label('P1_ST')
    for j in range(2):
        for t in range(2):
            for r in range(4):
                b(f'ds_write_b32 v{50 if t == 0 else 52}, v{O[j]+4*t+r} offset:{j*2048 + 84*r + 64*t}')
    b('s_lshl_b32 s73, s60, 12'); b('v_lshlrev_b32 v53, 4, v1'); b('v_add_u32 v54, s73, v53')
    b('v_and_b32 v55, 31, v1'); b('v_lshrrev_b32 v56, 5, v1')
    b('v_lshlrev_b32 v57, 4, v55'); b('v_lshlrev_b32 v58, 11, v56'); b('v_add3_u32 v57, v57, v58, s73')
    b('ds_read_b128 v[80:83], v54'); b('ds_read_b128 v[84:87], v54 offset:2048'); b('ds_read_b128 v[88:91], v57 offset:1024')
    if TMAJOR == 'tile':
        b('v_lshrrev_b32 v58, 2, v1'); b('v_lshlrev_b32 v58, 14, v58'); b('v_and_b32 v59, 3, v1'); b('v_lshl_add_u32 v58, v59, 4, v58')
        b('v_add_u32 v59, 64, v55'); b('v_lshrrev_b32 v60, 2, v59'); b('v_lshlrev_b32 v60, 14, v60'); b('v_and_b32 v59, 3, v59'); b('v_lshl_add_u32 v59, v59, 4, v60')
    else:
        b('v_mov_b32 v58, v53'); b('v_lshlrev_b32 v59, 4, v55'); b('v_add_u32 v59, 1024, v59')
    b('s_sub_u32 s74, s72, s71'); b('v_mul_lo_u32 v60, v56, s74'); b('v_add_u32 v59, v59, v60'); b('v_add_u32 v59, s71, v59')
    b('v_mov_b32 v60, 0x80000000'); b('v_cmp_gt_u32 vcc, 20, v55'); b('v_cndmask_b32 v59, v60, v59, vcc')
    b(f'buffer_store_dwordx4 v[80:83], v58, s[48:51], s71 offen {stflag}')
    b(f'buffer_store_dwordx4 v[84:87], v58, s[48:51], s72 offen {stflag}')
    b(f'buffer_store_dwordx4 v[88:91], v59, s[48:51], 0 offen {stflag}')
    b('s_endpgm')
```

```python
from common import *
def pr(x): return f'v[{x}:{x+1}]'
def q4(x): return f'v[{x}:{x+3}]'
def interleave(a, b_):
    out = []; n = len(a); m = len(b_); k = 0
    for i, x in enumerate(a):
        out.append(x); tgt = (m*(i+1))//n
        out += b_[k:tgt]; k = tgt
    return out
import os
TMAJOR = os.environ.get('TMAJOR', 'row')
def job_p2(b, s_k1, s_ct, stflag='sc1', wmode='wp'):
    EP = 80; E2 = 256*EP
    srd(b, 44, S_WS, SZ_T, WS_T); srd(b, 48, S_WS, SZ_T, WS_Z)
    b('v_and_b32 v1, 63, v0'); b('v_and_b32 v2, 15, v1'); b('v_lshrrev_b32 v3, 4, v1')
    b('v_lshrrev_b32 v4, 6, v0'); b('s_nop 0'); b('v_readfirstlane_b32 s60, v4')
    b(f's_mov_b32 s61, s{s_k1}'); b(f's_mov_b32 s62, s{s_ct}')
    b('s_lshl_b32 s72, s61, 8'); b('s_lshl_b32 s73, s60, 2'); b('s_add_u32 s72, s72, s73'); b('s_mul_i32 s72, s72, 1344')
    b('s_lshl_b32 s73, s62, 6'); b('s_add_u32 s72, s72, s73')
    for r in range(1, 4): b(f's_add_u32 s{72+r}, s72, {r*16*1344}')
    b(f'v_mul_u32_u24 v5, {64*1344}, v3'); b('v_lshlrev_b32 v6, 2, v2'); b('v_add_u32 v5, v5, v6')
    DAT = 8
    if wmode == 'wp': srd(b, 64, S_WS, SZ_T, WS_WP)
    b('s_mul_i32 s82, s61, 21'); b('s_add_u32 s82, s82, s62'); b('s_lshl_b32 s82, s82, 14'); b('s_lshl_b32 s83, s60, 8'); b('s_add_u32 s82, s82, s83')
    b('v_lshlrev_b32 v7, 12, v3'); b('v_lshl_add_u32 v7, v2, 2, v7')
    for j in range(4):
        for r in range(4):
            if TMAJOR == 'tile': b(f'buffer_load_dword v{DAT+4*j+r}, v7, s[44:47], s82 offen offset:{r*1024 + j*64}')
            else: b(f'buffer_load_dword v{DAT+4*j+r}, v5, s[44:47], s{72+r} offen offset:{j*1344}')
    WP = 112
    WRR, WIR = 112, 184
    WL = []
    if wmode == 'wp':
        for j in range(4):
            for r in range(4):
                b(f'buffer_load_dword v{WP+4*j+r}, v7, s[64:67], s82 offen offset:{r*1024 + j*64}')
    else:
        srd(b, 64, S_WR, 2048*642); srd(b, 68, S_WI, 2048*642)
        b('s_lshl_b32 s78, s62, 4'); b('v_add_u32 v7, s78, v2')
        b('v_mul_u32_u24 v200, 3121, v7'); b('v_lshrrev_b32 v200, 16, v200')
        b('v_mul_u32_u24 v201, 19, v200'); b('v_add_u32 v7, v7, v201')
        b('v_cmp_le_u32 vcc, 8, v200')
        b('v_sub_u32 v200, 640, v7'); b('v_cndmask_b32 v7, v7, v200, vcc'); b('v_lshlrev_b32 v7, 1, v7')
        b(f'v_mul_u32_u24 v201, {512*642}, v3'); b('v_add_u32 v201, v201, v7')
        b('s_lshl_b32 s78, s60, 5'); b('s_add_u32 s78, s78, s61'); b('s_mul_i32 s78, s78, 642')
        for j in range(4):
            for r in range(4):
                grp = [f's_add_u32 s79, s78, {(8*j + 128*r)*642}']
                grp.append(f'buffer_load_ushort v{WRR+4*j+r}, v201, s[64:67], s79 offen')
                grp.append(f'buffer_load_ushort v{WIR+4*j+r}, v201, s[68:71], s79 offen')
                WL.append(grp)
    M1, M4, M2, M3 = 24, 32, 40, 72
    TR = []
    t = TR.append
    t('v_cvt_f32_u32 v104, v2')
    t('v_lshlrev_b32 v105, 2, v3'); t('v_cvt_f32_u32 v105, v105')
    t('s_nop 0')
    tog = [0]
    def angles(dst, fwd):
        for r in range(4):
            th = 108 if (tog[0] & 1) == 0 else 111
            tog[0] += 1
            cc, ss = (109, 110) if th == 108 else (212, 213)
            if r == 0: src = 'v107'
            else: t(f'v_fmamk_f32 v{th}, v106, {fbits(float(r))}, v107'); src = f'v{th}'
            t(f'v_cos_f32 v{cc}, {src}'); t(f'v_sin_f32 v{ss}, {src}')
            if fwd: t(f'v_cvt_pk_bf16_f32 v{dst+r}, v{cc}, v{ss}'); t(f'v_cvt_pk_bf16_f32 v{dst+4+r}, -v{ss}, v{cc}')
            else: t(f'v_cvt_pk_bf16_f32 v{dst+r}, v{cc}, -v{ss}'); t(f'v_cvt_pk_bf16_f32 v{dst+4+r}, v{ss}, v{cc}')
    return_dummy = None
    b('v_cvt_f32_u32 v210, s61')
    b('s_lshl_b32 s83, s60, 5'); b('s_add_u32 s83, s83, s61'); b('v_cvt_f32_u32 v211, s83')
    t(f'v_fmamk_f32 v106, v104, {fbits(8.0)}, v210'); t(f'v_mul_f32 v106, {fbits(1/128)}, v106'); t('v_mul_f32 v107, v105, v106'); angles(M1, True)
    for j in range(4):
        t(f'v_fmamk_f32 v106, v104, {fbits(128.0)}, v211'); t(f'v_add_f32 v106, {fbits(8.0*j)}, v106' if j else 'v_nop'); t(f'v_mul_f32 v106, {fbits(1/2048)}, v106')
        t('v_mul_f32 v107, v105, v106'); angles(M2+8*j, True)
    nA = len(TR)
    for j in range(4):
        t(f'v_mul_f32 v106, {fbits(1/16)}, v104'); t(f'v_add_f32 v107, {fbits(8.0*j)}, v211' if j else 'v_mov_b32 v107, v211')
        t('v_mul_f32 v107, v107, v104'); t(f'v_mul_f32 v107, {fbits(1/2048)}, v107'); t('v_fmac_f32 v107, v105, v106'); angles(M3+8*j, False)
    t(f'v_mul_f32 v106, {fbits(1/16)}, v104'); t('v_mul_f32 v107, v210, v104'); t(f'v_mul_f32 v107, {fbits(1/128)}, v107'); t('v_fmac_f32 v107, v105, v106'); angles(M4, False)
    TA = [x for x in TR[:nA] if x != 'v_nop']; TB = [x for x in TR[nA:] if x != 'v_nop']
    def mix(groups, instrs):
        n = max(len(groups), 1); m = len(instrs); k = 0
        for i in range(n):
            if i < len(groups):
                for x in groups[i]: b(x)
            tgt = (m*(i+1))//n
            for x in instrs[k:tgt]: b(x)
            k = tgt
    b(f'v_mul_u32_u24 v208, {64*EP}, v3'); b(f'v_mul_u32_u24 v209, {EP}, v2'); b('v_add_u32 v208, v208, v209')
    b('s_lshl_b32 s81, s60, 4'); b('v_add_u32 v208, s81, v208')
    b(f's_mul_i32 s81, s60, {64*EP}'); b('v_lshlrev_b32 v106, 4, v3'); b('v_add_u32 v209, v209, v106'); b('v_add_u32 v209, s81, v209')
    nW1 = 10; nW2 = 13
    mix(WL[:nW1], TA)
    ACC = 136; EO = 168
    def stage(A_of_j, Bsrc_of_j):
        for j in range(4):
            a = A_of_j(j); d = ACC + 8*j
            b(f'v_mfma_f32_16x16x32_bf16 {q4(d)}, {q4(a)}, {q4(Bsrc_of_j(j))}, 0')
            b(f'v_mfma_f32_16x16x32_bf16 {q4(d+4)}, {q4(a+4)}, {q4(Bsrc_of_j(j))}, 0')
    b('STAMP 0 vmcnt(%d)' % (16 if wmode == 'wp' else 20))
    stage(lambda j: M1, lambda j: DAT+4*j)
    for j in range(4):
        for r in range(4): b(f'v_cvt_pk_bf16_f32 v{EO+4*r+j}, v{ACC+8*j+r}, v{ACC+8*j+4+r}')
    for r in range(4): b(f'ds_write_b128 v208, {q4(EO+4*r)} offset:{r*16*EP}')
    h = len(TB)//3
    mix(WL[nW1:nW2], TB[:h])
    b('s_barrier')
    for j in range(4): b(f'ds_read_b128 {q4(DAT+4*j)}, v209 offset:{j*16*EP}')
    mix(WL[nW2:], TB[h:2*h])
    b('STAMP 1')
    stage(lambda j: M2+8*j, lambda j: DAT+4*j)
    for x in TB[2*h:]: b(x)
    b('STAMP 2 vmcnt(0)')
    TM = 128; WR = 132; WI = 134
    for j in range(4):
        for h in range(2):
            i0 = 4*j + 2*h
            for q in range(2):
                if wmode == 'wp': b(f'v_lshlrev_b32 v{WR+q}, 16, v{WP+i0+q}'); b(f'v_and_b32 v{WI+q}, 0xffff0000, v{WP+i0+q}')
                else: b(f'v_lshlrev_b32 v{WR+q}, 16, v{WRR+i0+q}'); b(f'v_lshlrev_b32 v{WI+q}, 16, v{WIR+i0+q}')
            dr, di = ACC+8*j+2*h, ACC+8*j+4+2*h
            b(f'v_pk_mul_f32 {pr(TM)}, {pr(dr)}, {pr(WR)}'); b(f'v_pk_mul_f32 {pr(TM+2)}, {pr(dr)}, {pr(WI)}')
            b(f'v_pk_fma_f32 {pr(TM)}, {pr(di)}, {pr(WI)}, {pr(TM)} neg_lo:[1,0,0] neg_hi:[1,0,0]')
            b(f'v_pk_fma_f32 {pr(TM+2)}, {pr(di)}, {pr(WR)}, {pr(TM+2)}')
            b(f'v_cvt_pk_bf16_f32 v{DAT+i0}, v{TM}, v{TM+2}'); b(f'v_cvt_pk_bf16_f32 v{DAT+i0+1}, v{TM+1}, v{TM+3}')
    stage(lambda j: M3+8*j, lambda j: DAT+4*j)
    for j in range(4):
        for r in range(4): b(f'v_cvt_pk_bf16_f32 v{EO+4*r+j}, v{ACC+8*j+r}, v{ACC+8*j+4+r}')
    for r in range(4): b(f'ds_write_b128 v208, {q4(EO+4*r)} offset:{E2 + r*16*EP}')
    b('s_barrier')
    for j in range(4): b(f'ds_read_b128 {q4(DAT+4*j)}, v209 offset:{E2 + j*16*EP}')
    b('STAMP 3')
    stage(lambda j: M4, lambda j: DAT+4*j)
    b('s_mul_i32 s81, s60, 4608'); b('v_mul_u32_u24 v208, 1088, v3'); b('v_lshl_add_u32 v208, v2, 2, v208'); b('v_add_u32 v208, s81, v208')
    for j in range(4):
        for r in range(4):
            b(f'v_cvt_pk_bf16_f32 v{EO+4*j+r}, v{ACC+8*j+r}, v{ACC+8*j+4+r}')
            b(f'ds_write_b32 v208, v{EO+4*j+r} offset:{r*272 + j*64}')
    b('v_mul_u32_u24 v209, 272, v3'); b('v_lshl_add_u32 v209, v2, 4, v209'); b('v_add_u32 v209, s81, v209')
    for i in range(4): b(f'ds_read_b128 {q4(DAT+4*i)}, v209 offset:{i*1088}')
    b('v_lshrrev_b32 v200, 2, v2'); b('v_lshl_add_u32 v200, v3, 4, v200'); b('v_mul_u32_u24 v200, 1344, v200'); b('v_and_b32 v201, 3, v2'); b('v_lshl_add_u32 v200, v201, 4, v200')
    for i in range(4):
        b(f's_add_u32 s83, s72, {i*64*1344}')
        b(f'buffer_store_dwordx4 {q4(DAT+4*i)}, v200, s[48:51], s83 offen {stflag}')
    b('s_endpgm')
```

```python
from common import *
C8 = 0.70710678118654752
def pr(x): return f'v[{x}:{x+1}]'
def q4(x): return f'v[{x}:{x+3}]'
NEG = 'neg_lo:[0,1] neg_hi:[0,1]'
def job_p3(b, s_idx, stflag=''):
    RP = 3840
    srd(b, 44, S_WS, SZ_T, WS_Z); srd(b, 48, S_OUT, 2048*2560)
    b('v_and_b32 v1, 63, v0'); b('v_and_b32 v2, 15, v1'); b('v_lshrrev_b32 v3, 4, v1')
    b('v_lshrrev_b32 v4, 6, v0'); b('s_nop 0'); b('v_readfirstlane_b32 s60, v4')
    b('v_mul_u32_u24 v50, 336, v3'); b('v_lshlrev_b32 v51, 2, v2'); b('v_add_u32 v50, v50, v51')
    b('v_mov_b32 v52, 0x80000000'); b('v_cmp_gt_u32 vcc, 5, v2'); b('v_cndmask_b32 v52, v52, v50, vcc')
    b('s_sub_u32 s70, 8, s60'); b('s_cmp_eq_u32 s60, 0'); b('s_cselect_b32 s70, 4, s70')
    b(f's_lshl_b32 s71, s60, 8'); b(f's_add_u32 s71, s71, s{s_idx}'); b('s_mul_i32 s71, s71, 1344')
    b('s_sub_u32 s72, s70, s60'); b(f's_mul_i32 s72, s72, {256*1344}')
    b('s_cmp_eq_u32 s60, 0'); b('s_cselect_b32 s73, 0, s72'); b('s_cselect_b32 s74, s72, 0')
    b('v_cmp_le_u32 vcc, 32, v1')
    b('v_mov_b32 v53, s73'); b('v_cndmask_b32 v53, 0, v53, vcc')
    b('v_mov_b32 v54, s73'); b('v_cndmask_b32 v54, v54, 0, vcc'); b('v_add_u32 v54, s74, v54')
    b('v_add_u32 v55, v50, v53'); b('v_add_u32 v47, v52, v53'); b('v_add_u32 v48, v50, v54'); b('v_add_u32 v49, v52, v54')
    ZF = 8
    AZ = [[55, 47], [48, 49]]
    for j in range(2):
        for t in range(2):
            for r in range(4):
                b(f'buffer_load_dword v{ZF+(2*j+t)*4+r}, v{AZ[j][t]}, s[44:47], s71 offen offset:{84*r+64*t}')
    SA, TW, SB = 24, 32, 56
    b('v_cvt_f32_u32 v80, v2'); b('v_lshlrev_b32 v81, 2, v3'); b('v_cvt_f32_u32 v82, v81')
    b(f'v_mul_f32 v83, {fbits(1/16)}, v80'); b('v_mul_f32 v84, v82, v83')
    b('v_lshrrev_b32 v88, 5, v1'); b('v_lshlrev_b32 v88, 31, v88')
    for r in range(4):
        if r: b(f'v_fmamk_f32 v85, v83, {fbits(float(r))}, v84')
        src = 'v85' if r else 'v84'
        b(f'v_cos_f32 v86, {src}'); b(f'v_sin_f32 v87, {src}')
        b(f'v_cvt_pk_bf16_f32 v{SA+r}, v86, -v87'); b(f'v_cvt_pk_bf16_f32 v{SA+4+r}, v87, v86')
        b(f'v_xor_b32 v{SA+r}, v{SA+r}, v88'); b(f'v_xor_b32 v{SA+4+r}, v{SA+4+r}, v88')
    sc = 1.0/(2048*640)
    b('v_cmp_eq_u32 s[82:83], 0, v3'); b('v_cmp_ge_u32 s[84:85], 1, v3')
    b(f'v_mul_f32 v83, {fbits(1/640)}, v80')
    for t in range(2):
        b(f'v_add_f32 v84, {fbits(16.0*t)}, v82' if t else 'v_mov_b32 v84, v82'); b('v_mul_f32 v84, v84, v83')
        for r in range(4):
            if r: b(f'v_fmamk_f32 v85, v83, {fbits(float(r))}, v84')
            src = 'v85' if r else 'v84'
            b(f'v_cos_f32 v86, {src}'); b(f'v_sin_f32 v87, {src}')
            b(f'v_mov_b32 v88, {fbits(2*sc)}')
            if t == 0 and r == 0:
                b(f'v_mov_b32 v89, {fbits(sc)}'); b('v_cndmask_b32 v88, v88, v89, s[82:83]')
            if t == 1:
                if r == 0:
                    b(f'v_mov_b32 v89, {fbits(sc)}'); b('v_cndmask_b32 v88, v89, v88, s[82:83]')
                    b('v_cndmask_b32 v88, 0, v88, s[84:85]')
                else: b('v_cndmask_b32 v88, 0, v88, s[82:83]')
            b(f'v_mul_f32 v{TW+8*t+r}, v86, v88'); b(f'v_mul_f32 v{TW+8*t+4+r}, v87, v88')
    b('v_cmp_gt_u32 s[86:87], 8, v2')
    b('s_and_b64 s[88:89], s[86:87], s[82:83]'); b('s_and_b64 s[76:77], s[86:87], s[84:85]')
    for tau in range(3):
        b(f'v_add_f32 v83, {fbits(16.0*tau)}, v80' if tau else 'v_mov_b32 v83, v80'); b(f'v_mul_f32 v83, {fbits(1/40)}, v83')
        for t in range(2):
            b(f'v_add_f32 v84, {fbits(16.0*t)}, v82' if t else 'v_mov_b32 v84, v82'); b('v_mul_f32 v84, v84, v83')
            for r in range(4):
                if r: b(f'v_fmamk_f32 v85, v83, {fbits(float(r))}, v84')
                src = 'v85' if r else 'v84'
                d = SB + 4*(2*tau+t) + r
                b(f'v_cos_f32 v86, {src}'); b(f'v_sin_f32 v87, {src}'); b(f'v_cvt_pk_bf16_f32 v{d}, v86, -v87')
                msk = None
                if t == 1: msk = ('s[84:85]' if r == 0 else 's[82:83]') if tau < 2 else ('s[76:77]' if r == 0 else 's[88:89]')
                elif tau == 2: msk = 's[86:87]'
                if msk: b(f'v_cndmask_b32 v{d}, 0, v{d}, {msk}')
    E = 80
    for j in range(2):
        for t in range(2):
            d = E + (2*j+t)*8; z = ZF + (2*j+t)*4
            b(f'v_mfma_f32_16x16x32_bf16 {q4(d)}, {q4(z)}, {q4(SA)}, 0')
            b(f'v_mfma_f32_16x16x32_bf16 {q4(d+4)}, {q4(z)}, {q4(SA+4)}, 0')
    TM = 112
    b('s_cmp_eq_u32 s60, 0'); b('s_cbranch_scc1 P3_W0')
    for t in range(2):
        for h in range(2):
            ar, ai = E + t*8 + 2*h, E + t*8 + 4 + 2*h
            br, bi = E + 16 + t*8 + 2*h, E + 16 + t*8 + 4 + 2*h
            b(f'v_pk_add_f32 {pr(TM)}, {pr(ai)}, {pr(bi)} {NEG}'); b(f'v_pk_add_f32 {pr(TM+2)}, {pr(br)}, {pr(ar)} {NEG}')
            b(f'v_pk_add_f32 {pr(ar)}, {pr(ar)}, {pr(br)}'); b(f'v_pk_add_f32 {pr(ai)}, {pr(ai)}, {pr(bi)}')
            b(f'v_mov_b32 v{br}, v{TM}'); b(f'v_mov_b32 v{br+1}, v{TM+1}'); b(f'v_mov_b32 v{bi}, v{TM+2}'); b(f'v_mov_b32 v{bi+1}, v{TM+3}')
    b.label('P3_W0')
    VF = 8
    for j in range(2):
        for t in range(2):
            for h in range(2):
                sr_, si_ = E + (2*j+t)*8 + 2*h, E + (2*j+t)*8 + 4 + 2*h
                c, s = TW + 8*t + 2*h, TW + 8*t + 4 + 2*h
                b(f'v_pk_mul_f32 {pr(TM)}, {pr(sr_)}, {pr(c)}'); b(f'v_pk_mul_f32 {pr(TM+2)}, {pr(si_)}, {pr(c)}')
                b(f'v_pk_fma_f32 {pr(TM)}, {pr(si_)}, {pr(s)}, {pr(TM)} neg_lo:[1,0,0] neg_hi:[1,0,0]')
                b(f'v_pk_fma_f32 {pr(TM+2)}, {pr(sr_)}, {pr(s)}, {pr(TM+2)}')
                o = VF + (2*j+t)*4 + 2*h
                b(f'v_cvt_pk_bf16_f32 v{o}, v{TM}, v{TM+2}'); b(f'v_cvt_pk_bf16_f32 v{o+1}, v{TM+1}, v{TM+3}')
    RH = 80
    for j in range(2):
        for tau in range(3):
            d = RH + (3*j+tau)*4
            b(f'v_mfma_f32_16x16x32_bf16 {q4(d)}, {q4(VF+(2*j)*4)}, {q4(SB+4*(2*tau))}, 0')
            b(f'v_mfma_f32_16x16x32_bf16 {q4(d)}, {q4(VF+(2*j+1)*4)}, {q4(SB+4*(2*tau+1))}, {q4(d)}')
    b(f's_mul_i32 s73, s60, {2*RP}'); b('v_mul_u32_u24 v50, 80, v2'); b('v_lshlrev_b32 v51, 4, v3'); b('v_add_u32 v50, v50, v51'); b('v_add_u32 v50, s73, v50')
    for j in range(2):
        for tau in range(3):
            b(f'ds_write_b128 v50, {q4(RH+(3*j+tau)*4)} offset:{j*RP + tau*16*80}')
    b('s_barrier')
    b('v_lshrrev_b32 v51, 2, v0'); b('v_mul_u32_u24 v51, 80, v51'); b('v_and_b32 v52, 3, v0'); b('v_lshlrev_b32 v52, 4, v52'); b('v_add_u32 v51, v51, v52')
    RR = 8
    for j in range(8): b(f'ds_read_b128 {q4(RR+4*j)}, v51 offset:{j*RP}')
    b(f's_mov_b32 s76, {fbits(C8)}'); b(f's_mov_b32 s77, {fbits(C8)}')
    OUTR = 64
    T = 40
    for hp in range(2):
        rho = [RR + 4*j + 2*hp for j in range(8)]
        A_, B_, E0, E2_, O1, O3, G, H, I_, J_ = [T + 2*i for i in range(10)]
        M_, N_, Y = 60, 62, 80
        b(f'v_pk_add_f32 {pr(A_)}, {pr(rho[0])}, {pr(rho[1])}'); b(f'v_pk_add_f32 {pr(B_)}, {pr(rho[0])}, {pr(rho[1])} {NEG}')
        b(f'v_pk_add_f32 {pr(E0)}, {pr(A_)}, {pr(rho[4])}'); b(f'v_pk_add_f32 {pr(E2_)}, {pr(A_)}, {pr(rho[4])} {NEG}')
        b(f'v_pk_add_f32 {pr(O1)}, {pr(B_)}, {pr(rho[5])} {NEG}'); b(f'v_pk_add_f32 {pr(O3)}, {pr(B_)}, {pr(rho[5])}')
        b(f'v_pk_add_f32 {pr(G)}, {pr(rho[2])}, {pr(rho[6])}'); b(f'v_pk_add_f32 {pr(H)}, {pr(rho[7])}, {pr(rho[3])} {NEG}')
        b(f'v_pk_add_f32 {pr(I_)}, {pr(rho[2])}, {pr(rho[6])} {NEG}'); b(f'v_pk_add_f32 {pr(J_)}, {pr(rho[3])}, {pr(rho[7])}')
        b(f'v_pk_add_f32 {pr(M_)}, {pr(I_)}, {pr(J_)} {NEG}'); b(f'v_pk_add_f32 {pr(N_)}, {pr(I_)}, {pr(J_)}')
        y = [Y + 2*i for i in range(8)]
        b(f'v_pk_add_f32 {pr(y[0])}, {pr(E0)}, {pr(G)}'); b(f'v_pk_add_f32 {pr(y[4])}, {pr(E0)}, {pr(G)} {NEG}')
        b(f'v_pk_add_f32 {pr(y[2])}, {pr(E2_)}, {pr(H)}'); b(f'v_pk_add_f32 {pr(y[6])}, {pr(E2_)}, {pr(H)} {NEG}')
        b(f'v_pk_fma_f32 {pr(y[1])}, {pr(M_)}, s[76:77], {pr(O1)}'); b(f'v_pk_fma_f32 {pr(y[5])}, {pr(M_)}, s[76:77], {pr(O1)} neg_lo:[1,0,0] neg_hi:[1,0,0]')
        b(f'v_pk_fma_f32 {pr(y[3])}, {pr(N_)}, s[76:77], {pr(O3)} neg_lo:[1,0,0] neg_hi:[1,0,0]'); b(f'v_pk_fma_f32 {pr(y[7])}, {pr(N_)}, s[76:77], {pr(O3)}')
        for s1 in range(8): b(f'v_cvt_pk_bf16_f32 v{OUTR+2*s1+hp}, v{y[s1]}, v{y[s1]+1}')
    b('v_lshlrev_b32 v5, 3, v0'); b('v_mov_b32 v6, 0x80000000'); b('v_cmp_gt_u32 vcc, 160, v0'); b('v_cndmask_b32 v6, v6, v5, vcc')
    b(f's_mul_i32 s61, s{s_idx}, 2560'); b('s_add_u32 s61, s61, 1280')
    for s1 in range(8):
        if s1: b(f's_add_u32 s61, s61, {256*2560}')
        b(f'buffer_store_dwordx2 v[{OUTR+2*s1}:{OUTR+2*s1+1}], v6, s[48:51], s61 offen ' + stflag)
    b('s_endpgm')
```

```python
import sys
from common import *
from jobs_tr import job_transpose
from jobs_p1 import job_p1
from jobs_tab import job_tab, NTAB
from jobs_kgen import job_kgen
from jobs_p2 import job_p2
from jobs_p3 import job_p3
from jobs_wp import job_wp, NWP
from jobs_pf import job_pf, NPF
from jobs_conv3 import job_conv, CH_SZ
HEADER = open('concat_heads__ssm_conv_s4d__spectral_gfnet__prompt.s.ref').read().split('\n')
hdr = [l for l in HEADER if l.startswith(';') and '@launch' not in l and 'Override launch' not in l and 'grid=ceil' not in l]
hdr = hdr[:14]
def dispatch(b, kname, jobs):
    prologue(b)
    start = 0
    for (name, cnt, fn) in jobs:
        b(f's_cmp_lt_u32 s2, {start+cnt}'); b(f's_cbranch_scc1 {kname}_{name}')
        start += cnt
    b('EXITPATH'); b('s_endpgm')
    start = 0
    for (name, cnt, fn) in jobs:
        b.label(f'{kname}_{name}')
        b(f's_sub_u32 s3, s2, {start}')
        fn(b)
        start += cnt
    return start
def uniq(lines, pre):
    return lines
kernels = []
JOBMAP = {}
INSTR = False
WS_PROF = 0x2000000
def instrument(lines, kidx):
    out = []
    first = True
    for l in lines:
        if l.strip() == 's_waitcnt lgkmcnt(0)' and first:
            out.append(l); first = False
            out += ['s_memrealtime s[90:91]', 's_mov_b32 s92, 0', 's_mov_b32 s93, 0', 's_mov_b32 s94, 0', 's_mov_b32 s95, 0', 's_waitcnt lgkmcnt(0)']
            continue
        if l.strip().startswith('STAMP'):
            k = int(l.split()[1])
            if len(l.split()) > 2: out.append('s_waitcnt ' + l.split()[2])
            out += ['s_memrealtime s[96:97]', 's_waitcnt lgkmcnt(0)', f's_mov_b32 s{92+k}, s96']
            continue
        if l.strip() == 's_endpgm' and not first and out[-1].strip() != 'EXITPATH':
            out += ['s_waitcnt vmcnt(0) lgkmcnt(0)', 's_memrealtime s[96:97]', 's_waitcnt lgkmcnt(0)',
                    f's_add_u32 s84, s40, {hex(WS_PROF + kidx*0x40000)}', 's_addc_u32 s85, s41, 0', 's_and_b32 s85, s85, 0xffff', 's_mov_b32 s86, 0x40000', 's_mov_b32 s87, 0x20000',
                    'v_lshrrev_b32 v1, 6, v0', 'v_lshlrev_b32 v1, 5, v1', 's_lshl_b32 s88, s2, 7', 'v_add_u32 v1, s88, v1',
                    's_getreg_b32 s89, hwreg(HW_REG_XCC_ID)', 's_getreg_b32 s88, hwreg(HW_REG_HW_ID)',
                    'v_mov_b32 v2, s90', 'v_mov_b32 v3, s96', 'v_mov_b32 v4, s89', 'v_mov_b32 v5, s88', 'v_mov_b32 v6, s92', 'v_mov_b32 v7, s93', 'v_mov_b32 v8, s94', 'v_mov_b32 v9, s95',
                    'v_and_b32 v10, 63, v0', 'v_cmp_eq_u32 vcc, 0, v10', 's_and_saveexec_b64 s[98:99], vcc',
                    'buffer_store_dwordx4 v[2:5], v1, s[84:87], 0 offen', 'buffer_store_dwordx4 v[6:9], v1, s[84:87], 0 offen offset:16', 's_endpgm']
            continue
        if l.strip() == 'EXITPATH': out.append(l); continue
        out.append(l)
    return [l for l in out if l.strip() != 'EXITPATH']
DBG = False
def dbgstamp(lines, kidx, picks):
    out = []; first = True
    for l in lines:
        t = l.strip()
        if t == 's_waitcnt lgkmcnt(0)' and first:
            out.append(l); first = False
            out += ['s_memrealtime s[90:91]', 's_waitcnt lgkmcnt(0)']
            continue
        if t.startswith('STAMP'): continue
        if t == 'EXITPATH': out.append(l); continue
        if t == 's_endpgm' and not first and out[-1].strip() != 'EXITPATH':
            lab = 'DBGE_%d_%d' % (kidx, len(out))
            out += ['s_mov_b32 s88, -1']
            for wg, word in picks.items():
                if wg == 'start': continue
                out += [f's_cmp_eq_u32 s2, {wg}', f's_cselect_b32 s88, {word*4}, s88']
            out += ['s_cmp_eq_u32 s2, 0', f's_cselect_b32 s89, 1, 0', 's_or_b32 s87, s89, 0',
                    's_cmp_eq_u32 s88, -1', 's_cselect_b32 s86, 0, 1', 's_or_b32 s86, s86, s89', 's_cmp_eq_u32 s86, 0', f's_cbranch_scc1 {lab}',
                    's_waitcnt vmcnt(0) lgkmcnt(0)', 's_memrealtime s[96:97]', 's_waitcnt lgkmcnt(0)',
                    f's_add_u32 s84, s40, {hex(WS_PROF)}', 's_addc_u32 s85, s41, 0', 's_and_b32 s85, s85, 0xffff', 's_mov_b32 s86, 64', 's_mov_b32 s87, 0x20000',
                    'v_mov_b32 v2, s96', 'v_mov_b32 v3, s88', 'v_mov_b32 v4, s90', f'v_mov_b32 v5, {picks["start"]*4}', 'v_mov_b32 v6, 0x1000',
                    'v_cmp_eq_u32 vcc, 0, v0', 's_and_saveexec_b64 s[98:99], vcc',
                    'buffer_store_dword v2, v3, s[84:87], 0 offen',
                    's_cmp_eq_u32 s2, 0', 's_cselect_b32 s88, 0, 1', 'v_mov_b32 v7, s88', 'v_lshlrev_b32 v7, 12, v7', 'v_add_u32 v5, v5, v7',
                    'buffer_store_dword v4, v5, s[84:87], 0 offen',
                    ] + (['s_cmp_lg_u32 s2, 0', f's_cbranch_scc1 {lab}', 's_waitcnt vmcnt(0)', 's_mov_b64 exec, s[98:99]', 'v_lshlrev_b32 v2, 2, v0',
                          'buffer_load_dword v3, v2, s[84:87], 0 offen sc1', 's_mov_b32 s80, s38', 's_and_b32 s81, s39, 0xffff', 's_mov_b32 s82, 64', 's_mov_b32 s83, 0x20000',
                          's_waitcnt vmcnt(0)', 'buffer_store_dword v3, v2, s[80:83], 0 offen'] if kidx == 2 else []) + [f'{lab}:', 's_endpgm']
            continue
        out.append(l)
    return [l for l in out if l.strip() != 'EXITPATH']
PICKS = [{'start': 0, 319: 1, 575: 2, 735: 3, 992: 4, 160: 12}, {'start': 5, 255: 6, 327: 7, 95: 8, 100: 13}, {'start': 9, 255: 10, 415: 11, 128: 14}]
def make(kname, jobs, lds, vg):
    b = Builder()
    n = dispatch(b, kname, jobs)
    lines = b.lines
    if DBG: lines = dbgstamp(lines, len(kernels), PICKS[len(kernels)])
    elif INSTR: lines = instrument(lines, len(kernels))
    else: lines = [l for l in lines if not l.strip().startswith('STAMP') and l.strip() != 'EXITPATH']
    body = process(lines)
    kernels.append((kname, n, lds, vg, body)); JOBMAP[kname] = [[j[0], j[1]] for j in jobs]
import os
VAR = os.environ.get('VAR', 'gather')
def build(cfg=None):
    wm = 'wp' if VAR == 'wp' else 'gather'
    def ut(b):
        if VAR == 'pftail':
            bb = Builder(); job_transpose(bb, 'UT', 3, 'UT', 'sc1')
            assert bb.lines[-1] == 's_endpgm'
            for l in bb.lines[:-1]: b(l)
            from jobs_pf import pf_tail
            pf_tail(b, 3, 160); b('s_endpgm')
        else: job_transpose(b, 'UT', 3, 'UT', 'sc1')
    jobs1 = [('KG', 320, lambda b: job_kgen(b, 3, 'sc1')), ('P1', 256, lambda b: job_p1(b, 3)), ('UT', 160, ut), ('TB', NTAB, lambda b: job_tab(b, 3))]
    if VAR == 'wp': jobs1.append(('WP', NWP, lambda b: job_wp(b, 3)))
    if VAR == 'pf': jobs1.append(('PF', NPF, lambda b: job_pf(b, 3)))
    make('k1_kernel', jobs1, 34816, 128)
    def p2a(b):
        b('s_and_b32 s4, s3, 7'); b('s_lshr_b32 s5, s3, 3'); b('s_branch P2_BODY')
    def p2b(b):
        b('s_and_b32 s4, s3, 7'); b('s_lshr_b32 s5, s3, 3'); b('s_add_u32 s5, s5, 12'); b.label('P2_BODY'); job_p2(b, 4, 5, wmode=wm)
    if wm == 'wp': make('k2_kernel', [('P2a', 96, p2a), ('CV', 160, lambda b: job_conv(b, 3, 'sc1')), ('P2b', 72, p2b)], 4*CH_SZ, 256)
    else:
        def p2all(b):
            b('s_and_b32 s4, s3, 7'); b('s_lshr_b32 s5, s3, 3'); job_p2(b, 4, 5, wmode=wm)
        make('k2_kernel', [('CV', 160, lambda b: job_conv(b, 3, 'sc1')), ('P2', 168, p2all)], 4*CH_SZ, 256)
    make('k3_kernel', [('P3', 256, lambda b: job_p3(b, 3, 'sc1')), ('YT', 160, lambda b: job_transpose(b, 'YT', 3, 'YT', 'sc1'))], 32768, 128)
    out = list(hdr)
    for (k, n, lds, vg, body) in kernels:
        out.append(f'; @launch kernel={k} grid=({n},1,1) block=(256,1,1) lds={lds}')
    import json
    if INSTR: out.append('; JOBS=' + json.dumps(JOBMAP))
    out.append('.amdgcn_target "amdgcn-amd-amdhsa--gfx950"'); out.append('.text')
    for (k, n, lds, vg, body) in kernels:
        out += [f'.globl {k}', '.p2align 8', f'.type {k},@function', f'{k}:'] + body
    out.append('.section .rodata,"a"')
    for (k, n, lds, vg, body) in kernels:
        acc = (vg + 3)//4*4
        out += ['.p2align 6', f'.amdhsa_kernel {k}', f'  .amdhsa_next_free_vgpr {vg}', '  .amdhsa_next_free_sgpr 102', f'  .amdhsa_accum_offset {acc}',
                '  .amdhsa_group_segment_fixed_size 0', '  .amdhsa_kernarg_size 104', '  .amdhsa_user_sgpr_count 2',
                '  .amdhsa_user_sgpr_kernarg_segment_ptr 1', '  .amdhsa_system_sgpr_workgroup_id_x 1', '.end_amdhsa_kernel']
    return '\n'.join(out) + '\n'
if __name__ == '__main__':
    if len(sys.argv) > 2 and sys.argv[2] == 'instr': INSTR = True
    if len(sys.argv) > 2 and sys.argv[2] == 'dbg': DBG = True
    s = build()
    dst = sys.argv[1] if len(sys.argv) > 1 else 'concat_heads__ssm_conv_s4d__spectral_gfnet__prompt.s'
    open(dst, 'w').write(s)
    print(len(s), 'bytes', s.count('\n'), 'lines')
```

```python
import re
TRANS = ('v_exp_f32','v_log_f32','v_rcp_f32','v_rsq_f32','v_sqrt_f32','v_sin_f32','v_cos_f32','v_rcp_iflag_f32')
def regs_of(tok):
    tok = tok.strip()
    neg = tok.lstrip('-')
    m = re.fullmatch(r'abs\((.*)\)', neg)
    if m: neg = m.group(1)
    if neg.startswith('|') and neg.endswith('|'): neg = neg[1:-1]
    m = re.fullmatch(r'([vsa])(\d+)', neg)
    if m: return [(m.group(1), int(m.group(2)))]
    m = re.fullmatch(r'([vsa])\[(\d+):(\d+)\]', neg)
    if m: return [(m.group(1), i) for i in range(int(m.group(2)), int(m.group(3))+1)]
    if neg == 'vcc': return [('s', 106), ('s', 107)]
    if neg == 'vcc_lo': return [('s', 106)]
    if neg == 'vcc_hi': return [('s', 107)]
    if neg == 'exec': return [('s', 126), ('s', 127)]
    if neg == 'm0': return [('s', 124)]
    return []
def split_ops(s):
    out = []; depth = 0; cur = ''
    for ch in s:
        if ch in '[(': depth += 1
        if ch in '])': depth -= 1
        if ch == ',' and depth == 0: out.append(cur.strip()); cur = ''
        else: cur += ch
    if cur.strip(): out.append(cur.strip())
    return out
class I:
    __slots__ = ('text','mn','ops','cls','dst','src','srcC','passes','label','raw')
def parse(line):
    t = line.split(';')[0].strip()
    ins = I(); ins.text = line; ins.raw = t; ins.dst = []; ins.src = []; ins.srcC = []; ins.passes = 0; ins.label = None
    if not t: ins.cls = 'none'; ins.mn = ''; ins.ops = []; return ins
    if t.endswith(':'): ins.cls = 'label'; ins.mn = ''; ins.ops = []; ins.label = t[:-1]; return ins
    if t.startswith('.'): ins.cls = 'dir'; ins.mn = t; ins.ops = []; return ins
    p = t.split(None, 1); mn = p[0]; rest = p[1] if len(p) > 1 else ''
    ins.mn = mn
    ops = split_ops(rest)
    mods = ''
    if ops:
        q = ops[-1].split(None, 1)
        ops[-1] = q[0]; mods = q[1] if len(q) > 1 else ''
    ins.ops = ops
    R = lambda k: regs_of(ops[k]) if k < len(ops) else []
    allr = lambda a: [r for k in range(a, len(ops)) for r in regs_of(ops[k])]
    base = re.sub(r'_(e32|e64|dpp|sdwa)$', '', mn)
    if mn.startswith('v_mfma') or mn.startswith('v_smfmac'):
        ins.cls = 'mfma'; ins.dst = R(0); ins.src = R(1) + R(2); ins.srcC = R(3)
        ins.passes = 8 if '32x32' in mn else 4
    elif mn.startswith('buffer_load') or mn.startswith('global_load'):
        ins.cls = 'vload'; ins.dst = R(0); ins.src = allr(1)
        if ' lds' in (' ' + mods): ins.cls = 'vloadlds'; ins.dst = []; ins.src = allr(0)
    elif mn.startswith('buffer_store') or mn.startswith('global_store'):
        ins.cls = 'vstore'; ins.src = allr(0)
    elif mn.startswith('buffer_atomic') or mn.startswith('global_atomic'):
        ins.cls = 'vatomic'; ins.src = allr(0)
        if 'sc0' in mods: ins.dst = R(0) if mn.startswith('buffer') else R(0)
    elif mn.startswith('buffer_wbl2') or mn.startswith('buffer_inv'):
        ins.cls = 'vstore'
    elif mn.startswith('ds_read') or mn.startswith('ds_bpermute') or mn.startswith('ds_permute') or mn.startswith('ds_swizzle'):
        ins.cls = 'dsread'; ins.dst = R(0); ins.src = allr(1)
    elif mn.startswith('ds_write') or mn.startswith('ds_add'):
        ins.cls = 'dswrite'; ins.src = allr(0)
    elif mn.startswith('s_load') or mn.startswith('s_buffer_load') or mn in ('s_memtime', 's_memrealtime'):
        ins.cls = 'smem'; ins.dst = R(0); ins.src = allr(1)
    elif mn == 's_waitcnt': ins.cls = 'wait'
    elif mn == 's_barrier': ins.cls = 'barrier'
    elif mn == 's_nop': ins.cls = 'nop'
    elif mn == 's_endpgm': ins.cls = 'end'
    elif mn.startswith('s_cbranch') or mn == 's_branch': ins.cls = 'branch'
    elif mn.startswith('s_'):
        ins.cls = 'salu'
        if mn.startswith('s_cmp') or mn in ('s_setprio', 's_sleep', 's_bitcmp0_b32', 's_bitcmp1_b32'): ins.src = allr(0)
        else: ins.dst = R(0); ins.src = allr(1)
        if 'saveexec' in mn: ins.dst += [('s', 126), ('s', 127)]
    elif mn.startswith('v_'):
        ins.cls = 'valu'
        if base.startswith('v_cmp'):
            ins.dst = R(0); ins.src = allr(1)
        elif base in ('v_add_co_u32', 'v_sub_co_u32', 'v_addc_co_u32', 'v_subb_co_u32', 'v_subrev_co_u32', 'v_mad_u64_u32'):
            ins.dst = R(0) + R(1); ins.src = allr(2)
        elif base.startswith('v_permlane') and 'swap' in base:
            ins.dst = R(0) + R(1); ins.src = R(0) + R(1)
        elif base in ('v_fmac_f32', 'v_mac_f32', 'v_pk_fmac_f16', 'v_fmac_f16', 'v_writelane_b32', 'v_dot2c_f32_bf16'):
            ins.dst = R(0); ins.src = allr(0)
        else:
            ins.dst = R(0); ins.src = allr(1)
        if 'dpp' in mn or 'row_' in mods or 'quad_perm' in mods or 'wave_' in mods: ins.cls = 'valu'; ins.mn = mn + '#dpp'
    else:
        raise ValueError("unknown instr: " + line)
    return ins

class Builder:
    def __init__(self): self.lines = []
    def __call__(self, s, *a):
        for l in s.split('\n'):
            if l.strip(): self.lines.append(l.strip())
    def label(self, n): self.lines.append(n + ':')
    def c(self, s): self.lines.append('; ' + s)

TIMEBASED = True
LGMERGE = 0
HOIST = 90
def process(lines, verbose=False):
    out = []
    vm = []
    lg = []
    lgt = []
    sm = set()
    hist = []
    clk = [0, 0]
    info = []
    def emit(t, kind=''): out.append(t); info.append((kind, clk[0]))
    def tick(n=1):
        clk[0] += 4*n
        for h in hist: h[1] += n
        while hist and hist[0][1] > 20: hist.pop(0)
    def need_nops(ins):
        need = 0
        D = set(ins.dst); Sr = set(ins.src); C = set(ins.srcC)
        isvalu = ins.cls == 'valu'
        tnow = max(clk[0], clk[1]) if ins.cls == 'mfma' else clk[0]
        for (p, age, tp) in hist:
            pd = set(p.dst); req = 0
            if p.cls == 'mfma' and TIMEBASED: age = max(age, (tnow - tp)//4 - 1)
            if p.cls == 'valu':
                trans = re.sub(r'_(e32|e64)$', '', p.mn) in TRANS
                vd = {r for r in pd if r[0] in 'va'}; sd = {r for r in pd if r[0] == 's'}
                if ins.cls == 'mfma' and vd & (Sr | C): req = max(req, 2)
                if trans and ins.cls in ('valu', 'mfma') and vd & Sr: req = max(req, 1)
                if trans and ins.cls in ('vstore','dswrite','vload','dsread','vatomic') and vd & Sr: req = max(req, 1)
                if isvalu and ins.mn.startswith(('v_readfirstlane', 'v_readlane')) and vd & Sr: req = max(req, 1)
                if isvalu and ins.mn.startswith('v_permlane') and vd & Sr: req = max(req, 2)
                if isvalu and '#dpp' in ins.mn and vd & Sr: req = max(req, 2)
                if sd:
                    if isvalu and sd & Sr: req = max(req, 2)
                    if isvalu and ins.mn.startswith(('v_readlane', 'v_writelane')) and sd & Sr: req = max(req, 4)
                    if ins.cls in ('vload', 'vstore', 'vatomic', 'vloadlds') and sd & Sr: req = max(req, 5)
                    if ins.cls in ('salu','branch','smem') and (sd & Sr): req = max(req, 4)
                    if ins.cls == 'branch' and ('vcc' in ins.mn) and (('s',106) in sd or ('s',107) in sd): req = max(req, 4)
            if p.cls == 'mfma':
                w_use = 8 if p.passes == 4 else 12
                w_ovl = 6 if p.passes == 4 else 10
                w_war = 3 if p.passes == 4 else 7
                if ins.cls == 'mfma':
                    if pd & Sr: req = max(req, w_use)
                    if pd & C:
                        if not (p.dst == ins.srcC and p.passes == ins.passes): req = max(req, w_ovl)
                    if pd & D and not (p.dst == ins.dst and p.dst == ins.srcC):
                        if not (pd & C): req = max(req, w_use)
                else:
                    if pd & (Sr | D): req = max(req, w_use)
                    if isvalu and set(p.srcC) & D: req = max(req, w_war)
                    if ins.cls in ('vload','dsread') and set(p.srcC) & D: req = max(req, w_war)
            if p.cls == 'vstore' and ('x4' in p.mn or 'x3' in p.mn):
                data = set(regs_of(p.ops[0])) if p.mn.startswith('buffer') else set(regs_of(p.ops[1]))
                if data & D and ins.cls in ('valu','mfma','vload','dsread'): req = max(req, 2)
            if p.cls == 'dswrite' and ('b128' in p.mn or 'b96' in p.mn):
                if set(p.src) & D and isvalu: req = max(req, 1)
            if p.cls == 'salu' and ('s', 124) in pd and ins.cls == 'vloadlds': req = max(req, 1)
            if p.cls == 'salu' and (('s',126) in pd or ('s',127) in pd) and isvalu and '#dpp' in ins.mn: req = max(req, 1)
            need = max(need, req - age)
        return need
    def do_wait(vmn=None, lgn=None):
        parts = []
        if vmn is not None:
            vmn = min(vmn, 63); parts.append('vmcnt(%d)' % vmn)
            while len(vm) > vmn: vm.pop(0)
        if lgn is not None:
            lgn = min(lgn, 15); parts.append('lgkmcnt(%d)' % lgn)
            while len(lg) > lgn: lg.pop(0)
            if lgn == 0: sm.clear()
        emit('s_waitcnt ' + ' '.join(parts)); tick()
    def flush_all(haz=True, waits=True):
        if waits and (vm_loads_pending() or lg or sm):
            do_wait(0 if vm_loads_pending() else None, 0 if (lg or sm) else None)
        if haz:
            worst = 0
            for (p, age, tp) in hist:
                r = 0
                if p.cls == 'mfma': r = 8 if p.passes == 4 else 12
                elif p.cls == 'valu': r = 5 if any(x[0] == 's' for x in p.dst) else 2
                elif p.cls == 'vstore': r = 2
                worst = max(worst, r - age)
            nop(worst)
    def vm_loads_pending(): return any(x for x in vm)
    def nop(n):
        while n > 0:
            k = min(n, 16); emit('s_nop %d' % (k-1)); tick(k); n -= k
    for line in lines:
        ins = parse(line)
        if ins.cls in ('none', 'dir'): emit(line); continue
        if ins.cls == 'label':
            if 'NOFLUSH' not in line: flush_all()
            emit(line); continue
        if ins.cls == 'wait':
            m = re.search(r'vmcnt\((\d+)\)', ins.raw); n = re.search(r'lgkmcnt\((\d+)\)', ins.raw)
            if m:
                while len(vm) > int(m.group(1)): vm.pop(0)
            if n:
                while len(lg) > int(n.group(1)): lg.pop(0)
                if int(n.group(1)) == 0: sm.clear()
            emit(line); tick(); continue
        if ins.cls == 'nop':
            emit(line); tick(int(ins.ops[0]) + 1); continue
        if ins.mn.startswith('buffer_'):
            mo = re.search(r'offset:(\d+)', ins.raw)
            if mo and int(mo.group(1)) > 4095: raise ValueError('MUBUF offset too large: ' + line)
        if ins.mn.startswith('ds_'):
            mo = re.search(r'offset:(\d+)', ins.raw)
            if mo and int(mo.group(1)) > 65535: raise ValueError('DS offset too large: ' + line)
        touched = set(ins.src) | set(ins.srcC) | set(ins.dst)
        if ins.cls == 'vload' and 'd16' in ins.mn: touched = set(ins.src)
        vmn = None
        for idx, d in enumerate(vm):
            if d & touched: vmn = len(vm) - 1 - idx
        lgn = None
        for idx, d in enumerate(lg):
            if d & touched: lgn = len(lg) - 1 - idx
        if lgn is not None and lgn > 0 and LGMERGE:
            tt = lgt[-len(lg):]
            while lgn > 0 and clk[0] - tt[len(lg) - lgn] >= LGMERGE: lgn -= 1
        if sm & touched: lgn = 0
        if sm and lgn is not None: lgn = 0
        if ins.cls == 'barrier':
            if lg or sm: lgn = 0
        if ins.cls == 'branch':
            if 'NOFLUSH' not in line:
                if vm_loads_pending(): vmn = 0
                if lg or sm: lgn = 0
        hoisted = False
        if HOIST and vmn is None and lgn is not None and lgn > 0 and not sm and ins.cls != 'barrier':
            tt = lgt[-len(lg):]; tneed = tt[len(lg) - 1 - lgn]
            k = 0; pos = len(out)
            cand = None
            for back in range(1, 12):
                j = len(out) - back
                if j < 0: break
                kind, tj = info[j]
                if kind == 'stop' or out[j].startswith('s_waitcnt') or out[j].endswith(':'): break
                if kind == 'big':
                    if back > 1 and lgn - k >= 0 and tj - tneed >= HOIST: cand = (j + 1, lgn - k)
                    break
                if kind == 'ds': k += 1
            if cand:
                out.insert(cand[0], 's_waitcnt lgkmcnt(%d)' % min(cand[1], 15)); info.insert(cand[0], ('', 0))
                ln = min(lgn, 15)
                while len(lg) > ln: lg.pop(0)
                tick(0); hoisted = True
        if not hoisted and (vmn is not None or lgn is not None): do_wait(vmn, lgn)
        if ins.cls == 'branch' and 'NOFLUSH' not in line:
            n0 = need_nops(ins); nop(n0); flush_all(waits=False)
        else:
            nop(need_nops(ins))
        emit(line, 'big' if (ins.cls == 'mfma' and ins.passes == 8) else ('ds' if ins.cls in ('dsread', 'dswrite') else ('stop' if ins.cls in ('barrier','branch','smem') or 'exec' in line else '')))
        if ins.cls == 'mfma':
            clk[0] = max(clk[0], clk[1]); clk[1] = clk[0] + 4*ins.passes
        tissue = clk[0]
        tick()
        hist.append([ins, 0, tissue])
        if ins.cls in ('vload',): vm.append(set(ins.dst))
        elif ins.cls in ('vstore', 'vloadlds'): vm.append(set())
        elif ins.cls == 'vatomic': vm.append(set(ins.dst))
        elif ins.cls == 'dsread': lg.append(set(ins.dst)); lgt.append(tissue)
        elif ins.cls == 'dswrite': lg.append(set()); lgt.append(tissue)
        elif ins.cls == 'smem': sm |= set(ins.dst) if ins.dst else {('s', 999)}
        if len(lg) > 15: pass
    return out

class VA:
    def __init__(self, start=0, limit=256): self.n = start; self.limit = limit; self.hi = start
    def a(self, cnt=1, align=1):
        if cnt >= 2 and align < 2: align = 2
        self.n = (self.n + align - 1)//align*align
        r = self.n; self.n += cnt; self.hi = max(self.hi, self.n)
        assert self.n <= self.limit, "out of vgprs"
        return r
    def mark(self): return self.n
    def release(self, m): self.n = m
def vr(b, n=1): return 'v%d' % b if n == 1 else 'v[%d:%d]' % (b, b+n-1)
def sr(b, n=1): return 's%d' % b if n == 1 else 's[%d:%d]' % (b, b+n-1)

def list_schedule(items, lds_lat=110, verbose=False, filler=None, memdep=None):
    n = len(items)
    nodes = []
    for it in items:
        lines = [l for l in it.split('\n') if l.strip()]
        ps = [parse(l) for l in lines]
        dst = set(); src = set(); cls = None; mf = 0
        for p in ps:
            dst |= set(p.dst); src |= set(p.src) | set(p.srcC)
        p0 = ps[0]
        kind = p0.cls if len(ps) == 1 else 'block'
        if kind == 'mfma': mf = p0.passes
        hasdsw = any(p.cls == 'dswrite' for p in ps); hasdsr = any(p.cls == 'dsread' for p in ps)
        if kind == 'block':
            dst = {r for r in dst if r[0] != 's'}; src = {r for r in src if r[0] != 's'}
        acc_chain = (kind == 'mfma' and p0.dst == p0.srcC)
        nodes.append(dict(txt=it, dst=dst, src=src, kind=kind, mf=mf, n=len(ps), dsw=hasdsw, dsr=hasdsr, p=p0, vm=any(p.cls in ('vload','vstore') for p in ps)))
    succ = [[] for _ in range(n)]; npred = [0]*n
    lastw = {}; readers = {}; lastdsw = None; dsr_since = []; lastvm = None
    def edge(a, b_, lat):
        succ[a].append((b_, lat)); npred[b_] += 1
    def lat_raw(a, b_):
        A = nodes[a]; B = nodes[b_]
        if A['kind'] == 'mfma':
            if B['kind'] == 'mfma' and A['p'].dst == B['p'].srcC and not (set(A['p'].dst) & set(B['p'].src)): return 16 if A['mf'] == 4 else 32
            return 40 if A['mf'] == 4 else 56
        if A['dsr']: return lds_lat
        if A['kind'] == 'valu' and B['kind'] == 'mfma': return 12
        return 4*A['n'] + 1
    for i, nd in enumerate(nodes):
        for r in nd['src']:
            if r in lastw: edge(lastw[r], i, lat_raw(lastw[r], i))
        for r in nd['dst']:
            if r in lastw:
                a = lastw[r]
                edge(a, i, lat_raw(a, i) if nodes[a]['kind'] == 'mfma' and not (nd['kind'] == 'mfma' and nodes[a]['p'].dst == nd['p'].srcC) else (lds_lat if nodes[a]['dsr'] else 4))
            for a in readers.get(r, []):
                if a != i: edge(a, i, 8 if nodes[a]['kind'] == 'mfma' else 1)
        for r in nd['src']: readers.setdefault(r, []).append(i)
        for r in nd['dst']: lastw[r] = i; readers[r] = [i] if r in nd['src'] else []
        if memdep is None or memdep(nd['txt']):
            if nd['dsw']:
                if lastdsw is not None: edge(lastdsw, i, 1)
                for a in dsr_since: edge(a, i, 1)
                lastdsw = i; dsr_since = []
            if nd['dsr']:
                if lastdsw is not None and lastdsw != i: edge(lastdsw, i, 1)
                dsr_since.append(i)
        if nd['vm']:
            if lastvm is not None: edge(lastvm, i, 1)
            lastvm = i
    prio = [0]*n
    for i in range(n-1, -1, -1):
        own = (nodes[i]['mf']*4 if nodes[i]['mf'] else 4*nodes[i]['n'])
        prio[i] = own + max([lat + prio[j] - own for j, lat in succ[i]] + [0]) if succ[i] else own
    ready_t = [0]*n; left = npred[:]; ready = [i for i in range(n) if left[i] == 0]
    t = 0; pipe = 0; ldsq = 0; out = []; lastmf = 0
    while ready:
        best = None
        for i in ready:
            nd = nodes[i]
            st = max(t, ready_t[i])
            if nd['mf']: st = max(st, pipe)
            if nd['dsr'] or nd['dsw']: st = max(st, ldsq - 24)
            key = (max(st - t, 0) > 0, st, -(1 if nd['mf'] else 0), -prio[i])
            fl = 1 if (filler and filler(nd['txt'])) else 0
            if st <= t:
                if nd['mf']: key = (0, 0, (0 if (nd['mf'] != lastmf) else 1), -prio[i], i)
                else: key = (0, 1, 1 - fl, -prio[i], i)
            else: key = (1, st, 0, -prio[i], i)
            if best is None or key < best[0]: best = (key, i, st)
        _, i, st = best
        nd = nodes[i]; ready.remove(i); out.append(nd['txt'])
        t = st
        if nd['mf']: pipe = t + nd['mf']*4; tn = t + 8; lastmf = nd['mf']
        else: tn = t + 4*nd['n']
        if nd['dsr'] or nd['dsw']: ldsq = max(ldsq, t) + 16
        for j, lat in succ[i]:
            ready_t[j] = max(ready_t[j], t + lat); left[j] -= 1
            if left[j] == 0: ready.append(j)
        t = tn
    if verbose: print('list_schedule: estimated', t, 'cycles for', n, 'items')
    assert len(out) == n
    return out
```

```python
from common import *
def pr(x): return f'v[{x}:{x+1}]'
def q4(x): return f'v[{x}:{x+3}]'
def interleave(a, b_):
    out = []; n = len(a); m = len(b_); k = 0
    for i, x in enumerate(a):
        out.append(x); tgt = (m*(i+1))//n
        out += b_[k:tgt]; k = tgt
    return out
import os
TMAJOR = os.environ.get('TMAJOR', 'row')
ZMAJOR = os.environ.get('ZMAJOR', 'tile')
def job_p2(b, s_k1, s_ct, stflag='sc1', wmode='wp'):
    EP = 80; E2 = 256*EP
    if os.environ.get('P2PRIO'): b('s_setprio 3')
    srd(b, 44, T_BASE[0], SZ_T, T_BASE[1]); srd(b, 48, S_WS, SZ_T, WS_Z)
    b('v_and_b32 v1, 63, v0'); b('v_and_b32 v2, 15, v1'); b('v_lshrrev_b32 v3, 4, v1')
    b('v_lshrrev_b32 v4, 6, v0'); b('s_nop 0'); b('v_readfirstlane_b32 s60, v4')
    b(f's_mov_b32 s61, s{s_k1}'); b(f's_mov_b32 s62, s{s_ct}')
    b('s_lshl_b32 s72, s61, 8'); b('s_lshl_b32 s73, s60, 2'); b('s_add_u32 s72, s72, s73'); b('s_mul_i32 s72, s72, 1344')
    b('s_lshl_b32 s73, s62, 6'); b('s_add_u32 s72, s72, s73')
    for r in range(1, 4): b(f's_add_u32 s{72+r}, s72, {r*16*1344}')
    b(f'v_mul_u32_u24 v5, {64*1344}, v3'); b('v_lshlrev_b32 v6, 2, v2'); b('v_add_u32 v5, v5, v6')
    DAT = 8
    if wmode == 'wp': srd(b, 64, S_WS, SZ_T, WS_WP)
    b('s_mul_i32 s82, s61, 21'); b('s_add_u32 s82, s82, s62'); b('s_lshl_b32 s82, s82, 14'); b('s_lshl_b32 s83, s60, 8'); b('s_add_u32 s82, s82, s83')
    b('v_lshlrev_b32 v7, 12, v3'); b('v_lshl_add_u32 v7, v2, 2, v7')
    for j in range(4):
        for r in range(4):
            if TMAJOR == 'tile': b(f'buffer_load_dword v{DAT+4*j+r}, v7, s[44:47], s82 offen offset:{r*1024 + j*64}')
            else: b(f'buffer_load_dword v{DAT+4*j+r}, v5, s[44:47], s{72+r} offen offset:{j*1344}')
    WP = 112
    WRR, WIR = 112, 184
    WL = []
    if wmode == 'wp':
        for j in range(4):
            for r in range(4):
                b(f'buffer_load_dword v{WP+4*j+r}, v7, s[64:67], s82 offen offset:{r*1024 + j*64}')
    else:
        srd(b, 64, S_WR, 2048*642); srd(b, 68, S_WI, 2048*642)
        b('s_lshl_b32 s78, s62, 4'); b('v_add_u32 v7, s78, v2')
        b('v_mul_u32_u24 v200, 3121, v7'); b('v_lshrrev_b32 v200, 16, v200')
        b('v_mul_u32_u24 v201, 19, v200'); b('v_add_u32 v7, v7, v201')
        b('v_cmp_le_u32 vcc, 8, v200')
        b('v_sub_u32 v200, 640, v7'); b('v_cndmask_b32 v7, v7, v200, vcc'); b('v_lshlrev_b32 v7, 1, v7')
        b(f'v_mul_u32_u24 v201, {512*642}, v3'); b('v_add_u32 v201, v201, v7')
        b('s_lshl_b32 s78, s60, 5'); b('s_add_u32 s78, s78, s61'); b('s_mul_i32 s78, s78, 642')
        for j in range(4):
            for r in range(4):
                grp = [f's_add_u32 s79, s78, {(8*j + 128*r)*642}']
                grp.append(f'buffer_load_ushort v{WRR+4*j+r}, v201, s[64:67], s79 offen')
                grp.append(f'buffer_load_ushort v{WIR+4*j+r}, v201, s[68:71], s79 offen')
                WL.append(grp)
    M1, M4, M2, M3 = 24, 32, 40, 72
    TR = []
    t = TR.append
    t('v_cvt_f32_u32 v104, v2')
    t('v_lshlrev_b32 v105, 2, v3'); t('v_cvt_f32_u32 v105, v105')
    t('s_nop 0')
    tog = [0]
    def angles(dst, fwd):
        for r in range(4):
            th = 108 if (tog[0] & 1) == 0 else 111
            tog[0] += 1
            cc, ss = (109, 110) if th == 108 else (212, 213)
            if r == 0: src = 'v107'
            else: t(f'v_fmamk_f32 v{th}, v106, {fbits(float(r))}, v107'); src = f'v{th}'
            t(f'v_cos_f32 v{cc}, {src}'); t(f'v_sin_f32 v{ss}, {src}')
            if fwd: t(f'v_cvt_pk_bf16_f32 v{dst+r}, v{cc}, v{ss}'); t(f'v_cvt_pk_bf16_f32 v{dst+4+r}, -v{ss}, v{cc}')
            else: t(f'v_cvt_pk_bf16_f32 v{dst+r}, v{cc}, -v{ss}'); t(f'v_cvt_pk_bf16_f32 v{dst+4+r}, v{ss}, v{cc}')
    return_dummy = None
    b('v_cvt_f32_u32 v210, s61')
    b('s_lshl_b32 s83, s60, 5'); b('s_add_u32 s83, s83, s61'); b('v_cvt_f32_u32 v211, s83')
    t(f'v_fmamk_f32 v106, v104, {fbits(8.0)}, v210'); t(f'v_mul_f32 v106, {fbits(1/128)}, v106'); t('v_mul_f32 v107, v105, v106'); angles(M1, True)
    for j in range(4):
        t(f'v_fmamk_f32 v106, v104, {fbits(128.0)}, v211'); t(f'v_add_f32 v106, {fbits(8.0*j)}, v106' if j else 'v_nop'); t(f'v_mul_f32 v106, {fbits(1/2048)}, v106')
        t('v_mul_f32 v107, v105, v106'); angles(M2+8*j, True)
    nA = len(TR)
    for j in range(4):
        t(f'v_mul_f32 v106, {fbits(1/16)}, v104'); t(f'v_add_f32 v107, {fbits(8.0*j)}, v211' if j else 'v_mov_b32 v107, v211')
        t('v_mul_f32 v107, v107, v104'); t(f'v_mul_f32 v107, {fbits(1/2048)}, v107'); t('v_fmac_f32 v107, v105, v106'); angles(M3+8*j, False)
    t(f'v_mul_f32 v106, {fbits(1/16)}, v104'); t('v_mul_f32 v107, v210, v104'); t(f'v_mul_f32 v107, {fbits(1/128)}, v107'); t('v_fmac_f32 v107, v105, v106'); angles(M4, False)
    TA = [x for x in TR[:nA] if x != 'v_nop']; TB = [x for x in TR[nA:] if x != 'v_nop']
    def mix(groups, instrs):
        n = max(len(groups), 1); m = len(instrs); k = 0
        for i in range(n):
            if i < len(groups):
                for x in groups[i]: b(x)
            tgt = (m*(i+1))//n
            for x in instrs[k:tgt]: b(x)
            k = tgt
    b(f'v_mul_u32_u24 v208, {64*EP}, v3'); b(f'v_mul_u32_u24 v209, {EP}, v2'); b('v_add_u32 v208, v208, v209')
    b('s_lshl_b32 s81, s60, 4'); b('v_add_u32 v208, s81, v208')
    b(f's_mul_i32 s81, s60, {64*EP}'); b('v_lshlrev_b32 v106, 4, v3'); b('v_add_u32 v209, v209, v106'); b('v_add_u32 v209, s81, v209')
    nW1 = 10; nW2 = 13
    mix(WL[:nW1], TA)
    ACC = 136; EO = 168
    def stage(A_of_j, Bsrc_of_j):
        for j in range(4):
            a = A_of_j(j); d = ACC + 8*j
            b(f'v_mfma_f32_16x16x32_bf16 {q4(d)}, {q4(a)}, {q4(Bsrc_of_j(j))}, 0')
            b(f'v_mfma_f32_16x16x32_bf16 {q4(d+4)}, {q4(a+4)}, {q4(Bsrc_of_j(j))}, 0')
    b('STAMP 0 vmcnt(%d)' % (16 if wmode == 'wp' else 20))
    stage(lambda j: M1, lambda j: DAT+4*j)
    for j in range(4):
        for r in range(4): b(f'v_cvt_pk_bf16_f32 v{EO+4*r+j}, v{ACC+8*j+r}, v{ACC+8*j+4+r}')
    for r in range(4): b(f'ds_write_b128 v208, {q4(EO+4*r)} offset:{r*16*EP}')
    h = len(TB)//3
    mix(WL[nW1:nW2], TB[:h])
    b('s_barrier')
    for j in range(4): b(f'ds_read_b128 {q4(DAT+4*j)}, v209 offset:{j*16*EP}')
    mix(WL[nW2:], TB[h:2*h])
    b('STAMP 1')
    stage(lambda j: M2+8*j, lambda j: DAT+4*j)
    for x in TB[2*h:]: b(x)
    b('STAMP 2 vmcnt(0)')
    TM = 128; WR = 132; WI = 134
    for j in range(4):
        for h in range(2):
            i0 = 4*j + 2*h
            for q in range(2):
                if wmode == 'wp': b(f'v_lshlrev_b32 v{WR+q}, 16, v{WP+i0+q}'); b(f'v_and_b32 v{WI+q}, 0xffff0000, v{WP+i0+q}')
                else: b(f'v_lshlrev_b32 v{WR+q}, 16, v{WRR+i0+q}'); b(f'v_lshlrev_b32 v{WI+q}, 16, v{WIR+i0+q}')
            dr, di = ACC+8*j+2*h, ACC+8*j+4+2*h
            b(f'v_pk_mul_f32 {pr(TM)}, {pr(dr)}, {pr(WR)}'); b(f'v_pk_mul_f32 {pr(TM+2)}, {pr(dr)}, {pr(WI)}')
            b(f'v_pk_fma_f32 {pr(TM)}, {pr(di)}, {pr(WI)}, {pr(TM)} neg_lo:[1,0,0] neg_hi:[1,0,0]')
            b(f'v_pk_fma_f32 {pr(TM+2)}, {pr(di)}, {pr(WR)}, {pr(TM+2)}')
            b(f'v_cvt_pk_bf16_f32 v{DAT+i0}, v{TM}, v{TM+2}'); b(f'v_cvt_pk_bf16_f32 v{DAT+i0+1}, v{TM+1}, v{TM+3}')
    stage(lambda j: M3+8*j, lambda j: DAT+4*j)
    for j in range(4):
        for r in range(4): b(f'v_cvt_pk_bf16_f32 v{EO+4*r+j}, v{ACC+8*j+r}, v{ACC+8*j+4+r}')
    for r in range(4): b(f'ds_write_b128 v208, {q4(EO+4*r)} offset:{E2 + r*16*EP}')
    b('s_barrier')
    for j in range(4): b(f'ds_read_b128 {q4(DAT+4*j)}, v209 offset:{E2 + j*16*EP}')
    b('STAMP 3')
    stage(lambda j: M4, lambda j: DAT+4*j)
    b('s_mul_i32 s81, s60, 4608'); b('v_mul_u32_u24 v208, 1088, v3'); b('v_lshl_add_u32 v208, v2, 2, v208'); b('v_add_u32 v208, s81, v208')
    for j in range(4):
        for r in range(4):
            b(f'v_cvt_pk_bf16_f32 v{EO+4*j+r}, v{ACC+8*j+r}, v{ACC+8*j+4+r}')
            b(f'ds_write_b32 v208, v{EO+4*j+r} offset:{r*272 + j*64}')
    b('v_mul_u32_u24 v209, 272, v3'); b('v_lshl_add_u32 v209, v2, 4, v209'); b('v_add_u32 v209, s81, v209')
    for i in range(4): b(f'ds_read_b128 {q4(DAT+4*i)}, v209 offset:{i*1088}')
    if ZMAJOR == 'tile':
        b('s_mul_i32 s82, s61, 21'); b('s_add_u32 s82, s82, s62'); b('s_lshl_b32 s82, s82, 14'); b('s_lshl_b32 s83, s60, 8'); b('s_add_u32 s82, s82, s83')
        b('v_lshlrev_b32 v200, 10, v3'); b('v_lshl_add_u32 v200, v2, 4, v200')
        for i in range(4):
            b(f's_add_u32 s83, s82, {i*4096}')
            b(f'buffer_store_dwordx4 {q4(DAT+4*i)}, v200, s[48:51], s83 offen {stflag}')
    else:
        b('v_lshrrev_b32 v200, 2, v2'); b('v_lshl_add_u32 v200, v3, 4, v200'); b('v_mul_u32_u24 v200, 1344, v200'); b('v_and_b32 v201, 3, v2'); b('v_lshl_add_u32 v200, v201, 4, v200')
        for i in range(4):
            b(f's_add_u32 s83, s72, {i*64*1344}')
            b(f'buffer_store_dwordx4 {q4(DAT+4*i)}, v200, s[48:51], s83 offen {stflag}')
    b('s_endpgm')
```

```python
from common import *
def pr(x): return f'v[{x}:{x+1}]'
def q4(x): return f'v[{x}:{x+3}]'
import os
TMAJOR = os.environ.get('TMAJOR', 'row')
P2TAB = os.environ.get('P2TAB', 'trig')
def job_p2(b, s_k1, s_ct, stflag='sc1', ntile=2, wmode='gather'):
    EP = 80; E2 = 256*EP; STG = 40960
    srd(b, 44, S_WS, SZ_T, WS_T); srd(b, 48, S_WS, SZ_T, WS_Z)
    b('v_and_b32 v1, 63, v0'); b('v_and_b32 v2, 15, v1'); b('v_lshrrev_b32 v3, 4, v1')
    b('v_lshrrev_b32 v4, 6, v0'); b('s_nop 0'); b('v_readfirstlane_b32 s60, v4')
    b(f's_mov_b32 s61, s{s_k1}'); b(f's_mov_b32 s62, s{s_ct}')
    b('s_lshl_b32 s72, s61, 8'); b('s_lshl_b32 s73, s60, 2'); b('s_add_u32 s72, s72, s73'); b('s_mul_i32 s72, s72, 1344')
    b('s_lshl_b32 s73, s62, 6'); b('s_add_u32 s72, s72, s73')
    for r in range(1, 4): b(f's_add_u32 s{72+r}, s72, {r*16*1344}')
    b(f'v_mul_u32_u24 v5, {64*1344}, v3'); b('v_lshlrev_b32 v6, 2, v2'); b('v_add_u32 v5, v5, v6')
    DAT = 8; DATB = 214
    if TMAJOR == 'tile':
        b('s_mul_i32 s88, s61, 21'); b('s_add_u32 s88, s88, s62'); b('s_lshl_b32 s88, s88, 14'); b('s_lshl_b32 s89, s60, 8'); b('s_add_u32 s88, s88, s89'); b('s_add_u32 s89, s88, 16384')
        b('v_lshlrev_b32 v5, 12, v3'); b('v_lshl_add_u32 v5, v2, 2, v5')
    for j in range(4):
        for r in range(4):
            if TMAJOR == 'tile': b(f'buffer_load_dword v{DAT+4*j+r}, v5, s[44:47], s88 offen offset:{r*1024 + j*64}')
            else: b(f'buffer_load_dword v{DAT+4*j+r}, v5, s[44:47], s{72+r} offen offset:{j*1344}')
    WRR, WIR = 112, 184
    WPA, WPB = 112, 184
    if wmode == 'wp':
        srd(b, 64, S_WS, SZ_T, WS_WP)
        b('s_mul_i32 s86, s61, 21'); b('s_add_u32 s86, s86, s62'); b('s_lshl_b32 s86, s86, 14'); b('s_lshl_b32 s87, s60, 8'); b('s_add_u32 s86, s86, s87')
        b('v_lshlrev_b32 v201, 12, v3'); b('v_lshl_add_u32 v201, v2, 2, v201')
        def wgroups(tl): return []
    else:
        srd(b, 64, S_WR, 2048*642); srd(b, 68, S_WI, 2048*642)
        for tl in range(ntile):
            b('s_lshl_b32 s78, s62, 4'); b('v_add_u32 v7, s78, v2')
            if tl: b('v_add_u32 v7, 16, v7')
            b('v_mul_u32_u24 v200, 3121, v7'); b('v_lshrrev_b32 v200, 16, v200')
            b('v_cmp_le_u32 vcc, 8, v200')
            b('v_mul_u32_u24 v200, 19, v200'); b('v_add_u32 v7, v7, v200')
            b('v_sub_u32 v200, 640, v7'); b('v_cndmask_b32 v7, v7, v200, vcc'); b('v_lshlrev_b32 v7, 1, v7')
            b(f'v_mul_u32_u24 v{201+tl}, {512*642}, v3'); b(f'v_add_u32 v{201+tl}, v{201+tl}, v7')
        b('s_lshl_b32 s78, s60, 5'); b('s_add_u32 s78, s78, s61'); b('s_mul_i32 s78, s78, 642')
        def wgroups(tl):
            WL = []
            for j in range(4):
                for r in range(4):
                    WL.append([f's_add_u32 s79, s78, {(8*j + 128*r)*642}',
                               f'buffer_load_ushort v{WRR+4*j+r}, v{201+tl}, s[64:67], s79 offen',
                               f'buffer_load_ushort v{WIR+4*j+r}, v{201+tl}, s[68:71], s79 offen'])
            return WL
    if ntile == 2:
        b('v_add_u32 v6, 64, v5')
        for j in range(4):
            for r in range(4):
                if TMAJOR == 'tile': b(f'buffer_load_dword v{DATB+4*j+r}, v5, s[44:47], s89 offen offset:{r*1024 + j*64}')
                else: b(f'buffer_load_dword v{DATB+4*j+r}, v6, s[44:47], s{72+r} offen offset:{j*1344}')
    if wmode == 'wp':
        for tl in range(ntile):
            if tl: b('s_add_u32 s87, s86, 16384')
            for j in range(4):
                for r in range(4): b(f'buffer_load_dword v{(WPA, WPB)[tl]+4*j+r}, v201, s[64:67], s{86+tl} offen offset:{r*1024 + j*64}')
    M1, M4, M2, M3 = 24, 32, 40, 72
    if P2TAB == 'trig':
        TR = []
        t = TR.append
        t('v_cvt_f32_u32 v104, v2'); t('v_lshlrev_b32 v105, 2, v3'); t('v_cvt_f32_u32 v105, v105')
        def angles(dst, fwd):
            ths = ['v107', 'v108', 'v111', 'v108']
            t(f'v_fmamk_f32 v108, v106, {fbits(1.0)}, v107'); t(f'v_fmamk_f32 v111, v106, {fbits(2.0)}, v107')
            cs = [(109, 110), (212, 213)]
            t(f'v_cos_f32 v109, v107'); t('v_sin_f32 v110, v107')
            for r in range(4):
                cc, ss = cs[r & 1]
                if r < 3:
                    nc, ns = cs[(r+1) & 1]
                    src = ths[r+1]
                    t(f'v_cos_f32 v{nc}, {src}'); t(f'v_sin_f32 v{ns}, {src}')
                    if r == 0: t(f'v_fmamk_f32 v108, v106, {fbits(3.0)}, v107')
                if fwd: t(f'v_cvt_pk_bf16_f32 v{dst+r}, v{cc}, v{ss}'); t(f'v_cvt_pk_bf16_f32 v{dst+4+r}, -v{ss}, v{cc}')
                else: t(f'v_cvt_pk_bf16_f32 v{dst+r}, v{cc}, -v{ss}'); t(f'v_cvt_pk_bf16_f32 v{dst+4+r}, v{ss}, v{cc}')
        b('v_cvt_f32_u32 v210, s61')
        b('s_lshl_b32 s83, s60, 5'); b('s_add_u32 s83, s83, s61'); b('v_cvt_f32_u32 v211, s83')
        t(f'v_fmamk_f32 v106, v104, {fbits(8.0)}, v210'); t(f'v_mul_f32 v106, {fbits(1/128)}, v106'); t('v_mul_f32 v107, v105, v106'); angles(M1, True)
        for j in range(4):
            t(f'v_fmamk_f32 v106, v104, {fbits(128.0)}, v211')
            if j: t(f'v_add_f32 v106, {fbits(8.0*j)}, v106')
            t(f'v_mul_f32 v106, {fbits(1/2048)}, v106'); t('v_mul_f32 v107, v105, v106'); angles(M2+8*j, True)
        for j in range(4):
            t(f'v_mul_f32 v106, {fbits(1/16)}, v104'); t(f'v_add_f32 v107, {fbits(8.0*j)}, v211' if j else 'v_mov_b32 v107, v211')
            t('v_mul_f32 v107, v107, v104'); t(f'v_mul_f32 v107, {fbits(1/2048)}, v107'); t('v_fmac_f32 v107, v105, v106'); angles(M3+8*j, False)
        t(f'v_mul_f32 v106, {fbits(1/16)}, v104'); t('v_mul_f32 v107, v210, v104'); t(f'v_mul_f32 v107, {fbits(1/128)}, v107'); t('v_fmac_f32 v107, v105, v106'); angles(M4, False)
        TA0 = TR; TA = []; TB = []
    else:
        srd(b, 52, S_WS, SZ_TAB, WS_TAB)
        b('v_lshlrev_b32 v104, 4, v1'); b(f's_mul_i32 s76, s61, {34*1024}')
        b(f'buffer_load_dwordx4 {q4(M1)}, v104, s[52:55], s76 offen')
        b('s_lshl_b32 s77, s60, 12'); b('s_add_u32 s77, s77, s76'); b('s_add_u32 s77, s77, 2048')
        for j in range(4): b(f'buffer_load_dwordx4 {q4(M2+8*j)}, v104, s[52:55], s77 offen offset:{j*1024}')
        b('s_add_u32 s77, s77, 16384')
        for j in range(4): b(f'buffer_load_dwordx4 {q4(M3+8*j)}, v104, s[52:55], s77 offen offset:{j*1024}')
        b(f'buffer_load_dwordx4 {q4(M4)}, v104, s[52:55], s76 offen offset:1024')
        b('s_mov_b32 s84, 0x8000'); b('s_mov_b32 s85, 0x80000000')
        def fwd(m): return [x for r in range(4) for x in (f'v_alignbit_b32 v{m+4+r}, v{m+r}, v{m+r}, 16', f'v_xor_b32 v{m+4+r}, s84, v{m+4+r}')]
        def inv(m): return [x for r in range(4) for x in (f'v_alignbit_b32 v{m+4+r}, v{m+r}, v{m+r}, 16', f'v_xor_b32 v{m+r}, s85, v{m+r}')]
        TA0 = fwd(M1); TA = [x for j in range(4) for x in fwd(M2+8*j)]; TB = [x for j in range(4) for x in inv(M3+8*j)] + inv(M4)
    def mix(groups, instrs):
        n = max(len(groups), 1); m = len(instrs); k = 0
        for i in range(n):
            if i < len(groups):
                for x in groups[i]: b(x)
            tgt = (m*(i+1))//n
            for x in instrs[k:tgt]: b(x)
            k = tgt
    b(f'v_mul_u32_u24 v208, {64*EP}, v3'); b(f'v_mul_u32_u24 v209, {EP}, v2'); b('v_add_u32 v208, v208, v209')
    b('s_lshl_b32 s81, s60, 4'); b('v_add_u32 v208, s81, v208')
    b(f's_mul_i32 s81, s60, {64*EP}'); b('v_lshlrev_b32 v106, 4, v3'); b('v_add_u32 v209, v209, v106'); b('v_add_u32 v209, s81, v209')
    b(f's_mul_i32 s81, s60, 4608'); b(f's_add_u32 s81, s81, {STG}')
    b('v_mul_u32_u24 v203, 1088, v3'); b('v_lshl_add_u32 v203, v2, 2, v203'); b('v_add_u32 v203, s81, v203')
    b('v_mul_u32_u24 v204, 272, v3'); b('v_lshl_add_u32 v204, v2, 4, v204'); b('v_add_u32 v204, s81, v204')
    b('v_lshlrev_b32 v205, 10, v3'); b('v_lshl_add_u32 v205, v2, 4, v205')
    b('s_mul_i32 s82, s61, 21'); b('s_add_u32 s82, s82, s62'); b('s_lshl_b32 s82, s82, 14'); b('s_lshl_b32 s83, s60, 8'); b('s_add_u32 s82, s82, s83')
    ACC = 136; EO = 168; TM = 128; WR = 132; WI = 134
    def stage(A_of_j, B_):
        return [x for j in range(4) for x in (f'v_mfma_f32_16x16x32_bf16 {q4(ACC+8*j)}, {q4(A_of_j(j))}, {q4(B_+4*j)}, 0',
                                              f'v_mfma_f32_16x16x32_bf16 {q4(ACC+8*j+4)}, {q4(A_of_j(j)+4)}, {q4(B_+4*j)}, 0')]
    def pack_write(off):
        L = []
        for r in range(4):
            for j in range(4): L.append(f'v_cvt_pk_bf16_f32 v{EO+4*r+j}, v{ACC+8*j+r}, v{ACC+8*j+4+r}')
            L.append(f'ds_write_b128 v208, {q4(EO+4*r)} offset:{off + r*16*EP}')
        return L
    def wmul(tl):
        L = []
        for j in range(4):
            for h in range(2):
                i0 = 4*j + 2*h
                for q in range(2):
                    if wmode == 'wp':
                        wp = (WPA, WPB)[tl] + i0 + q
                        L.append(f'v_lshlrev_b32 v{WR+q}, 16, v{wp}'); L.append(f'v_and_b32 v{WI+q}, 0xffff0000, v{wp}')
                    else:
                        L.append(f'v_lshlrev_b32 v{WR+q}, 16, v{WRR+i0+q}'); L.append(f'v_lshlrev_b32 v{WI+q}, 16, v{WIR+i0+q}')
                dr, di = ACC+8*j+2*h, ACC+8*j+4+2*h
                L += [f'v_pk_mul_f32 {pr(TM)}, {pr(dr)}, {pr(WR)}', f'v_pk_mul_f32 {pr(TM+2)}, {pr(dr)}, {pr(WI)}',
                      f'v_pk_fma_f32 {pr(TM)}, {pr(di)}, {pr(WI)}, {pr(TM)} neg_lo:[1,0,0] neg_hi:[1,0,0]',
                      f'v_pk_fma_f32 {pr(TM+2)}, {pr(di)}, {pr(WR)}, {pr(TM+2)}',
                      f'v_cvt_pk_bf16_f32 v{DAT+i0}, v{TM}, v{TM+2}', f'v_cvt_pk_bf16_f32 v{DAT+i0+1}, v{TM+1}, v{TM+3}']
        return L
    def tile(tl):
        src = DAT if tl == 0 else DATB
        WL = wgroups(tl)
        if tl == 0:
            for g in WL[:6]:
                for x in g: b(x)
            b('STAMP 0')
            for x in TA0: b(x)
            b('STAMP 1')
            b('STAMP 2 vmcnt(48)')
        for x in stage(lambda j: M1, src): b(x)
        for x in pack_write(0): b(x)
        if tl == 0: mix(WL[6:11], TA)
        b('s_barrier')
        for j in range(4): b(f'ds_read_b128 {q4(DAT+4*j)}, v209 offset:{j*16*EP}')
        if tl == 0: mix(WL[11:], TB[:len(TB)//2])
        for x in stage(lambda j: M2+8*j, DAT): b(x)
        if tl == 0:
            for x in TB[len(TB)//2:]: b(x)
        for x in wmul(tl): b(x)
        nxt = wgroups(1) if (tl == 0 and ntile == 2) else []
        rest = stage(lambda j: M3+8*j, DAT) + pack_write(E2)
        mix(nxt[:8], rest)
        b('s_barrier')
        for j in range(4): b(f'ds_read_b128 {q4(DAT+4*j)}, v209 offset:{E2 + j*16*EP}')
        rest = stage(lambda j: M4, DAT)
        for j in range(4):
            for r in range(4):
                rest += [f'v_cvt_pk_bf16_f32 v{EO+4*j+r}, v{ACC+8*j+r}, v{ACC+8*j+4+r}', f'ds_write_b32 v203, v{EO+4*j+r} offset:{r*272 + j*64}']
        mix(nxt[8:], rest)
        for i in range(4): b(f'ds_read_b128 {q4(EO+4*i)}, v204 offset:{i*1088}')
        for i in range(4):
            b(f's_add_u32 s83, s82, {i*4096 + tl*16384}')
            b(f'buffer_store_dwordx4 {q4(EO+4*i)}, v205, s[48:51], s83 offen {stflag}')
        if tl == 0: b('STAMP 3')
    tile(0)
    if ntile == 2:
        b('s_cmp_eq_u32 s62, 20'); b('s_cbranch_scc1 P2_DONE ; NOFLUSH')
        tile(1)
        b('P2_DONE: ; NOFLUSH')
    b('s_endpgm')
```

```python
from common import *
C8 = 0.70710678118654752
def pr(x): return f'v[{x}:{x+1}]'
def q4(x): return f'v[{x}:{x+3}]'
NEG = 'neg_lo:[0,1] neg_hi:[0,1]'
import os
ZMAJOR = os.environ.get('ZMAJOR', 'row')
def job_p3(b, s_idx, stflag=''):
    RP = 3840
    ZL = 32768
    srd(b, 44, S_WS, SZ_T, WS_Z); srd(b, 48, S_OUT, 2048*2560)
    if ZMAJOR == 'tile':
        b('v_lshrrev_b32 v90, 2, v0'); b('v_lshlrev_b32 v90, 14, v90'); b('v_and_b32 v91, 3, v0'); b('v_lshl_add_u32 v90, v91, 4, v90')
        b(f's_lshl_b32 s75, s{s_idx}, 6')
        b('v_mov_b32 v91, 0x80000000'); b('v_cmp_gt_u32 vcc, 160, v0'); b('v_cndmask_b32 v91, v91, v90, vcc')
        b('buffer_load_dwordx4 v[92:95], v90, s[44:47], s75 offen')
        b(f's_add_u32 s76, s75, {64*16384}'); b('buffer_load_dwordx4 v[96:99], v90, s[44:47], s76 offen')
        b(f's_add_u32 s76, s75, {128*16384}'); b('buffer_load_dwordx4 v[100:103], v91, s[44:47], s76 offen')
    b('v_and_b32 v1, 63, v0'); b('v_and_b32 v2, 15, v1'); b('v_lshrrev_b32 v3, 4, v1')
    b('v_lshrrev_b32 v4, 6, v0'); b('s_nop 0'); b('v_readfirstlane_b32 s60, v4')
    b('v_mul_u32_u24 v50, 336, v3'); b('v_lshlrev_b32 v51, 2, v2'); b('v_add_u32 v50, v50, v51')
    b('v_mov_b32 v52, 0x80000000'); b('v_cmp_gt_u32 vcc, 5, v2'); b('v_cndmask_b32 v52, v52, v50, vcc')
    b('s_sub_u32 s70, 8, s60'); b('s_cmp_eq_u32 s60, 0'); b('s_cselect_b32 s70, 4, s70')
    if ZMAJOR != 'tile':
        b(f's_lshl_b32 s71, s60, 8'); b(f's_add_u32 s71, s71, s{s_idx}'); b('s_mul_i32 s71, s71, 1344')
        b('s_sub_u32 s72, s70, s60'); b(f's_mul_i32 s72, s72, {256*1344}')
        b('s_cmp_eq_u32 s60, 0'); b('s_cselect_b32 s73, 0, s72'); b('s_cselect_b32 s74, s72, 0')
        b('v_cmp_le_u32 vcc, 32, v1')
        b('v_mov_b32 v53, s73'); b('v_cndmask_b32 v53, 0, v53, vcc')
        b('v_mov_b32 v54, s73'); b('v_cndmask_b32 v54, v54, 0, vcc'); b('v_add_u32 v54, s74, v54')
        b('v_add_u32 v55, v50, v53'); b('v_add_u32 v47, v52, v53'); b('v_add_u32 v48, v50, v54'); b('v_add_u32 v49, v52, v54')
    if ZMAJOR == 'tile':
        b('s_sub_u32 s72, s70, s60'); b('s_mul_i32 s72, s72, 1344')
        b('s_cmp_eq_u32 s60, 0'); b('s_cselect_b32 s73, 0, s72'); b('s_cselect_b32 s74, s72, 0')
        b('v_cmp_le_u32 vcc, 32, v1')
        b('v_mov_b32 v53, s73'); b('v_cndmask_b32 v53, 0, v53, vcc')
        b('v_mov_b32 v54, s73'); b('v_cndmask_b32 v54, v54, 0, vcc'); b('v_add_u32 v54, s74, v54')
        b('s_mul_i32 s71, s60, 1344'); b(f's_add_u32 s71, s71, {ZL}')
        b('v_add_u32 v50, s71, v50')
        b('v_add_u32 v104, v50, v53'); b('v_add_u32 v106, v50, v54')
        b(f'v_mov_b32 v107, {ZL + 10752 - 64}'); b('v_cmp_gt_u32 vcc, 5, v2')
        b('v_cndmask_b32 v105, v107, v104, vcc'); b('v_cndmask_b32 v107, v107, v106, vcc')
    ZF = 8
    AZ = [[55, 47], [48, 49]] if ZMAJOR != 'tile' else [[104, 105], [106, 107]]
    if ZMAJOR == 'tile':
        pass
    else:
        for j in range(2):
            for t in range(2):
                for r in range(4):
                    b(f'buffer_load_dword v{ZF+(2*j+t)*4+r}, v{AZ[j][t]}, s[44:47], s71 offen offset:{84*r+64*t}')
    SA, TW, SB = 24, 32, 56
    b('v_cvt_f32_u32 v80, v2'); b('v_lshlrev_b32 v81, 2, v3'); b('v_cvt_f32_u32 v82, v81')
    b(f'v_mul_f32 v83, {fbits(1/16)}, v80'); b('v_mul_f32 v84, v82, v83')
    b('v_lshrrev_b32 v88, 5, v1'); b('v_lshlrev_b32 v88, 31, v88')
    for r in range(4):
        if r: b(f'v_fmamk_f32 v85, v83, {fbits(float(r))}, v84')
        src = 'v85' if r else 'v84'
        b(f'v_cos_f32 v86, {src}'); b(f'v_sin_f32 v87, {src}')
        b(f'v_cvt_pk_bf16_f32 v{SA+r}, v86, -v87'); b(f'v_cvt_pk_bf16_f32 v{SA+4+r}, v87, v86')
        b(f'v_xor_b32 v{SA+r}, v{SA+r}, v88'); b(f'v_xor_b32 v{SA+4+r}, v{SA+4+r}, v88')
    sc = 1.0/(2048*640)
    b('v_cmp_eq_u32 s[82:83], 0, v3'); b('v_cmp_ge_u32 s[84:85], 1, v3')
    b(f'v_mul_f32 v83, {fbits(1/640)}, v80')
    for t in range(2):
        b(f'v_add_f32 v84, {fbits(16.0*t)}, v82' if t else 'v_mov_b32 v84, v82'); b('v_mul_f32 v84, v84, v83')
        for r in range(4):
            if r: b(f'v_fmamk_f32 v85, v83, {fbits(float(r))}, v84')
            src = 'v85' if r else 'v84'
            b(f'v_cos_f32 v86, {src}'); b(f'v_sin_f32 v87, {src}')
            b(f'v_mov_b32 v88, {fbits(2*sc)}')
            if t == 0 and r == 0:
                b(f'v_mov_b32 v89, {fbits(sc)}'); b('v_cndmask_b32 v88, v88, v89, s[82:83]')
            if t == 1:
                if r == 0:
                    b(f'v_mov_b32 v89, {fbits(sc)}'); b('v_cndmask_b32 v88, v89, v88, s[82:83]')
                    b('v_cndmask_b32 v88, 0, v88, s[84:85]')
                else: b('v_cndmask_b32 v88, 0, v88, s[82:83]')
            b(f'v_mul_f32 v{TW+8*t+r}, v86, v88'); b(f'v_mul_f32 v{TW+8*t+4+r}, v87, v88')
    b('v_cmp_gt_u32 s[86:87], 8, v2')
    b('s_and_b64 s[88:89], s[86:87], s[82:83]'); b('s_and_b64 s[76:77], s[86:87], s[84:85]')
    for tau in range(3):
        b(f'v_add_f32 v83, {fbits(16.0*tau)}, v80' if tau else 'v_mov_b32 v83, v80'); b(f'v_mul_f32 v83, {fbits(1/40)}, v83')
        for t in range(2):
            b(f'v_add_f32 v84, {fbits(16.0*t)}, v82' if t else 'v_mov_b32 v84, v82'); b('v_mul_f32 v84, v84, v83')
            for r in range(4):
                if r: b(f'v_fmamk_f32 v85, v83, {fbits(float(r))}, v84')
                src = 'v85' if r else 'v84'
                d = SB + 4*(2*tau+t) + r
                b(f'v_cos_f32 v86, {src}'); b(f'v_sin_f32 v87, {src}'); b(f'v_cvt_pk_bf16_f32 v{d}, v86, -v87')
                msk = None
                if t == 1: msk = ('s[84:85]' if r == 0 else 's[82:83]') if tau < 2 else ('s[76:77]' if r == 0 else 's[88:89]')
                elif tau == 2: msk = 's[86:87]'
                if msk: b(f'v_cndmask_b32 v{d}, 0, v{d}, {msk}')
    b('STAMP 0'); b('STAMP 1 vmcnt(0)')
    if ZMAJOR == 'tile':
        b('v_lshlrev_b32 v90, 4, v0'); b(f'v_add_u32 v90, {ZL}, v90')
        for i in range(3): b(f'ds_write_b128 v90, v[{92+4*i}:{95+4*i}] offset:{4096*i}')
        b('s_barrier')
        for j in range(2):
            for t in range(2):
                for r in range(4):
                    b(f'ds_read_b32 v{ZF+(2*j+t)*4+r}, v{AZ[j][t]} offset:{84*r+64*t}')
    E = 80
    for j in range(2):
        for t in range(2):
            d = E + (2*j+t)*8; z = ZF + (2*j+t)*4
            b(f'v_mfma_f32_16x16x32_bf16 {q4(d)}, {q4(z)}, {q4(SA)}, 0')
            b(f'v_mfma_f32_16x16x32_bf16 {q4(d+4)}, {q4(z)}, {q4(SA+4)}, 0')
    TM = 112
    b('s_cmp_eq_u32 s60, 0'); b('s_cbranch_scc1 P3_W0')
    for t in range(2):
        for h in range(2):
            ar, ai = E + t*8 + 2*h, E + t*8 + 4 + 2*h
            br, bi = E + 16 + t*8 + 2*h, E + 16 + t*8 + 4 + 2*h
            b(f'v_pk_add_f32 {pr(TM)}, {pr(ai)}, {pr(bi)} {NEG}'); b(f'v_pk_add_f32 {pr(TM+2)}, {pr(br)}, {pr(ar)} {NEG}')
            b(f'v_pk_add_f32 {pr(ar)}, {pr(ar)}, {pr(br)}'); b(f'v_pk_add_f32 {pr(ai)}, {pr(ai)}, {pr(bi)}')
            b(f'v_mov_b32 v{br}, v{TM}'); b(f'v_mov_b32 v{br+1}, v{TM+1}'); b(f'v_mov_b32 v{bi}, v{TM+2}'); b(f'v_mov_b32 v{bi+1}, v{TM+3}')
    b.label('P3_W0')
    VF = 8
    for j in range(2):
        for t in range(2):
            for h in range(2):
                sr_, si_ = E + (2*j+t)*8 + 2*h, E + (2*j+t)*8 + 4 + 2*h
                c, s = TW + 8*t + 2*h, TW + 8*t + 4 + 2*h
                b(f'v_pk_mul_f32 {pr(TM)}, {pr(sr_)}, {pr(c)}'); b(f'v_pk_mul_f32 {pr(TM+2)}, {pr(si_)}, {pr(c)}')
                b(f'v_pk_fma_f32 {pr(TM)}, {pr(si_)}, {pr(s)}, {pr(TM)} neg_lo:[1,0,0] neg_hi:[1,0,0]')
                b(f'v_pk_fma_f32 {pr(TM+2)}, {pr(sr_)}, {pr(s)}, {pr(TM+2)}')
                o = VF + (2*j+t)*4 + 2*h
                b(f'v_cvt_pk_bf16_f32 v{o}, v{TM}, v{TM+2}'); b(f'v_cvt_pk_bf16_f32 v{o+1}, v{TM+1}, v{TM+3}')
    RH = 80
    for j in range(2):
        for tau in range(3):
            d = RH + (3*j+tau)*4
            b(f'v_mfma_f32_16x16x32_bf16 {q4(d)}, {q4(VF+(2*j)*4)}, {q4(SB+4*(2*tau))}, 0')
            b(f'v_mfma_f32_16x16x32_bf16 {q4(d)}, {q4(VF+(2*j+1)*4)}, {q4(SB+4*(2*tau+1))}, {q4(d)}')
    b(f's_mul_i32 s73, s60, {2*RP}'); b('v_mul_u32_u24 v50, 80, v2'); b('v_lshlrev_b32 v51, 4, v3'); b('v_add_u32 v50, v50, v51'); b('v_add_u32 v50, s73, v50')
    for j in range(2):
        for tau in range(3):
            b(f'ds_write_b128 v50, {q4(RH+(3*j+tau)*4)} offset:{j*RP + tau*16*80}')
    b('s_barrier')
    b('STAMP 2')
    b('v_lshrrev_b32 v51, 2, v0'); b('v_mul_u32_u24 v51, 80, v51'); b('v_and_b32 v52, 3, v0'); b('v_lshlrev_b32 v52, 4, v52'); b('v_add_u32 v51, v51, v52')
    RR = 8
    for j in range(8): b(f'ds_read_b128 {q4(RR+4*j)}, v51 offset:{j*RP}')
    b(f's_mov_b32 s76, {fbits(C8)}'); b(f's_mov_b32 s77, {fbits(C8)}')
    OUTR = 64
    T = 40
    for hp in range(2):
        rho = [RR + 4*j + 2*hp for j in range(8)]
        A_, B_, E0, E2_, O1, O3, G, H, I_, J_ = [T + 2*i for i in range(10)]
        M_, N_, Y = 60, 62, 80
        b(f'v_pk_add_f32 {pr(A_)}, {pr(rho[0])}, {pr(rho[1])}'); b(f'v_pk_add_f32 {pr(B_)}, {pr(rho[0])}, {pr(rho[1])} {NEG}')
        b(f'v_pk_add_f32 {pr(E0)}, {pr(A_)}, {pr(rho[4])}'); b(f'v_pk_add_f32 {pr(E2_)}, {pr(A_)}, {pr(rho[4])} {NEG}')
        b(f'v_pk_add_f32 {pr(O1)}, {pr(B_)}, {pr(rho[5])} {NEG}'); b(f'v_pk_add_f32 {pr(O3)}, {pr(B_)}, {pr(rho[5])}')
        b(f'v_pk_add_f32 {pr(G)}, {pr(rho[2])}, {pr(rho[6])}'); b(f'v_pk_add_f32 {pr(H)}, {pr(rho[7])}, {pr(rho[3])} {NEG}')
        b(f'v_pk_add_f32 {pr(I_)}, {pr(rho[2])}, {pr(rho[6])} {NEG}'); b(f'v_pk_add_f32 {pr(J_)}, {pr(rho[3])}, {pr(rho[7])}')
        b(f'v_pk_add_f32 {pr(M_)}, {pr(I_)}, {pr(J_)} {NEG}'); b(f'v_pk_add_f32 {pr(N_)}, {pr(I_)}, {pr(J_)}')
        y = [Y + 2*i for i in range(8)]
        b(f'v_pk_add_f32 {pr(y[0])}, {pr(E0)}, {pr(G)}'); b(f'v_pk_add_f32 {pr(y[4])}, {pr(E0)}, {pr(G)} {NEG}')
        b(f'v_pk_add_f32 {pr(y[2])}, {pr(E2_)}, {pr(H)}'); b(f'v_pk_add_f32 {pr(y[6])}, {pr(E2_)}, {pr(H)} {NEG}')
        b(f'v_pk_fma_f32 {pr(y[1])}, {pr(M_)}, s[76:77], {pr(O1)}'); b(f'v_pk_fma_f32 {pr(y[5])}, {pr(M_)}, s[76:77], {pr(O1)} neg_lo:[1,0,0] neg_hi:[1,0,0]')
        b(f'v_pk_fma_f32 {pr(y[3])}, {pr(N_)}, s[76:77], {pr(O3)} neg_lo:[1,0,0] neg_hi:[1,0,0]'); b(f'v_pk_fma_f32 {pr(y[7])}, {pr(N_)}, s[76:77], {pr(O3)}')
        for s1 in range(8): b(f'v_cvt_pk_bf16_f32 v{OUTR+2*s1+hp}, v{y[s1]}, v{y[s1]+1}')
    b('STAMP 3')
    OS = 32768 if ZMAJOR == 'tile' else 32768
    b('s_lshl_b32 s73, s60, 12'); b(f's_add_u32 s73, s73, {OS}')
    b('v_lshlrev_b32 v5, 3, v1'); b('v_add_u32 v5, s73, v5')
    for s1 in range(8): b(f'ds_write_b64 v5, v[{OUTR+2*s1}:{OUTR+2*s1+1}] offset:{512*s1}')
    b('v_lshlrev_b32 v6, 4, v1'); b('v_add_u32 v6, s73, v6')
    for i in range(4): b(f'ds_read_b128 v[{8+4*i}:{11+4*i}], v6 offset:{1024*i}')
    b('v_and_b32 v5, 31, v1'); b('v_lshlrev_b32 v5, 4, v5'); b('s_lshl_b32 s74, s60, 9'); b('v_add_u32 v5, s74, v5')
    b('v_cmp_gt_u32 vcc, 1280, v5'); b('v_lshrrev_b32 v6, 5, v1'); b(f'v_mul_u32_u24 v6, {256*2560}, v6'); b('v_add_u32 v5, v5, v6')
    b('v_mov_b32 v6, 0x80000000'); b('v_cndmask_b32 v5, v6, v5, vcc')
    b(f's_mul_i32 s61, s{s_idx}, 2560'); b('s_add_u32 s61, s61, 1280')
    for i in range(4):
        if i: b(f's_add_u32 s61, s61, {2*256*2560}')
        b(f'buffer_store_dwordx4 v[{8+4*i}:{11+4*i}], v5, s[48:51], s61 offen ' + stflag)
    b('s_endpgm')
```

```python
from common import *
NTAB = 1
def job_tab(b, s_idx):
    srd(b, 44, S_WS, SZ_TAB, WS_TAB)
    b('v_and_b32 v1, 63, v0'); b('v_and_b32 v2, 15, v1'); b('v_lshrrev_b32 v3, 4, v1')
    b('v_lshrrev_b32 v4, 6, v0'); b('s_nop 0'); b('v_readfirstlane_b32 s60, v4')
    b('v_lshlrev_b32 v10, 4, v1')
    b('s_and_b32 s61, s60, 1'); b('s_lshr_b32 s62, s60, 1')
    b('s_lshl_b32 s63, s62, 1'); b('s_add_u32 s63, s63, 2'); b('s_sub_u32 s63, s63, s61')
    b('s_lshl_b32 s64, s61, 2'); b('s_cmp_eq_u32 s62, 0'); b('s_cselect_b32 s64, s64, 0')
    b('s_add_u32 s64, s64, s63'); b('s_lshl_b32 s65, s63, 1')
    b('v_lshlrev_b32 v22, 3, v3'); b('v_subrev_u32 v22, 8, v22'); b('v_sub_u32 v22, v2, v22'); b('v_add_u32 v22, s64, v22')
    for q in range(4):
        for hlf in range(2):
            rho = 2*q + hlf
            b(f'v_subrev_u32 v24, {rho}, v22'); b('v_cmp_ge_u32 vcc, s65, v24')
            b(f'v_mov_b32 v25, {hex(0x3F80 << (16*hlf))}'); b(f'v_cndmask_b32 v{26+hlf}, 0, v25, vcc')
        b(f'v_or_b32 v{12+q}, v26, v27')
    b('s_lshl_b32 s63, s60, 10'); b(f's_add_u32 s63, s63, {TAB_BC}')
    b('buffer_store_dwordx4 v[12:15], v10, s[44:47], s63 offen sc1')
    b('s_endpgm')

NTAB2 = 17
def job_tab2(b, s_idx):
    srd(b, 44, S_WS, SZ_TAB, WS_TAB)
    b('v_and_b32 v1, 63, v0'); b('v_and_b32 v2, 15, v1'); b('v_lshrrev_b32 v3, 4, v1')
    b('v_lshrrev_b32 v4, 6, v0'); b('s_nop 0'); b('v_readfirstlane_b32 s60, v4')
    b('v_lshlrev_b32 v10, 4, v1')
    for q in range(4):
        b(f's_lshl_b32 s61, s{s_idx}, 4'); b('s_lshl_b32 s62, s60, 2'); b('s_add_u32 s61, s61, s62'); b(f's_add_u32 s61, s61, {q}')
        b('s_mul_hi_u32 s62, s61, 0x7878788'); b('s_mul_i32 s63, s62, 34'); b('s_sub_u32 s63, s61, s63')
        b('s_lshl_b32 s64, s62, 4')
        b('s_sub_u32 s65, s63, 2'); b('s_and_b32 s65, s65, 15'); b('s_lshl_b32 s65, s65, 3'); b('s_add_u32 s65, s65, s62')
        b('s_cmp_lt_u32 s63, 2'); b('s_cselect_b32 s64, s64, s65')
        b('s_mov_b32 s66, 0'); b('s_cmp_eq_u32 s63, 1'); b('s_cselect_b32 s66, 1, s66'); b('s_cmp_ge_u32 s63, 18'); b('s_cselect_b32 s66, 1, s66')
        b('s_cmp_eq_u32 s66, 1'); b('s_cselect_b32 s67, 0, s64'); b('s_cselect_b32 s68, s64, 0')
        b('v_lshlrev_b32 v5, 7, v2'); b('v_add_u32 v5, s67, v5')
        b('v_mul_u32_u24 v6, s68, v2'); b('v_lshlrev_b32 v7, 2, v3'); b('v_mul_u32_u24 v7, v7, v5'); b('v_add_u32 v6, v6, v7')
        for r in range(4):
            b('v_and_b32 v7, 2047, v6'); b('v_cvt_f32_u32 v7, v7'); b(f'v_mul_f32 v7, {fbits(1/2048)}, v7')
            b('v_cos_f32 v8, v7'); b('v_sin_f32 v9, v7'); b(f'v_cvt_pk_bf16_f32 v{12+4*q+r}, v8, v9')
            b('v_add_u32 v6, v6, v5')
        b('s_lshl_b32 s61, s61, 10')
        b(f'buffer_store_dwordx4 v[{12+4*q}:{15+4*q}], v10, s[44:47], s61 offen sc1')
    b('s_endpgm')
```

```python
from common import *
NWP = 256
def job_wp(b, s_idx, stflag='sc1'):
    srd(b, 44, S_WR, 2048*642); srd(b, 48, S_WI, 2048*642); srd(b, 52, S_WS, SZ_T, WS_WP)
    b('v_and_b32 v1, 63, v0'); b('v_lshrrev_b32 v4, 6, v0'); b('s_nop 0'); b('v_readfirstlane_b32 s60, v4')
    FC = 8
    b(f's_lshl_b32 s61, s{s_idx}, 3'); b('s_lshl_b32 s62, s60, 1'); b('s_add_u32 s61, s61, s62')
    b('s_mul_i32 s64, s61, 642'); b('s_add_u32 s65, s64, 642')
    DAT = 32
    for p in range(6):
        b(f'v_add_u32 v2, {64*p}, v1')
        b('v_mul_u32_u24 v3, 3121, v2'); b('v_lshrrev_b32 v3, 16, v3'); b('v_cmp_le_u32 vcc, 8, v3')
        b('v_mul_u32_u24 v3, 19, v3'); b('v_add_u32 v3, v3, v2')
        b('v_sub_u32 v5, 640, v3'); b('v_cndmask_b32 v3, v3, v5, vcc'); b(f'v_lshlrev_b32 v{FC+p}, 1, v3')
        if p == 5:
            b('v_mov_b32 v5, 0x40000000'); b('v_cmp_gt_u32 vcc, 16, v1'); b(f'v_cndmask_b32 v{FC+p}, v5, v{FC+p}, vcc')
        for rr in range(2):
            b(f'buffer_load_ushort v{DAT+6*rr+p}, v{FC+p}, s[44:47], s{64+rr} offen')
            b(f'buffer_load_ushort v{DAT+12+6*rr+p}, v{FC+p}, s[48:51], s{64+rr} offen')
    b('s_lshl_b32 s73, s60, 12'); b('v_lshlrev_b32 v16, 2, v1'); b('v_add_u32 v16, s73, v16')
    b('v_lshlrev_b32 v17, 4, v1'); b('v_add_u32 v17, s73, v17')
    b('v_and_b32 v18, 31, v1'); b('v_lshrrev_b32 v19, 5, v1')
    b('v_lshlrev_b32 v20, 4, v18'); b('v_lshlrev_b32 v21, 11, v19'); b('v_add3_u32 v20, v20, v21, s73')
    b('v_lshrrev_b32 v21, 2, v1'); b('v_lshlrev_b32 v21, 14, v21'); b('v_and_b32 v22, 3, v1'); b('v_lshl_add_u32 v21, v22, 4, v21')
    b('v_add_u32 v22, 64, v18'); b('v_lshrrev_b32 v23, 2, v22'); b('v_lshlrev_b32 v23, 14, v23'); b('v_and_b32 v22, 3, v22'); b('v_lshl_add_u32 v22, v22, 4, v23')
    for rr in range(2):
        b(f's_add_u32 s62, s61, {rr}')
        b('s_and_b32 s63, s62, 7'); b(f's_mul_i32 s63, s63, {21*16384}'); b('s_lshr_b32 s62, s62, 3'); b('s_lshl_b32 s62, s62, 6'); b(f's_add_u32 s{66+rr}, s62, s63')
    b('s_sub_u32 s74, s67, s66'); b('v_mul_lo_u32 v23, v19, s74'); b('v_add_u32 v22, v22, v23'); b('v_add_u32 v22, s66, v22')
    b('v_mov_b32 v23, 0x80000000'); b('v_cmp_gt_u32 vcc, 20, v18'); b('v_cndmask_b32 v22, v23, v22, vcc')
    for rr in range(2):
        for p in range(6):
            d = DAT+6*rr+p
            b(f'v_lshl_add_u32 v{d}, v{d+12}, 16, v{d}')
            b(f'ds_write_b32 v16, v{d} offset:{rr*2048 + 256*p}')
    b('ds_read_b128 v[60:63], v17'); b('ds_read_b128 v[64:67], v17 offset:2048'); b('ds_read_b128 v[68:71], v20 offset:1024')
    b(f'buffer_store_dwordx4 v[60:63], v21, s[52:55], s66 offen {stflag}')
    b(f'buffer_store_dwordx4 v[64:67], v21, s[52:55], s67 offen {stflag}')
    b(f'buffer_store_dwordx4 v[68:71], v22, s[52:55], 0 offen {stflag}')
    b('s_endpgm')
```

```python
import sys
from common import *
from jobs_tr import job_transpose
from jobs_p1 import job_p1
from jobs_tab import job_tab, NTAB, job_tab2, NTAB2
from jobs_kgen import job_kgen
from jobs_p2 import job_p2
from jobs_p2b import job_p2 as job_p2b
from jobs_p3 import job_p3
from jobs_wp import job_wp, NWP
from jobs_pf import job_pf, NPF
from jobs_conv3 import job_conv, CH_SZ
HEADER = open('concat_heads__ssm_conv_s4d__spectral_gfnet__prompt.s.ref').read().split('\n')
hdr = [l for l in HEADER if l.startswith(';') and '@launch' not in l and 'Override launch' not in l and 'grid=ceil' not in l]
hdr = hdr[:14]
def dispatch(b, kname, jobs):
    prologue(b)
    start = 0
    for (name, cnt, fn) in jobs:
        b(f's_cmp_lt_u32 s2, {start+cnt}'); b(f's_cbranch_scc1 {kname}_{name}')
        start += cnt
    b('EXITPATH'); b('s_endpgm')
    start = 0
    for (name, cnt, fn) in jobs:
        b.label(f'{kname}_{name}')
        b(f's_sub_u32 s3, s2, {start}')
        fn(b)
        start += cnt
    return start
def uniq(lines, pre):
    return lines
kernels = []
JOBMAP = {}
INSTR = False
WS_PROF = 0x2000000
def instrument(lines, kidx):
    out = []
    first = True
    for l in lines:
        if l.strip() == 's_waitcnt lgkmcnt(0)' and first:
            out.append(l); first = False
            out += ['s_memrealtime s[90:91]', 's_mov_b32 s92, 0', 's_mov_b32 s93, 0', 's_mov_b32 s94, 0', 's_mov_b32 s95, 0', 's_waitcnt lgkmcnt(0)']
            continue
        if l.strip().startswith('STAMP'):
            k = int(l.split()[1])
            if len(l.split()) > 2: out.append('s_waitcnt ' + l.split()[2])
            out += ['s_memrealtime s[96:97]', 's_waitcnt lgkmcnt(0)', f's_mov_b32 s{92+k}, s96']
            continue
        if l.strip() == 's_endpgm' and not first and out[-1].strip() != 'EXITPATH':
            out += ['s_waitcnt vmcnt(0) lgkmcnt(0)', 's_memrealtime s[96:97]', 's_waitcnt lgkmcnt(0)',
                    f's_add_u32 s84, s40, {hex(WS_PROF + kidx*0x40000)}', 's_addc_u32 s85, s41, 0', 's_and_b32 s85, s85, 0xffff', 's_mov_b32 s86, 0x40000', 's_mov_b32 s87, 0x20000',
                    'v_lshrrev_b32 v1, 6, v0', 'v_lshlrev_b32 v1, 5, v1', 's_lshl_b32 s88, s2, 7', 'v_add_u32 v1, s88, v1',
                    's_getreg_b32 s89, hwreg(HW_REG_XCC_ID)', 's_getreg_b32 s88, hwreg(HW_REG_HW_ID)',
                    'v_mov_b32 v2, s90', 'v_mov_b32 v3, s96', 'v_mov_b32 v4, s89', 'v_mov_b32 v5, s88', 'v_mov_b32 v6, s92', 'v_mov_b32 v7, s93', 'v_mov_b32 v8, s94', 'v_mov_b32 v9, s95',
                    'v_and_b32 v10, 63, v0', 'v_cmp_eq_u32 vcc, 0, v10', 's_and_saveexec_b64 s[98:99], vcc',
                    'buffer_store_dwordx4 v[2:5], v1, s[84:87], 0 offen', 'buffer_store_dwordx4 v[6:9], v1, s[84:87], 0 offen offset:16', 's_endpgm']
            continue
        if l.strip() == 'EXITPATH': out.append(l); continue
        out.append(l)
    return [l for l in out if l.strip() != 'EXITPATH']
DBG = False
def dbgstamp(lines, kidx, picks):
    out = []; first = True
    for l in lines:
        t = l.strip()
        if t == 's_waitcnt lgkmcnt(0)' and first:
            out.append(l); first = False
            out += ['s_memrealtime s[90:91]', 's_waitcnt lgkmcnt(0)']
            continue
        if t.startswith('STAMP'): continue
        if t == 'EXITPATH': out.append(l); continue
        if t == 's_endpgm' and not first and out[-1].strip() != 'EXITPATH':
            lab = 'DBGE_%d_%d' % (kidx, len(out))
            out += ['s_mov_b32 s88, -1']
            for wg, word in picks.items():
                if wg == 'start': continue
                out += [f's_cmp_eq_u32 s2, {wg}', f's_cselect_b32 s88, {word*4}, s88']
            out += ['s_cmp_eq_u32 s2, 0', f's_cselect_b32 s89, 1, 0', 's_or_b32 s87, s89, 0',
                    's_cmp_eq_u32 s88, -1', 's_cselect_b32 s86, 0, 1', 's_or_b32 s86, s86, s89', 's_cmp_eq_u32 s86, 0', f's_cbranch_scc1 {lab}',
                    's_waitcnt vmcnt(0) lgkmcnt(0)', 's_memrealtime s[96:97]', 's_waitcnt lgkmcnt(0)',
                    f's_add_u32 s84, s40, {hex(WS_PROF)}', 's_addc_u32 s85, s41, 0', 's_and_b32 s85, s85, 0xffff', 's_mov_b32 s86, 64', 's_mov_b32 s87, 0x20000',
                    'v_mov_b32 v2, s96', 'v_mov_b32 v3, s88', 'v_mov_b32 v4, s90', f'v_mov_b32 v5, {picks["start"]*4}', 'v_mov_b32 v6, 0x1000',
                    'v_cmp_eq_u32 vcc, 0, v0', 's_and_saveexec_b64 s[98:99], vcc',
                    'buffer_store_dword v2, v3, s[84:87], 0 offen',
                    's_cmp_eq_u32 s2, 0', 's_cselect_b32 s88, 0, 1', 'v_mov_b32 v7, s88', 'v_lshlrev_b32 v7, 12, v7', 'v_add_u32 v5, v5, v7',
                    'buffer_store_dword v4, v5, s[84:87], 0 offen',
                    ] + (['s_cmp_lg_u32 s2, 0', f's_cbranch_scc1 {lab}', 's_waitcnt vmcnt(0)', 's_mov_b64 exec, s[98:99]', 'v_lshlrev_b32 v2, 2, v0',
                          'buffer_load_dword v3, v2, s[84:87], 0 offen sc1', 's_mov_b32 s80, s38', 's_and_b32 s81, s39, 0xffff', 's_mov_b32 s82, 64', 's_mov_b32 s83, 0x20000',
                          's_waitcnt vmcnt(0)', 'buffer_store_dword v3, v2, s[80:83], 0 offen'] if kidx == 2 else []) + [f'{lab}:', 's_endpgm']
            continue
        out.append(l)
    return [l for l in out if l.strip() != 'EXITPATH']
PICKS = [{'start': 0, 319: 1, 575: 2, 735: 3, 992: 4, 160: 12}, {'start': 5, 255: 6, 327: 7, 95: 8, 100: 13}, {'start': 9, 255: 10, 415: 11, 128: 14}]
def make(kname, jobs, lds, vg):
    b = Builder()
    n = dispatch(b, kname, jobs)
    lines = b.lines
    if DBG: lines = dbgstamp(lines, len(kernels), PICKS[len(kernels)])
    elif INSTR: lines = instrument(lines, len(kernels))
    else: lines = [l for l in lines if not l.strip().startswith('STAMP') and l.strip() != 'EXITPATH']
    body = process(lines)
    kernels.append((kname, n, lds, vg, body)); JOBMAP[kname] = [[j[0], j[1]] for j in jobs]
import os
VAR = os.environ.get('VAR', 'pf')
def build(cfg=None):
    wm = 'wp' if VAR == 'wp' else 'gather'
    def ut(b):
        if VAR == 'pftail':
            bb = Builder(); job_transpose(bb, 'UT', 3, 'UT', 'sc1')
            assert bb.lines[-1] == 's_endpgm'
            for l in bb.lines[:-1]: b(l)
            from jobs_pf import pf_tail
            pf_tail(b, 3, 160); b('s_endpgm')
        else: job_transpose(b, 'UT', 3, 'UT', 'sc1')
    jobs1 = [('KG', 320, lambda b: job_kgen(b, 3, 'sc1')), ('P1', 256, lambda b: job_p1(b, 3)), ('UT', 160, ut), ('TB', NTAB, lambda b: job_tab(b, 3))]
    if os.environ.get('P2T', '2') == '2' and os.environ.get('P2TAB', 'trig') != 'trig': jobs1.append(('T2', NTAB2, lambda b: job_tab2(b, 3)))
    if VAR == 'wp': jobs1.append(('WP', NWP, lambda b: job_wp(b, 3)))
    if VAR == 'pf': jobs1.append(('PF', NPF, lambda b: job_pf(b, 3)))
    make('k1_kernel', jobs1, 34816, 128)
    def p2a(b):
        b('s_and_b32 s4, s3, 7'); b('s_lshr_b32 s5, s3, 3'); b('s_branch P2_BODY')
    def p2b(b):
        b('s_and_b32 s4, s3, 7'); b('s_lshr_b32 s5, s3, 3'); b('s_add_u32 s5, s5, 12'); b.label('P2_BODY'); job_p2(b, 4, 5, wmode=wm)
    if os.environ.get('P2T', '2') != '2' and (wm == 'wp' or os.environ.get('K2ORD') == 'pair'): make('k2_kernel', [('P2a', 96, p2a), ('CV', 160, lambda b: job_conv(b, 3, 'sc1')), ('P2b', 72, p2b)], 4*CH_SZ, 256)
    else:
        def p2all(b):
            b('s_and_b32 s4, s3, 7'); b('s_lshr_b32 s5, s3, 3'); job_p2(b, 4, 5, wmode=wm)
        if os.environ.get('P2T', '2') == '2':
            def p2two(b):
                b('s_and_b32 s4, s3, 7'); b('s_lshr_b32 s5, s3, 3'); b('s_lshl_b32 s5, s5, 1'); job_p2b(b, 4, 5, wmode=wm)
            make('k2_kernel', [('CV', 160, lambda b: job_conv(b, 3, 'sc1')), ('P2', 88, p2two)], 4*CH_SZ, 256)
        else: make('k2_kernel', [('CV', 160, lambda b: job_conv(b, 3, 'sc1')), ('P2', 168, p2all)], 4*CH_SZ, 256)
    make('k3_kernel', [('P3', 256, lambda b: job_p3(b, 3, 'sc1')), ('YT', 160, lambda b: job_transpose(b, 'YT', 3, 'YT', 'sc1'))], 32768 + 16384, 128)
    out = list(hdr)
    for (k, n, lds, vg, body) in kernels:
        out.append(f'; @launch kernel={k} grid=({n},1,1) block=(256,1,1) lds={lds}')
    import json
    if INSTR: out.append('; JOBS=' + json.dumps(JOBMAP))
    out.append('.amdgcn_target "amdgcn-amd-amdhsa--gfx950"'); out.append('.text')
    for (k, n, lds, vg, body) in kernels:
        out += [f'.globl {k}', '.p2align 8', f'.type {k},@function', f'{k}:'] + body
    out.append('.section .rodata,"a"')
    for (k, n, lds, vg, body) in kernels:
        acc = (vg + 3)//4*4
        out += ['.p2align 6', f'.amdhsa_kernel {k}', f'  .amdhsa_next_free_vgpr {vg}', '  .amdhsa_next_free_sgpr 102', f'  .amdhsa_accum_offset {acc}',
                '  .amdhsa_group_segment_fixed_size 0', '  .amdhsa_kernarg_size 104', '  .amdhsa_user_sgpr_count 2',
                '  .amdhsa_user_sgpr_kernarg_segment_ptr 1', '  .amdhsa_system_sgpr_workgroup_id_x 1', '.end_amdhsa_kernel']
    return '\n'.join(out) + '\n'
if __name__ == '__main__':
    if len(sys.argv) > 2 and sys.argv[2] == 'instr': INSTR = True
    if len(sys.argv) > 2 and sys.argv[2] == 'dbg': DBG = True
    s = build()
    dst = sys.argv[1] if len(sys.argv) > 1 else 'concat_heads__ssm_conv_s4d__spectral_gfnet__prompt.s'
    open(dst, 'w').write(s)
    print(len(s), 'bytes', s.count('\n'), 'lines')
```

```python
import re
TRANS = ('v_exp_f32','v_log_f32','v_rcp_f32','v_rsq_f32','v_sqrt_f32','v_sin_f32','v_cos_f32','v_rcp_iflag_f32')
def regs_of(tok):
    tok = tok.strip()
    neg = tok.lstrip('-')
    m = re.fullmatch(r'abs\((.*)\)', neg)
    if m: neg = m.group(1)
    if neg.startswith('|') and neg.endswith('|'): neg = neg[1:-1]
    m = re.fullmatch(r'([vsa])(\d+)', neg)
    if m: return [(m.group(1), int(m.group(2)))]
    m = re.fullmatch(r'([vsa])\[(\d+):(\d+)\]', neg)
    if m: return [(m.group(1), i) for i in range(int(m.group(2)), int(m.group(3))+1)]
    if neg == 'vcc': return [('s', 106), ('s', 107)]
    if neg == 'vcc_lo': return [('s', 106)]
    if neg == 'vcc_hi': return [('s', 107)]
    if neg == 'exec': return [('s', 126), ('s', 127)]
    if neg == 'm0': return [('s', 124)]
    return []
def split_ops(s):
    out = []; depth = 0; cur = ''
    for ch in s:
        if ch in '[(': depth += 1
        if ch in '])': depth -= 1
        if ch == ',' and depth == 0: out.append(cur.strip()); cur = ''
        else: cur += ch
    if cur.strip(): out.append(cur.strip())
    return out
class I:
    __slots__ = ('text','mn','ops','cls','dst','src','srcC','passes','label','raw')
def parse(line):
    t = line.split(';')[0].strip()
    ins = I(); ins.text = line; ins.raw = t; ins.dst = []; ins.src = []; ins.srcC = []; ins.passes = 0; ins.label = None
    if not t: ins.cls = 'none'; ins.mn = ''; ins.ops = []; return ins
    if t.endswith(':'): ins.cls = 'label'; ins.mn = ''; ins.ops = []; ins.label = t[:-1]; return ins
    if t.startswith('.'): ins.cls = 'dir'; ins.mn = t; ins.ops = []; return ins
    p = t.split(None, 1); mn = p[0]; rest = p[1] if len(p) > 1 else ''
    ins.mn = mn
    ops = split_ops(rest)
    mods = ''
    if ops:
        q = ops[-1].split(None, 1)
        ops[-1] = q[0]; mods = q[1] if len(q) > 1 else ''
    ins.ops = ops
    R = lambda k: regs_of(ops[k]) if k < len(ops) else []
    allr = lambda a: [r for k in range(a, len(ops)) for r in regs_of(ops[k])]
    base = re.sub(r'_(e32|e64|dpp|sdwa)$', '', mn)
    if mn.startswith('v_mfma') or mn.startswith('v_smfmac'):
        ins.cls = 'mfma'; ins.dst = R(0); ins.src = R(1) + R(2); ins.srcC = R(3)
        ins.passes = 8 if '32x32' in mn else 4
    elif mn.startswith('buffer_load') or mn.startswith('global_load'):
        ins.cls = 'vload'; ins.dst = R(0); ins.src = allr(1)
        if ' lds' in (' ' + mods): ins.cls = 'vloadlds'; ins.dst = []; ins.src = allr(0)
    elif mn.startswith('buffer_store') or mn.startswith('global_store'):
        ins.cls = 'vstore'; ins.src = allr(0)
    elif mn.startswith('buffer_atomic') or mn.startswith('global_atomic'):
        ins.cls = 'vatomic'; ins.src = allr(0)
        if 'sc0' in mods: ins.dst = R(0) if mn.startswith('buffer') else R(0)
    elif mn.startswith('buffer_wbl2') or mn.startswith('buffer_inv'):
        ins.cls = 'vstore'
    elif mn.startswith('ds_read') or mn.startswith('ds_bpermute') or mn.startswith('ds_permute') or mn.startswith('ds_swizzle'):
        ins.cls = 'dsread'; ins.dst = R(0); ins.src = allr(1)
    elif mn.startswith('ds_write') or mn.startswith('ds_add'):
        ins.cls = 'dswrite'; ins.src = allr(0)
    elif mn.startswith('s_load') or mn.startswith('s_buffer_load') or mn in ('s_memtime', 's_memrealtime'):
        ins.cls = 'smem'; ins.dst = R(0); ins.src = allr(1)
    elif mn == 's_waitcnt': ins.cls = 'wait'
    elif mn == 's_barrier': ins.cls = 'barrier'
    elif mn == 's_nop': ins.cls = 'nop'
    elif mn == 's_endpgm': ins.cls = 'end'
    elif mn.startswith('s_cbranch') or mn == 's_branch': ins.cls = 'branch'
    elif mn.startswith('s_'):
        ins.cls = 'salu'
        if mn.startswith('s_cmp') or mn in ('s_setprio', 's_sleep', 's_bitcmp0_b32', 's_bitcmp1_b32'): ins.src = allr(0)
        else: ins.dst = R(0); ins.src = allr(1)
        if 'saveexec' in mn: ins.dst += [('s', 126), ('s', 127)]
    elif mn.startswith('v_'):
        ins.cls = 'valu'
        if base.startswith('v_cmp'):
            ins.dst = R(0); ins.src = allr(1)
        elif base in ('v_add_co_u32', 'v_sub_co_u32', 'v_addc_co_u32', 'v_subb_co_u32', 'v_subrev_co_u32', 'v_mad_u64_u32'):
            ins.dst = R(0) + R(1); ins.src = allr(2)
        elif base.startswith('v_permlane') and 'swap' in base:
            ins.dst = R(0) + R(1); ins.src = R(0) + R(1)
        elif base in ('v_fmac_f32', 'v_mac_f32', 'v_pk_fmac_f16', 'v_fmac_f16', 'v_writelane_b32', 'v_dot2c_f32_bf16'):
            ins.dst = R(0); ins.src = allr(0)
        else:
            ins.dst = R(0); ins.src = allr(1)
        if 'dpp' in mn or 'row_' in mods or 'quad_perm' in mods or 'wave_' in mods: ins.cls = 'valu'; ins.mn = mn + '#dpp'
    else:
        raise ValueError("unknown instr: " + line)
    return ins

class Builder:
    def __init__(self): self.lines = []
    def __call__(self, s, *a):
        for l in s.split('\n'):
            if l.strip(): self.lines.append(l.strip())
    def label(self, n): self.lines.append(n + ':')
    def c(self, s): self.lines.append('; ' + s)

TIMEBASED = True
LGMERGE = 0
HOIST = 90
def process(lines, verbose=False):
    out = []
    vm = []
    lg = []
    lgt = []
    sm = set()
    hist = []
    clk = [0, 0]
    info = []
    def emit(t, kind=''): out.append(t); info.append((kind, clk[0]))
    def tick(n=1):
        clk[0] += 4*n
        for h in hist: h[1] += n
        while hist and hist[0][1] > 20: hist.pop(0)
    def need_nops(ins):
        need = 0
        D = set(ins.dst); Sr = set(ins.src); C = set(ins.srcC)
        isvalu = ins.cls == 'valu'
        tnow = max(clk[0], clk[1]) if ins.cls == 'mfma' else clk[0]
        for (p, age, tp) in hist:
            pd = set(p.dst); req = 0
            if p.cls == 'mfma' and TIMEBASED: age = max(age, (tnow - tp)//4 - 1)
            if p.cls == 'valu':
                trans = re.sub(r'_(e32|e64)$', '', p.mn) in TRANS
                vd = {r for r in pd if r[0] in 'va'}; sd = {r for r in pd if r[0] == 's'}
                if ins.cls == 'mfma' and vd & (Sr | C): req = max(req, 2)
                if trans and ins.cls in ('valu', 'mfma') and vd & Sr: req = max(req, 1)
                if trans and ins.cls in ('vstore','dswrite','vload','dsread','vatomic') and vd & Sr: req = max(req, 1)
                if isvalu and ins.mn.startswith(('v_readfirstlane', 'v_readlane')) and vd & Sr: req = max(req, 1)
                if isvalu and ins.mn.startswith('v_permlane') and vd & Sr: req = max(req, 2)
                if isvalu and '#dpp' in ins.mn and vd & Sr: req = max(req, 2)
                if sd:
                    if isvalu and sd & Sr: req = max(req, 2)
                    if isvalu and ins.mn.startswith(('v_readlane', 'v_writelane')) and sd & Sr: req = max(req, 4)
                    if ins.cls in ('vload', 'vstore', 'vatomic', 'vloadlds') and sd & Sr: req = max(req, 5)
                    if ins.cls in ('salu','branch','smem') and (sd & Sr): req = max(req, 4)
                    if ins.cls == 'branch' and ('vcc' in ins.mn) and (('s',106) in sd or ('s',107) in sd): req = max(req, 4)
            if p.cls == 'mfma':
                w_use = 8 if p.passes == 4 else 12
                w_ovl = 6 if p.passes == 4 else 10
                w_war = 3 if p.passes == 4 else 7
                if ins.cls == 'mfma':
                    if pd & Sr: req = max(req, w_use)
                    if pd & C:
                        if not (p.dst == ins.srcC and p.passes == ins.passes): req = max(req, w_ovl)
                    if pd & D and not (p.dst == ins.dst and p.dst == ins.srcC):
                        if not (pd & C): req = max(req, w_use)
                else:
                    if pd & (Sr | D): req = max(req, w_use)
                    if isvalu and set(p.srcC) & D: req = max(req, w_war)
                    if ins.cls in ('vload','dsread') and set(p.srcC) & D: req = max(req, w_war)
            if p.cls == 'vstore' and ('x4' in p.mn or 'x3' in p.mn):
                data = set(regs_of(p.ops[0])) if p.mn.startswith('buffer') else set(regs_of(p.ops[1]))
                if data & D and ins.cls in ('valu','mfma','vload','dsread'): req = max(req, 2)
            if p.cls == 'dswrite' and ('b128' in p.mn or 'b96' in p.mn):
                if set(p.src) & D and isvalu: req = max(req, 1)
            if p.cls == 'salu' and ('s', 124) in pd and ins.cls == 'vloadlds': req = max(req, 1)
            if p.cls == 'salu' and (('s',126) in pd or ('s',127) in pd) and isvalu and '#dpp' in ins.mn: req = max(req, 1)
            need = max(need, req - age)
        return need
    def do_wait(vmn=None, lgn=None):
        parts = []
        if vmn is not None:
            vmn = min(vmn, 63); parts.append('vmcnt(%d)' % vmn)
            while len(vm) > vmn: vm.pop(0)
        if lgn is not None:
            lgn = min(lgn, 15); parts.append('lgkmcnt(%d)' % lgn)
            while len(lg) > lgn: lg.pop(0)
            if lgn == 0: sm.clear()
        emit('s_waitcnt ' + ' '.join(parts)); tick()
    def flush_all(haz=True, waits=True):
        if waits and (vm_loads_pending() or lg or sm):
            do_wait(0 if vm_loads_pending() else None, 0 if (lg or sm) else None)
        if haz:
            worst = 0
            for (p, age, tp) in hist:
                r = 0
                if p.cls == 'mfma': r = 8 if p.passes == 4 else 12
                elif p.cls == 'valu': r = 5 if any(x[0] == 's' for x in p.dst) else 2
                elif p.cls == 'vstore': r = 2
                worst = max(worst, r - age)
            nop(worst)
    def vm_loads_pending(): return any(x for x in vm)
    def nop(n):
        while n > 0:
            k = min(n, 16); emit('s_nop %d' % (k-1)); tick(k); n -= k
    for line in lines:
        ins = parse(line)
        if ins.cls in ('none', 'dir'): emit(line); continue
        if ins.cls == 'label':
            if 'NOFLUSH' not in line: flush_all()
            emit(line); continue
        if ins.cls == 'wait':
            m = re.search(r'vmcnt\((\d+)\)', ins.raw); n = re.search(r'lgkmcnt\((\d+)\)', ins.raw)
            if m:
                while len(vm) > int(m.group(1)): vm.pop(0)
            if n:
                while len(lg) > int(n.group(1)): lg.pop(0)
                if int(n.group(1)) == 0: sm.clear()
            emit(line); tick(); continue
        if ins.cls == 'nop':
            emit(line); tick(int(ins.ops[0]) + 1); continue
        if ins.mn.startswith('buffer_'):
            mo = re.search(r'offset:(\d+)', ins.raw)
            if mo and int(mo.group(1)) > 4095: raise ValueError('MUBUF offset too large: ' + line)
        if ins.mn.startswith('ds_'):
            mo = re.search(r'offset:(\d+)', ins.raw)
            if mo and int(mo.group(1)) > 65535: raise ValueError('DS offset too large: ' + line)
        touched = set(ins.src) | set(ins.srcC) | set(ins.dst)
        if ins.cls == 'vload' and 'd16' in ins.mn: touched = set(ins.src)
        vmn = None
        for idx, d in enumerate(vm):
            if d & touched: vmn = len(vm) - 1 - idx
        lgn = None
        for idx, d in enumerate(lg):
            if d & touched: lgn = len(lg) - 1 - idx
        if lgn is not None and lgn > 0 and LGMERGE:
            tt = lgt[-len(lg):]
            while lgn > 0 and clk[0] - tt[len(lg) - lgn] >= LGMERGE: lgn -= 1
        if sm & touched: lgn = 0
        if sm and lgn is not None: lgn = 0
        if ins.cls == 'barrier':
            if lg or sm: lgn = 0
        if ins.cls == 'branch':
            if 'NOFLUSH' not in line:
                if vm_loads_pending(): vmn = 0
                if lg or sm: lgn = 0
        hoisted = False
        if HOIST and vmn is None and lgn is not None and lgn > 0 and not sm and ins.cls != 'barrier':
            tt = lgt[-len(lg):]; tneed = tt[len(lg) - 1 - lgn]
            k = 0; pos = len(out)
            cand = None
            for back in range(1, 12):
                j = len(out) - back
                if j < 0: break
                kind, tj = info[j]
                if kind == 'stop' or out[j].startswith('s_waitcnt') or out[j].endswith(':'): break
                if kind == 'big':
                    if back > 1 and lgn - k >= 0 and tj - tneed >= HOIST: cand = (j + 1, lgn - k)
                    break
                if kind == 'ds': k += 1
            if cand:
                out.insert(cand[0], 's_waitcnt lgkmcnt(%d)' % min(cand[1], 15)); info.insert(cand[0], ('', 0))
                ln = min(lgn, 15)
                while len(lg) > ln: lg.pop(0)
                tick(0); hoisted = True
        if not hoisted and (vmn is not None or lgn is not None): do_wait(vmn, lgn)
        if ins.cls == 'branch' and 'NOFLUSH' not in line:
            n0 = need_nops(ins); nop(n0); flush_all(waits=False)
        else:
            nop(need_nops(ins))
        emit(line, 'big' if (ins.cls == 'mfma' and ins.passes == 8) else ('ds' if ins.cls in ('dsread', 'dswrite') else ('stop' if ins.cls in ('barrier','branch','smem') or 'exec' in line else '')))
        if ins.cls == 'mfma':
            clk[0] = max(clk[0], clk[1]); clk[1] = clk[0] + 4*ins.passes
        tissue = clk[0]
        tick()
        hist.append([ins, 0, tissue])
        if ins.cls in ('vload',): vm.append(set(ins.dst))
        elif ins.cls in ('vstore', 'vloadlds'): vm.append(set())
        elif ins.cls == 'vatomic': vm.append(set(ins.dst))
        elif ins.cls == 'dsread': lg.append(set(ins.dst)); lgt.append(tissue)
        elif ins.cls == 'dswrite': lg.append(set()); lgt.append(tissue)
        elif ins.cls == 'smem': sm |= set(ins.dst) if ins.dst else {('s', 999)}
        if len(lg) > 15: pass
    return out

class VA:
    def __init__(self, start=0, limit=256): self.n = start; self.limit = limit; self.hi = start
    def a(self, cnt=1, align=1):
        if cnt >= 2 and align < 2: align = 2
        self.n = (self.n + align - 1)//align*align
        r = self.n; self.n += cnt; self.hi = max(self.hi, self.n)
        assert self.n <= self.limit, "out of vgprs"
        return r
    def mark(self): return self.n
    def release(self, m): self.n = m
def vr(b, n=1): return 'v%d' % b if n == 1 else 'v[%d:%d]' % (b, b+n-1)
def sr(b, n=1): return 's%d' % b if n == 1 else 's[%d:%d]' % (b, b+n-1)

def list_schedule(items, lds_lat=110, verbose=False, filler=None, memdep=None):
    n = len(items)
    nodes = []
    for it in items:
        lines = [l for l in it.split('\n') if l.strip()]
        ps = [parse(l) for l in lines]
        dst = set(); src = set(); cls = None; mf = 0
        for p in ps:
            dst |= set(p.dst); src |= set(p.src) | set(p.srcC)
        p0 = ps[0]
        kind = p0.cls if len(ps) == 1 else 'block'
        if kind == 'mfma': mf = p0.passes
        hasdsw = any(p.cls == 'dswrite' for p in ps); hasdsr = any(p.cls == 'dsread' for p in ps)
        if kind == 'block':
            dst = {r for r in dst if r[0] != 's'}; src = {r for r in src if r[0] != 's'}
        acc_chain = (kind == 'mfma' and p0.dst == p0.srcC)
        nodes.append(dict(txt=it, dst=dst, src=src, kind=kind, mf=mf, n=len(ps), dsw=hasdsw, dsr=hasdsr, p=p0, vm=any(p.cls in ('vload','vstore') for p in ps)))
    succ = [[] for _ in range(n)]; npred = [0]*n
    lastw = {}; readers = {}; lastdsw_c = {}; dsr_c = {}; lastvm = None
    def edge(a, b_, lat):
        succ[a].append((b_, lat)); npred[b_] += 1
    def lat_raw(a, b_):
        A = nodes[a]; B = nodes[b_]
        if A['kind'] == 'mfma':
            if B['kind'] == 'mfma' and A['p'].dst == B['p'].srcC and not (set(A['p'].dst) & set(B['p'].src)): return 16 if A['mf'] == 4 else 32
            return 40 if A['mf'] == 4 else 56
        if A['dsr']: return lds_lat
        if A['kind'] == 'valu' and B['kind'] == 'mfma': return 12
        return 4*A['n'] + 1
    for i, nd in enumerate(nodes):
        for r in nd['src']:
            if r in lastw: edge(lastw[r], i, lat_raw(lastw[r], i))
        for r in nd['dst']:
            if r in lastw:
                a = lastw[r]
                edge(a, i, lat_raw(a, i) if nodes[a]['kind'] == 'mfma' and not (nd['kind'] == 'mfma' and nodes[a]['p'].dst == nd['p'].srcC) else (lds_lat if nodes[a]['dsr'] else 4))
            for a in readers.get(r, []):
                if a != i: edge(a, i, 8 if nodes[a]['kind'] == 'mfma' else 1)
        for r in nd['src']: readers.setdefault(r, []).append(i)
        for r in nd['dst']: lastw[r] = i; readers[r] = [i] if r in nd['src'] else []
        mc = 'all' if memdep is None else memdep(nd['txt'])
        if mc:
            if nd['dsw']:
                if mc in lastdsw_c: edge(lastdsw_c[mc], i, 1)
                for a_ in dsr_c.get(mc, []): edge(a_, i, 1)
                lastdsw_c[mc] = i; dsr_c[mc] = []
            if nd['dsr']:
                if mc in lastdsw_c and lastdsw_c[mc] != i: edge(lastdsw_c[mc], i, 40)
                dsr_c.setdefault(mc, []).append(i)
        if nd['vm']:
            if lastvm is not None: edge(lastvm, i, 1)
            lastvm = i
    prio = [0]*n
    for i in range(n-1, -1, -1):
        own = (nodes[i]['mf']*4 if nodes[i]['mf'] else 4*nodes[i]['n'])
        prio[i] = own + max([lat + prio[j] - own for j, lat in succ[i]] + [0]) if succ[i] else own
    ready_t = [0]*n; left = npred[:]; ready = [i for i in range(n) if left[i] == 0]
    t = 0; pipe = 0; ldsq = 0; out = []; lastmf = 0
    while ready:
        best = None
        for i in ready:
            nd = nodes[i]
            st = max(t, ready_t[i])
            if nd['mf']: st = max(st, pipe)
            if nd['dsr'] or nd['dsw']: st = max(st, ldsq - 24)
            key = (max(st - t, 0) > 0, st, -(1 if nd['mf'] else 0), -prio[i])
            fl = 1 if (filler and filler(nd['txt'])) else 0
            if st <= t:
                if nd['mf']: key = (0, 0, (0 if (nd['mf'] != lastmf) else 1), -prio[i], i)
                else: key = (0, 1, 1 - fl, -prio[i], i)
            else: key = (1, st, 0, -prio[i], i)
            if best is None or key < best[0]: best = (key, i, st)
        _, i, st = best
        nd = nodes[i]; ready.remove(i); out.append(nd['txt'])
        t = st
        if nd['mf']: pipe = t + nd['mf']*4; tn = t + 8; lastmf = nd['mf']
        else: tn = t + 4*nd['n']
        if nd['dsr'] or nd['dsw']: ldsq = max(ldsq, t) + 16
        for j, lat in succ[i]:
            ready_t[j] = max(ready_t[j], t + lat); left[j] -= 1
            if left[j] == 0: ready.append(j)
        t = tn
    if verbose: print('list_schedule: estimated', t, 'cycles for', n, 'items')
    assert len(out) == n
    return out
```

```python
from common import *
from modelA import CN, O_RN, O_R2E, O_R2O, O_R3E, O_R3O, O_RE, NREC
def pr(x): return f'v[{x}:{x+1}]'
def q4(x): return f'v[{x}:{x+3}]'
KP = 2240
UP = 144; PRE = 9
O_KC = 0
O_UL = 4*KP
O_YF = O_UL + (PRE+32)*UP
CH_SZ = O_YF + 12*272
def merge(a, b_):
    out = []; n = len(a); m = len(b_); k = 0
    for i, g in enumerate(a):
        out += g
        tgt = (m*(i+1))//n
        out += b_[k:tgt]; k = tgt
    return out
def sched(streams, bias=0):
    pos = [0]*len(streams); out = []; t = 0; pipe = 0
    total = [len(x) for x in streams]
    def ismf(x): return x.startswith('v_mfma')
    def cost(x): return 4*(x.count('\n') + 1)
    while any(pos[i] < total[i] for i in range(len(streams))):
        heads = [(i, streams[i][pos[i]]) for i in range(len(streams)) if pos[i] < total[i]]
        mf = [(i, x) for i, x in heads if ismf(x)]; nm = [(i, x) for i, x in heads if not ismf(x)]
        frac = lambda i: pos[i]/total[i]
        if mf and (pipe <= t + 4 or not nm):
            i, x = min(mf, key=lambda p: frac(p[0]))
            t = max(t, pipe); pipe = t + (32 if '32x32' in x else 16); t += 8
        else:
            i, x = min(nm, key=lambda p: frac(p[0])); t += cost(x)
        out.append(x); pos[i] += 1
    return out
def job_conv(b, s_idx, stflag='', wtouch=False):
    srd(b, 44, S_WS, SZ_REC, WS_REC); srd(b, 48, S_WS, SZ_UT, WS_UT); srd(b, 52, S_WS, SZ_TAB, WS_TAB)
    srd(b, 64, S_WS, SZ_UT, WS_YT)
    import os
    if os.environ.get('CVPRIO'): b('s_setprio 3')
    b('v_and_b32 v1, 63, v0'); b('v_lshrrev_b32 v4, 6, v0'); b('s_nop 0'); b('v_readfirstlane_b32 s60, v4')
    b(f's_lshl_b32 s63, s{s_idx}, 2'); b('s_add_u32 s63, s63, s60')
    b(f's_mul_i32 s68, s60, {CH_SZ}')
    b(f's_mul_i32 s70, s63, {REC_STRIDE}'); b('s_lshl_b32 s71, s63, 12')
    b('v_lshlrev_b32 v3, 3, v1'); b('v_lshlrev_b32 v5, 4, v1')
    ACC0, ACC1 = 8, 24
    AR, NA = 40, 7
    BR, NB = 68, 5
    BC = 88
    D1 = 104
    Y = 120
    S = 144
    YR = 216
    UW, RW = S, S+16
    for i in range(4): b(f'buffer_load_dwordx4 {q4(UW+4*i)}, v5, s[48:51], s71 offen offset:{1024*i}')
    for i in range(5): b(f'buffer_load_dwordx4 {q4(RW+4*i)}, v3, s[44:47], s70 offen offset:{512*i}')
    b(f's_mov_b32 s72, {TAB_BC}')
    for p in range(4): b(f'buffer_load_dwordx4 {q4(BC+4*p)}, v5, s[52:55], s72 offen offset:{1024*p}')
    b('v_mov_b32 v8, 0'); b('v_mov_b32 v9, 0'); b('v_mov_b32 v10, 0'); b('v_mov_b32 v11, 0')
    b('v_add_u32 v6, s68, v5'); b(f'ds_write_b128 v6, v[8:11] offset:{O_UL}')
    b('v_min_u32 v7, 16, v1'); b('v_lshlrev_b32 v7, 4, v7'); b('v_add_u32 v7, s68, v7'); b(f'ds_write_b128 v7, v[8:11] offset:{O_UL + 1024}')
    b('v_and_b32 v2, 15, v1'); b('v_lshrrev_b32 v12, 4, v1')
    b('v_and_b32 v4, 31, v1'); b('v_lshrrev_b32 v13, 5, v1')
    AN, AB, AD2, AT2, AYW, AYR, AOW, AOR = range(248, 256)
    AT3, AD3A, AD3B, ABE16, ABE17, AU, AK = range(Y, Y+7)
    AK2, AK3 = Y+7, 3
    T_ = 14
    def blkaddr(dst, qreg, base):
        b(f'v_lshrrev_b32 v{dst}, 3, v{qreg}'); b(f'v_mul_u32_u24 v{dst}, {UP}, v{dst}'); b(f'v_and_b32 v{T_}, 7, v{qreg}'); b(f'v_lshlrev_b32 v{T_}, 4, v{T_}')
        b(f'v_add3_u32 v{dst}, v{dst}, v{T_}, s68');
        if base: b(f'v_add_u32 v{dst}, {base}, v{dst}')
    blkaddr(AOR, 1, O_UL)
    b(f'v_add_u32 v{AU}, {PRE*UP}, v{AOR}')
    b(f'v_add_u32 v{AK}, s68, v3'); b(f'v_add_u32 v{AK2}, {2*KP}, v{AK}'); b(f'v_add_u32 v{AK3}, {3*KP}, v{AK}')
    def copyaddr(dst, x0reg, base):
        b(f'v_and_b32 v{T_}, 3, v{x0reg}'); b(f'v_sub_u32 v{dst}, v{x0reg}, v{T_}'); b(f'v_lshlrev_b32 v{dst}, 1, v{dst}')
        b(f'v_mul_u32_u24 v{T_}, {KP}, v{T_}'); b(f'v_add3_u32 v{dst}, v{dst}, v{T_}, s68')
        if base: b(f'v_add_u32 v{dst}, {2*base}, v{dst}')
    b('v_lshlrev_b32 v15, 2, v12')
    b('v_lshlrev_b32 v7, 1, v2'); b('v_sub_u32 v7, 30, v7'); b('v_add_u32 v7, v7, v15'); copyaddr(AT2, 7, O_R2E)
    b('v_sub_u32 v7, 15, v2'); b('v_add_u32 v7, v7, v15'); copyaddr(AT3, 7, O_R3E)
    b('v_sub_u32 v7, 31, v4'); b('v_lshlrev_b32 v16, 3, v13'); b('v_add_u32 v7, v7, v16'); copyaddr(AN, 7, O_RN)
    q0 = 8*PRE - 3
    b('v_add_u32 v7, v2, v12'); b(f'v_add_u32 v7, {q0}, v7'); blkaddr(AD2, 7, O_UL)
    b('v_lshlrev_b32 v7, 1, v2'); b('v_add_u32 v7, v7, v12'); b(f'v_add_u32 v7, {q0}, v7'); blkaddr(AD3A, 7, O_UL)
    b('v_add_u32 v7, 1, v7'); blkaddr(AD3B, 7, O_UL)
    b('v_lshrrev_b32 v7, 2, v2'); b('v_mul_u32_u24 v7, 272, v7'); b('v_and_b32 v16, 3, v2'); b('v_lshlrev_b32 v16, 6, v16'); b('v_add3_u32 v7, v7, v16, s68')
    b('v_lshlrev_b32 v16, 4, v12'); b('v_add_u32 v7, v7, v16'); b(f'v_add_u32 v{AYW}, {O_YF}, v7')
    b('v_lshlrev_b32 v16, 4, v13')
    b(f'v_mul_u32_u24 v7, {UP}, v4'); b('v_add3_u32 v7, v7, v16, s68'); b(f'v_add_u32 v{AB}, {O_UL}, v7')
    for (dst, dl) in ((ABE16, 16), (ABE17, 17)):
        b(f'v_subrev_u32 v7, {dl}, v4'); b('v_max_i32 v7, -1, v7'); b(f'v_add_u32 v7, {PRE}, v7'); b(f'v_mul_u32_u24 v7, {UP}, v7')
        b('v_add3_u32 v7, v7, v16, s68'); b(f'v_add_u32 v{dst}, {O_UL}, v7')
    b('v_mul_u32_u24 v7, 272, v4'); b('v_add3_u32 v7, v7, v16, s68'); b(f'v_add_u32 v{AYR}, {O_YF - 8*272}, v7')
    b(f'v_mul_u32_u24 v7, {UP}, v4'); b('v_lshlrev_b32 v16, 3, v13'); b('v_add3_u32 v7, v7, v16, s68'); b(f'v_add_u32 v{AOW}, {O_UL}, v7')
    if wtouch:
        srd(b, 84, S_WR, 2048*642); srd(b, 88, S_WI, 2048*642)
        b(f's_lshr_b32 s73, s{s_idx}, 3'); b('s_mul_i32 s73, s73, 77'); b('s_and_b32 s74, s60, 1'); b('s_lshl_b32 s74, s74, 6')
        b('v_add_u32 v17, s74, v1'); b('v_cmp_gt_u32 vcc, 77, v17'); b('v_add_u32 v17, s73, v17')
        b('v_mul_u32_u24 v7, 10923, v17'); b('v_lshrrev_b32 v7, 16, v7')
        b('v_mul_u32_u24 v18, 6, v7'); b('v_sub_u32 v18, v17, v18'); b('v_lshlrev_b32 v18, 7, v18')
        b(f's_and_b32 s74, s{s_idx}, 7'); b('v_lshlrev_b32 v7, 3, v7'); b('v_add_u32 v7, s74, v7'); b('v_mul_u32_u24 v7, 642, v7'); b('v_add_u32 v7, v7, v18')
        b('v_and_b32 v7, -4, v7'); b('v_mov_b32 v18, 0x80000000'); b('v_cndmask_b32 v7, v18, v7, vcc')
        b('s_cmp_lt_u32 s60, 2'); b('s_cbranch_scc0 CV_NOTOUCH ; NOFLUSH')
        b('buffer_load_dword v3, v7, s[84:87], 0 offen'); b('buffer_load_dword v2, v7, s[88:91], 0 offen')
        b('CV_NOTOUCH: ; NOFLUSH')
    for q in range(16): b(f'v_mov_b32 v{ACC0+q}, 0'); b(f'v_mov_b32 v{ACC1+q}, 0')
    b('STAMP 0 vmcnt(4)')
    PRO = []
    for i in range(4): PRO.append(f'ds_write_b128 v{AU}, {q4(UW+4*i)} offset:{8*UP*i}')
    for i in range(5):
        w = RW + 4*i; o = 512*i; t0 = AR + 4*(i % 3)
        PRO += [f'v_alignbit_b32 v{t0}, v{w+1}, v{w}, 16', f'v_alignbit_b32 v{t0+1}, v{w+2}, v{w+1}, 16', f'v_alignbit_b32 v{t0+2}, v{w+3}, v{w+2}, 16']
        blk = [f'ds_write_b64 v{AK}, {pr(w)} offset:{o}', f'ds_write_b64 v{AK}, {pr(t0)} offset:{KP + o}',
               f'ds_write2_b32 v{AK2}, v{w+1}, v{w+2} offset0:{o//4} offset1:{o//4+1}' if o//4+1 < 256 else None,
               f'ds_write2_b32 v{AK3}, v{t0+1}, v{t0+2} offset0:{o//4} offset1:{o//4+1}' if o//4+1 < 256 else None]
        if blk[2] is None:
            blk = blk[:2] + [f'v_add_u32 v7, {o}, v{AK2}', f'ds_write2_b32 v7, v{w+1}, v{w+2} offset0:0 offset1:1', f'v_add_u32 v6, {o}, v{AK3}', f'ds_write2_b32 v6, v{t0+1}, v{t0+2} offset0:0 offset1:1']
        if i == 4: PRO.append('\n'.join(['s_mov_b64 s[76:77], exec', 's_mov_b64 exec, 0xffffff'] + blk + ['s_mov_b64 exec, s[76:77]']))
        else:
            if i >= 2: PRO.append('\n'.join(blk[2:4])); PRO.append('\n'.join(blk[4:6])); PRO += blk[:2]
            else: PRO += blk
    b('STAMP 1')
    F = []
    f = F.append
    T3, G3, DA3 = S, S+16, S+32
    def gpack(d, g):
        f(f'v_cvt_pk_bf16_f32 v{g}, v{d}, v{d+1}'); f(f'v_cvt_pk_bf16_f32 v{g+1}, v{d+2}, v{d+3}')
        f(f'v_cvt_pk_bf16_f32 v{g+2}, v{d+4}, v{d+5}'); f(f'v_cvt_pk_bf16_f32 v{g+3}, v{d+6}, v{d+7}')
    for beta in range(4):
        f(f'ds_read_b128 {q4(DA3+8*beta)}, v{AD3A} offset:{4*UP*beta}'); f(f'ds_read_b128 {q4(DA3+8*beta+4)}, v{AD3B} offset:{4*UP*beta}')
    for s in range(4):
        f(f'ds_read_b64 {pr(T3+4*s)}, v{AT3} offset:{32*(3-s)}'); f(f'ds_read_b64 {pr(T3+4*s+2)}, v{AT3} offset:{32*(3-s) + 2*(O_R3O-O_R3E)}')
    for beta in range(4):
        d = D1 + 8*(beta & 1)
        f(f'v_mfma_f32_16x16x32_bf16 {q4(d)}, {q4(DA3+8*beta)}, {q4(BC+8)}, 0')
        f(f'v_mfma_f32_16x16x32_bf16 {q4(d+4)}, {q4(DA3+8*beta+4)}, {q4(BC+12)}, 0')
        if beta >= 1: gpack(D1 + 8*((beta-1) & 1), G3 + 4*(beta-1))
    T2 = S + 32
    DA = S + 56
    for s in range(6):
        f(f'ds_read_b64 {pr(T2+4*s)}, v{AT2} offset:{32*s}'); f(f'ds_read_b64 {pr(T2+4*s+2)}, v{AT2} offset:{32*s + 2*(O_R2O-O_R2E)}')
    for q in range(4): f(f'ds_read_b128 {q4(DA+4*q)}, v{AD2} offset:{2*UP*q}')
    gpack(D1 + 8, G3 + 12)
    for tp in range(4):
        y = Y + 4*(tp+2)
        for beta in range(tp+1):
            f(f'v_mfma_f32_16x16x32_bf16 {q4(y)}, {q4(G3+4*beta)}, {q4(T3+4*(tp-beta))}, ' + ('0' if beta == 0 else q4(y)))
    def yround(rd):
        if rd == 0:
            for q in range(32): f(f'v_mov_b32 v{YR+q}, 0')
        for tt in range(3*rd, 3*rd+3): f(f'ds_write_b128 v{AYW}, {q4(Y+4*tt)} offset:{(tt-3*rd)*4*272}')
        lo = 8 + 12*rd; mask = ((1 << 12) - 1) << lo
        f('s_mov_b64 s[76:77], exec'); f(f's_mov_b32 s78, {hex(mask)}'); f(f's_mov_b32 s79, {hex(mask)}'); f('s_mov_b64 exec, s[78:79]')
        f(f'v_subrev_u32 v7, {12*272*rd}, v{AYR}' if rd else f'v_mov_b32 v7, v{AYR}')
        for mt in range(2):
            for g in range(4): f(f'ds_read_b128 {q4(YR+16*mt+4*g)}, v7 offset:{128*mt + 32*g}')
        f('s_mov_b64 exec, s[76:77]')
    G = S
    pend = None
    def tile(tt):
        y = Y + 4*tt; first = tt < 2
        for beta in range(max(0, 2*tt-4), 2*tt+2):
            f(f'v_mfma_f32_16x16x32_bf16 {q4(y)}, {q4(G+4*(beta % 8))}, {q4(T2+4*(beta-2*tt+4))}, ' + ('0' if first else q4(y))); first = False
    for tau in range(6):
        for beta in (2*tau, 2*tau+1):
            da = DA + 4*(beta & 3); d = D1 + 8*(beta & 1); g = G + 4*(beta % 8)
            f(f'v_mfma_f32_16x16x32_bf16 {q4(d)}, {q4(da)}, {q4(BC)}, 0')
            f(f'v_mfma_f32_16x16x32_bf16 {q4(d+4)}, {q4(da)}, {q4(BC+4)}, 0')
            if beta + 4 < 12: f(f'ds_read_b128 {q4(da)}, v{AD2} offset:{2*UP*(beta+4)}')
            if pend: gpack(*pend)
            pend = (d, g)
        if tau >= 1: tile(tau - 1)
        if tau == 3: yround(0)
    gpack(*pend)
    tile(5)
    yround(1)
    NS = 37; PF = 4
    def dk(o):
        dl = -((-o)//64); return dl, (64*dl - o)//16
    def issueA(s):
        r = AR + 4*(s % NA)
        return [f'ds_read_b64 {pr(r)}, v{AN} offset:{32*s}', f'ds_read_b64 {pr(r+2)}, v{AN} offset:{32*s+8}']
    def issueB(s):
        dl, ks = dk(528 - 16*s); r = BR + 4*(s % NB)
        return [f'ds_read_b128 {q4(r)}, v{AB} offset:{(9-dl)*UP + 32*ks}']
    groups = []
    for k in range(NS + PF):
        g = []
        if k >= PF:
            s = k - PF; bb = BR + 4*(s % NB)
            if s <= 34: g.append(f'v_mfma_f32_32x32x16_bf16 v[{ACC0}:{ACC0+15}], {q4(AR+4*(s % NA))}, {q4(bb)}, v[{ACC0}:{ACC0+15}]')
            if s >= 2: g.append(f'v_mfma_f32_32x32x16_bf16 v[{ACC1}:{ACC1+15}], {q4(AR+4*((s-2) % NA))}, {q4(bb)}, v[{ACC1}:{ACC1+15}]')
        if k < NS:
            if k <= 34: g += issueA(k)
            g += issueB(k)
        groups.append(g)
    EA = YR; EB = YR + 12
    er = []
    for q, op in enumerate((1040, 1024, 1008)):
        ao = 2*(O_RE + 1087 - op - 31)
        er += [f'ds_read_b64 {pr(EA+4*q)}, v{AN} offset:{ao}', f'ds_read_b64 {pr(EA+4*q+2)}, v{AN} offset:{ao+8}']
    er.append(f'ds_read_b128 {q4(EB)}, v{ABE17} offset:96')
    for ks in range(4): er.append(f'ds_read_b128 {q4(EB+4+4*ks)}, v{ABE16} offset:{32*ks}')
    a0 = f'v[{ACC0}:{ACC0+15}]'; a1 = f'v[{ACC1}:{ACC1+15}]'
    em = [f'v_mfma_f32_32x32x16_bf16 {a0}, {q4(EA)}, {q4(EB)}, {a0}', f'v_mfma_f32_32x32x16_bf16 {a1}, {q4(EA)}, {q4(EB+8)}, {a1}',
          f'v_mfma_f32_32x32x16_bf16 {a0}, {q4(EA+4)}, {q4(EB+4)}, {a0}', f'v_mfma_f32_32x32x16_bf16 {a1}, {q4(EA+4)}, {q4(EB+12)}, {a1}',
          f'v_mfma_f32_32x32x16_bf16 {a0}, {q4(EA+8)}, {q4(EB+8)}, {a0}', f'v_mfma_f32_32x32x16_bf16 {a1}, {q4(EA+8)}, {q4(EB+16)}, {a1}']
    F2 = []; atomic = None
    for x in F:
        if x.startswith('s_mov_b64 s[76:77], exec'): atomic = [x]
        elif atomic is not None:
            atomic.append(x)
            if x.startswith('s_mov_b64 exec, s[76:77]'): F2.append('\n'.join(atomic)); atomic = None
        else: F2.append(x)
    near = [x for g in groups for x in g]
    import os
    ex = os.environ.get('CVEXP', '')
    if ex == 'near': F2 = []
    if ex == 'far': near = []
    if ex == 'nolds': near = [x for x in near if not x.startswith('ds_')]; F2 = [x for x in F2 if not x.startswith('ds_read')]
    if ex == 'nearnolds': near = [x for x in near if not x.startswith('ds_')]; F2 = []
    def mclass(x):
        if 'ds_write' in x and (f'v{AYW},' in x): return 'Y'
        if 'exec' in x and 'ds_read' in x: return 'Y'
        if 'ds_' not in x: return None
        if any(f'v{r},' in x or f'v{r} ' in x for r in (AU, AB, AD2, AD3A, AD3B, ABE16, ABE17)): return 'U'
        return 'K'
    nearset = set(near) | set(er) | set(em) | set(PRO)
    seq = list_schedule(PRO + er + em + F2 + near, verbose=True, filler=lambda x: x in nearset, memdep=mclass)
    for l in seq: b(l)
    b('STAMP 2')
    for mt, acc in ((0, ACC0), (1, ACC1)):
        for q in range(8): b(f'v_pk_add_f32 {pr(acc+2*q)}, {pr(acc+2*q)}, {pr(YR+16*mt+2*q)}')
    b('STAMP 3')
    OB = 88
    for mt, acc in ((0, ACC0), (1, ACC1)):
        for g in range(4):
            o = OB + 8*mt + 2*g
            b(f'v_cvt_pk_bf16_f32 v{o}, v{acc+4*g}, v{acc+4*g+1}'); b(f'v_cvt_pk_bf16_f32 v{o+1}, v{acc+4*g+2}, v{acc+4*g+3}')
            b(f'ds_write_b64 v{AOW}, {pr(o)} offset:{64*mt + 16*g}')
    for i in range(4): b(f'ds_read_b128 {q4(104+4*i)}, v{AOR} offset:{8*UP*i}')
    for i in range(4): b(f'buffer_store_dwordx4 {q4(104+4*i)}, v5, s[64:67], s71 offen offset:{1024*i} {stflag}')
    b('s_endpgm')
```

```python
from common import *
from modelA import CN, O_RN, O_R2E, O_R2O, O_R3E, O_R3O, O_RE, NREC
def pr(x): return f'v[{x}:{x+1}]'
def q4(x): return f'v[{x}:{x+3}]'
KP = 2240
UP = 144; PRE = 9
O_KC = 0
O_UL = 4*KP
O_YF = O_UL + (PRE+32)*UP
CH_SZ = O_YF + 24*272
def job_conv(b, s_idx, stflag='sc1'):
    srd(b, 44, S_WS, SZ_REC, WS_REC); srd(b, 48, S_WS, SZ_UT, WS_UT); srd(b, 52, S_WS, SZ_TAB, WS_TAB)
    srd(b, 64, S_WS, SZ_UT, WS_YT)
    b('v_and_b32 v1, 63, v0'); b('v_lshrrev_b32 v4, 6, v0'); b('s_nop 0'); b('v_readfirstlane_b32 s60, v4')
    b('s_lshr_b32 s61, s60, 1'); b('s_and_b32 s62, s60, 1')
    b(f's_lshl_b32 s63, s{s_idx}, 1'); b('s_add_u32 s63, s63, s61')
    b(f's_mul_i32 s68, s61, {CH_SZ}')
    b(f's_mul_i32 s70, s63, {REC_STRIDE}'); b('s_lshl_b32 s71, s63, 12')
    b('v_lshlrev_b32 v3, 3, v1'); b('v_lshlrev_b32 v5, 4, v1')
    ACC = 8
    AR, NA = 24, 5
    BR, NB = 44, 5
    BC = 64
    D1 = 80
    Y = 96
    S = 112
    YR = 184
    AN, AB, AD2, AT2, AYW, AYR, AOW, AOR, AT3, AD3A, AD3B, ABE, ABE2, AU, AK, AK2, AK3 = range(208, 225)
    UW, RW = S, S+8
    b('s_lshl_b32 s72, s62, 11'); b('s_add_u32 s72, s72, s71')
    for i in range(2): b(f'buffer_load_dwordx4 {q4(UW+4*i)}, v5, s[48:51], s72 offen offset:{1024*i}')
    b('s_lshl_b32 s73, s62, 9'); b('s_add_u32 s73, s73, s70')
    for i in range(3): b(f'buffer_load_dwordx4 {q4(RW+4*i)}, v3, s[44:47], s73 offen offset:{1024*i}')
    b(f's_mov_b32 s74, {TAB_BC}')
    for p in range(4): b(f'buffer_load_dwordx4 {q4(BC+4*p)}, v5, s[52:55], s74 offen offset:{1024*p}')
    b('v_mov_b32 v8, 0'); b('v_mov_b32 v9, 0'); b('v_mov_b32 v10, 0'); b('v_mov_b32 v11, 0')
    b('s_lshl_b32 s75, s62, 6'); b('v_add_u32 v7, s75, v1'); b('v_min_u32 v7, 80, v7'); b('v_lshlrev_b32 v7, 4, v7'); b('v_add_u32 v7, s68, v7')
    b(f'ds_write_b128 v7, v[8:11] offset:{O_UL}')
    b('v_and_b32 v2, 15, v1'); b('v_lshrrev_b32 v12, 4, v1'); b('v_and_b32 v4, 31, v1'); b('v_lshrrev_b32 v13, 5, v1')
    T_ = 14
    def blkaddr(dst, qreg, base):
        b(f'v_lshrrev_b32 v{dst}, 3, v{qreg}'); b(f'v_mul_u32_u24 v{dst}, {UP}, v{dst}'); b(f'v_and_b32 v{T_}, 7, v{qreg}'); b(f'v_lshlrev_b32 v{T_}, 4, v{T_}')
        b(f'v_add3_u32 v{dst}, v{dst}, v{T_}, s68')
        if base: b(f'v_add_u32 v{dst}, {base}, v{dst}')
    blkaddr(AOR, 1, O_UL); b(f's_mul_i32 s75, s62, {16*UP}'); b(f'v_add_u32 v{AOR}, s75, v{AOR}')
    b(f'v_add_u32 v{AU}, {PRE*UP}, v{AOR}')
    b('s_lshl_b32 s75, s62, 9'); b(f'v_add3_u32 v{AK}, v3, s75, s68'.replace('s75, s68', 's75, v3') if False else f'v_add_u32 v{AK}, s68, v3'); b(f'v_add_u32 v{AK}, s75, v{AK}')
    b(f'v_add_u32 v{AK2}, {2*KP}, v{AK}'); b(f'v_add_u32 v{AK3}, {3*KP}, v{AK}')
    def copyaddr(dst, x0reg, base):
        b(f'v_and_b32 v{T_}, 3, v{x0reg}'); b(f'v_sub_u32 v{dst}, v{x0reg}, v{T_}'); b(f'v_lshlrev_b32 v{dst}, 1, v{dst}')
        b(f'v_mul_u32_u24 v{T_}, {KP}, v{T_}'); b(f'v_add3_u32 v{dst}, v{dst}, v{T_}, s68')
        if base: b(f'v_add_u32 v{dst}, {2*base}, v{dst}')
    b('v_lshlrev_b32 v15, 2, v12')
    b('v_lshlrev_b32 v7, 1, v2'); b('v_sub_u32 v7, 30, v7'); b('v_add_u32 v7, v7, v15'); copyaddr(AT2, 7, O_R2E)
    b('v_sub_u32 v7, 15, v2'); b('v_add_u32 v7, v7, v15'); copyaddr(AT3, 7, O_R3E)
    b('v_sub_u32 v7, 31, v4'); b('v_lshlrev_b32 v16, 3, v13'); b('v_add_u32 v7, v7, v16'); copyaddr(AN, 7, O_RN)
    q0 = 8*PRE - 3
    b('v_add_u32 v7, v2, v12'); b(f'v_add_u32 v7, {q0}, v7'); blkaddr(AD2, 7, O_UL)
    b('v_lshlrev_b32 v7, 1, v2'); b('v_add_u32 v7, v7, v12'); b(f'v_add_u32 v7, {q0}, v7'); blkaddr(AD3A, 7, O_UL)
    b('v_add_u32 v7, 1, v7'); blkaddr(AD3B, 7, O_UL)
    b('v_lshrrev_b32 v7, 2, v2'); b('v_mul_u32_u24 v7, 272, v7'); b('v_and_b32 v16, 3, v2'); b('v_lshlrev_b32 v16, 6, v16'); b('v_add3_u32 v7, v7, v16, s68')
    b('v_lshlrev_b32 v16, 4, v12'); b('v_add_u32 v7, v7, v16'); b(f'v_add_u32 v{AYW}, {O_YF}, v7')
    b('v_lshlrev_b32 v16, 4, v13')
    b(f'v_mul_u32_u24 v7, {UP}, v4'); b('v_add3_u32 v7, v7, v16, s68'); b(f'v_add_u32 v{AB}, {O_UL}, v7')
    for (dst, dl) in ((ABE, 16), (ABE2, 17)):
        b(f'v_subrev_u32 v7, {dl}, v4'); b('v_max_i32 v7, -1, v7'); b(f'v_add_u32 v7, {PRE}, v7'); b(f'v_mul_u32_u24 v7, {UP}, v7')
        b('v_add3_u32 v7, v7, v16, s68'); b(f'v_add_u32 v{dst}, {O_UL}, v7')
    b('v_mul_u32_u24 v7, 272, v4'); b('v_add3_u32 v7, v7, v16, s68'); b('s_lshl_b32 s75, s62, 7'); b(f's_add_u32 s75, s75, {O_YF - 8*272}'); b(f'v_add_u32 v{AYR}, s75, v7')
    b(f'v_mul_u32_u24 v7, {UP}, v4'); b('v_lshlrev_b32 v16, 3, v13'); b('v_add3_u32 v7, v7, v16, s68'); b('s_lshl_b32 s75, s62, 6'); b(f's_add_u32 s75, s75, {O_UL}'); b(f'v_add_u32 v{AOW}, s75, v7')
    for q in range(16): b(f'v_mov_b32 v{ACC+q}, 0')
    b('STAMP 0 vmcnt(4)')
    for i in range(2): b(f'ds_write_b128 v{AU}, {q4(UW+4*i)} offset:{8*UP*i}')
    for i in range(3):
        w = RW + 4*i; o = 1024*i; t0 = AR + 4*i
        b(f'v_alignbit_b32 v{t0}, v{w+1}, v{w}, 16'); b(f'v_alignbit_b32 v{t0+1}, v{w+2}, v{w+1}, 16'); b(f'v_alignbit_b32 v{t0+2}, v{w+3}, v{w+2}, 16')
        if i == 2:
            b('s_mov_b64 s[76:77], exec'); b('s_cmp_eq_u32 s62, 0'); b('s_cselect_b32 s78, 0xffffff, 0'); b('s_mov_b32 s79, 0'); b('s_mov_b64 exec, s[78:79]')
            b('s_cbranch_execz CV_NOW4 ; NOFLUSH')
        b(f'ds_write_b64 v{AK}, {pr(w)} offset:{o}'); b(f'ds_write_b64 v{AK}, {pr(t0)} offset:{KP + o}')
        b(f'v_add_u32 v7, {o}, v{AK2}'); b(f'ds_write2_b32 v7, v{w+1}, v{w+2} offset0:0 offset1:1')
        b(f'v_add_u32 v6, {o}, v{AK3}'); b(f'ds_write2_b32 v6, v{t0+1}, v{t0+2} offset0:0 offset1:1')
        if i == 2:
            b('CV_NOW4: ; NOFLUSH'); b('s_mov_b64 exec, s[76:77]')
    b('s_barrier')
    b('STAMP 1')
    def streams(role):
        F = []; f = F.append
        tiles = (0, 1, 2, 3) if role == 0 else (4, 5)
        s3 = (0, 1) if role == 0 else (2, 3)
        yreg = {t: Y + 4*(t - tiles[0]) for t in tiles}
        T3, G3, DA3 = S, S+16, S+32
        def gpack(d, g):
            f(f'v_cvt_pk_bf16_f32 v{g}, v{d}, v{d+1}'); f(f'v_cvt_pk_bf16_f32 v{g+1}, v{d+2}, v{d+3}')
            f(f'v_cvt_pk_bf16_f32 v{g+2}, v{d+4}, v{d+5}'); f(f'v_cvt_pk_bf16_f32 v{g+3}, v{d+6}, v{d+7}')
        nb3 = max(s3) + 1
        for beta in range(nb3):
            f(f'ds_read_b128 {q4(DA3+8*beta)}, v{AD3A} offset:{4*UP*beta}'); f(f'ds_read_b128 {q4(DA3+8*beta+4)}, v{AD3B} offset:{4*UP*beta}')
        sigs3 = sorted({tp - be for tp in s3 for be in range(tp+1)})
        for s in sigs3:
            f(f'ds_read_b64 {pr(T3+4*s)}, v{AT3} offset:{32*(3-s)}'); f(f'ds_read_b64 {pr(T3+4*s+2)}, v{AT3} offset:{32*(3-s) + 2*(O_R3O-O_R3E)}')
        for beta in range(nb3):
            d = D1 + 8*(beta & 1)
            f(f'v_mfma_f32_16x16x32_bf16 {q4(d)}, {q4(DA3+8*beta)}, {q4(BC+8)}, 0'); f(f'v_mfma_f32_16x16x32_bf16 {q4(d+4)}, {q4(DA3+8*beta+4)}, {q4(BC+12)}, 0')
            gpack(d, G3 + 4*beta)
        for tp in s3:
            y = yreg[tp+2]
            for beta in range(tp+1):
                f(f'v_mfma_f32_16x16x32_bf16 {q4(y)}, {q4(G3+4*beta)}, {q4(T3+4*(tp-beta))}, ' + ('0' if beta == 0 else q4(y)))
        started = {tp+2 for tp in s3}
        T2 = S + 32; DA = S + 56; G = S
        sig2 = sorted({be - 2*t for t in tiles for be in range(max(0, 2*t-4), 2*t+2)})
        for s in sig2:
            f(f'ds_read_b64 {pr(T2+4*(s+4))}, v{AT2} offset:{32*(s+4)}'); f(f'ds_read_b64 {pr(T2+4*(s+4)+2)}, v{AT2} offset:{32*(s+4) + 2*(O_R2O-O_R2E)}')
        betas = list(range(max(0, 2*tiles[0]-4), 2*tiles[-1]+2))
        for q, be in enumerate(betas[:4]): f(f'ds_read_b128 {q4(DA+4*(q & 3))}, v{AD2} offset:{2*UP*be}')
        def tile(t):
            y = yreg[t]; first = t not in started
            for be in range(max(0, 2*t-4), 2*t+2):
                f(f'v_mfma_f32_16x16x32_bf16 {q4(y)}, {q4(G+4*(be % 8))}, {q4(T2+4*(be-2*t+4))}, ' + ('0' if first else q4(y))); first = False
            f(f'ds_write_b128 v{AYW}, {q4(y)} offset:{t*4*272}')
        for q, be in enumerate(betas):
            da = DA + 4*(q & 3); d = D1 + 8*(q & 1); g = G + 4*(be % 8)
            f(f'v_mfma_f32_16x16x32_bf16 {q4(d)}, {q4(da)}, {q4(BC)}, 0'); f(f'v_mfma_f32_16x16x32_bf16 {q4(d+4)}, {q4(da)}, {q4(BC+4)}, 0')
            if q + 4 < len(betas): f(f'ds_read_b128 {q4(da)}, v{AD2} offset:{2*UP*betas[q+4]}')
            gpack(d, g)
            for t in tiles:
                if be == 2*t + 1: tile(t)
        def dk(o):
            dl = -((-o)//64); return dl, (64*dl - o)//16
        near = []
        acc = f'v[{ACC}:{ACC+15}]'
        PF = 4; NS = 35
        def rd(t):
            s = t + 2*role; dl, ks = dk(528 - 16*s)
            ra = AR + 4*(t % NA); rb = BR + 4*(t % NB)
            return [f'ds_read_b64 {pr(ra)}, v{AN} offset:{32*t}', f'ds_read_b64 {pr(ra+2)}, v{AN} offset:{32*t+8}', f'ds_read_b128 {q4(rb)}, v{AB} offset:{(9-dl)*UP + 32*ks}']
        for k in range(NS + PF):
            if k >= PF:
                t = k - PF
                near.append(f'v_mfma_f32_32x32x16_bf16 {acc}, {q4(AR+4*(t % NA))}, {q4(BR+4*(t % NB))}, {acc}')
            if k < NS: near += rd(k)
        EA = YR; EB = YR + 12
        er = []
        for q, op in enumerate((1040, 1024, 1008)):
            ao = 2*(O_RE + 1087 - op - 31)
            er += [f'ds_read_b64 {pr(EA+4*q)}, v{AN} offset:{ao}', f'ds_read_b64 {pr(EA+4*q+2)}, v{AN} offset:{ao+8}']
        if role == 0: eb = [(ABE2, 96), (ABE, 0), (ABE, 32)]
        else: eb = [(ABE, 32), (ABE, 64), (ABE, 96)]
        for q, (ad, off) in enumerate(eb): er.append(f'ds_read_b128 {q4(EB+4*q)}, v{ad} offset:{off}')
        em = [f'v_mfma_f32_32x32x16_bf16 {acc}, {q4(EA+4*q)}, {q4(EB+4*q)}, {acc}' for q in range(3)]
        nearset = set(near) | set(er) | set(em)
        return list_schedule(er + em + F + near, verbose=True, filler=lambda x: x in nearset, memdep=lambda x: None)
    b('s_cmp_eq_u32 s62, 1'); b('s_cbranch_scc1 CV_R1')
    for l in streams(0): b(l)
    b('s_branch CV_JOIN')
    b.label('CV_R1')
    for l in streams(1): b(l)
    b.label('CV_JOIN')
    b('STAMP 2')
    b('s_barrier')
    YRR = 24
    b('s_mov_b64 s[76:77], exec'); b('s_mov_b32 s78, 0xffffff00'); b('s_mov_b32 s79, 0xffffff00'); b('s_mov_b64 exec, s[78:79]')
    for g in range(4): b(f'ds_read_b128 {q4(YRR+4*g)}, v{AYR} offset:{32*g}')
    for q in range(8): b(f'v_pk_add_f32 {pr(ACC+2*q)}, {pr(ACC+2*q)}, {pr(YRR+2*q)}')
    b('s_mov_b64 exec, s[76:77]')
    OB = 44
    for g in range(4):
        o = OB + 2*g
        b(f'v_cvt_pk_bf16_f32 v{o}, v{ACC+4*g}, v{ACC+4*g+1}'); b(f'v_cvt_pk_bf16_f32 v{o+1}, v{ACC+4*g+2}, v{ACC+4*g+3}')
        b(f'ds_write_b64 v{AOW}, {pr(o)} offset:{16*g}')
    b('STAMP 3')
    b('s_barrier')
    for i in range(2): b(f'ds_read_b128 {q4(56+4*i)}, v{AOR} offset:{8*UP*i}')
    for i in range(2): b(f'buffer_store_dwordx4 {q4(56+4*i)}, v5, s[64:67], s72 offen offset:{1024*i} {stflag}')
    b('s_endpgm')
```

```python
import sys
from common import *
from jobs_tr import job_transpose
from jobs_p1 import job_p1
from jobs_tab import job_tab, NTAB, job_tab2, NTAB2
from jobs_kgen import job_kgen
from jobs_p2 import job_p2
from jobs_p2b import job_p2 as job_p2b
from jobs_p3 import job_p3
from jobs_wp import job_wp, NWP
from jobs_pf import job_pf, NPF
from jobs_conv3 import job_conv, CH_SZ
import jobs_conv4
HEADER = open('concat_heads__ssm_conv_s4d__spectral_gfnet__prompt.s.ref').read().split('\n')
hdr = [l for l in HEADER if l.startswith(';') and '@launch' not in l and 'Override launch' not in l and 'grid=ceil' not in l]
hdr = hdr[:14]
def dispatch(b, kname, jobs):
    prologue(b)
    start = 0
    for (name, cnt, fn) in jobs:
        b(f's_cmp_lt_u32 s2, {start+cnt}'); b(f's_cbranch_scc1 {kname}_{name}')
        start += cnt
    b('EXITPATH'); b('s_endpgm')
    start = 0
    for (name, cnt, fn) in jobs:
        b.label(f'{kname}_{name}')
        b(f's_sub_u32 s3, s2, {start}')
        fn(b)
        start += cnt
    return start
def uniq(lines, pre):
    return lines
kernels = []
JOBMAP = {}
INSTR = False
WS_PROF = 0x2000000
def instrument(lines, kidx):
    out = []
    first = True
    for l in lines:
        if l.strip() == 's_waitcnt lgkmcnt(0)' and first:
            out.append(l); first = False
            out += ['s_memrealtime s[90:91]', 's_mov_b32 s92, 0', 's_mov_b32 s93, 0', 's_mov_b32 s94, 0', 's_mov_b32 s95, 0', 's_waitcnt lgkmcnt(0)']
            continue
        if l.strip().startswith('STAMP'):
            k = int(l.split()[1])
            if len(l.split()) > 2: out.append('s_waitcnt ' + l.split()[2])
            out += ['s_memrealtime s[96:97]', 's_waitcnt lgkmcnt(0)', f's_mov_b32 s{92+k}, s96']
            continue
        if l.strip() == 's_endpgm' and not first and out[-1].strip() != 'EXITPATH':
            out += ['s_waitcnt vmcnt(0) lgkmcnt(0)', 's_memrealtime s[96:97]', 's_waitcnt lgkmcnt(0)',
                    f's_add_u32 s84, s40, {hex(WS_PROF + kidx*0x40000)}', 's_addc_u32 s85, s41, 0', 's_and_b32 s85, s85, 0xffff', 's_mov_b32 s86, 0x40000', 's_mov_b32 s87, 0x20000',
                    'v_lshrrev_b32 v1, 6, v0', 'v_lshlrev_b32 v1, 5, v1', 's_lshl_b32 s88, s2, 7', 'v_add_u32 v1, s88, v1',
                    's_getreg_b32 s89, hwreg(HW_REG_XCC_ID)', 's_getreg_b32 s88, hwreg(HW_REG_HW_ID)',
                    'v_mov_b32 v2, s90', 'v_mov_b32 v3, s96', 'v_mov_b32 v4, s89', 'v_mov_b32 v5, s88', 'v_mov_b32 v6, s92', 'v_mov_b32 v7, s93', 'v_mov_b32 v8, s94', 'v_mov_b32 v9, s95',
                    'v_and_b32 v10, 63, v0', 'v_cmp_eq_u32 vcc, 0, v10', 's_and_saveexec_b64 s[98:99], vcc',
                    'buffer_store_dwordx4 v[2:5], v1, s[84:87], 0 offen', 'buffer_store_dwordx4 v[6:9], v1, s[84:87], 0 offen offset:16', 's_endpgm']
            continue
        if l.strip() == 'EXITPATH': out.append(l); continue
        out.append(l)
    return [l for l in out if l.strip() != 'EXITPATH']
DBG = False
def dbgstamp(lines, kidx, picks):
    out = []; first = True
    for l in lines:
        t = l.strip()
        if t == 's_waitcnt lgkmcnt(0)' and first:
            out.append(l); first = False
            out += ['s_memrealtime s[90:91]', 's_waitcnt lgkmcnt(0)']
            continue
        if t.startswith('STAMP'): continue
        if t == 'EXITPATH': out.append(l); continue
        if t == 's_endpgm' and not first and out[-1].strip() != 'EXITPATH':
            lab = 'DBGE_%d_%d' % (kidx, len(out))
            out += ['s_mov_b32 s88, -1']
            for wg, word in picks.items():
                if wg == 'start': continue
                out += [f's_cmp_eq_u32 s2, {wg}', f's_cselect_b32 s88, {word*4}, s88']
            out += ['s_cmp_eq_u32 s2, 0', f's_cselect_b32 s89, 1, 0', 's_or_b32 s87, s89, 0',
                    's_cmp_eq_u32 s88, -1', 's_cselect_b32 s86, 0, 1', 's_or_b32 s86, s86, s89', 's_cmp_eq_u32 s86, 0', f's_cbranch_scc1 {lab}',
                    's_waitcnt vmcnt(0) lgkmcnt(0)', 's_memrealtime s[96:97]', 's_waitcnt lgkmcnt(0)',
                    f's_add_u32 s84, s40, {hex(WS_PROF)}', 's_addc_u32 s85, s41, 0', 's_and_b32 s85, s85, 0xffff', 's_mov_b32 s86, 64', 's_mov_b32 s87, 0x20000',
                    'v_mov_b32 v2, s96', 'v_mov_b32 v3, s88', 'v_mov_b32 v4, s90', f'v_mov_b32 v5, {picks["start"]*4}', 'v_mov_b32 v6, 0x1000',
                    'v_cmp_eq_u32 vcc, 0, v0', 's_and_saveexec_b64 s[98:99], vcc',
                    'buffer_store_dword v2, v3, s[84:87], 0 offen',
                    's_cmp_eq_u32 s2, 0', 's_cselect_b32 s88, 0, 1', 'v_mov_b32 v7, s88', 'v_lshlrev_b32 v7, 12, v7', 'v_add_u32 v5, v5, v7',
                    'buffer_store_dword v4, v5, s[84:87], 0 offen',
                    ] + (['s_cmp_lg_u32 s2, 0', f's_cbranch_scc1 {lab}', 's_waitcnt vmcnt(0)', 's_mov_b64 exec, s[98:99]', 'v_lshlrev_b32 v2, 2, v0',
                          'buffer_load_dword v3, v2, s[84:87], 0 offen sc1', 's_mov_b32 s80, s38', 's_and_b32 s81, s39, 0xffff', 's_mov_b32 s82, 64', 's_mov_b32 s83, 0x20000',
                          's_waitcnt vmcnt(0)', 'buffer_store_dword v3, v2, s[80:83], 0 offen'] if kidx == 2 else []) + [f'{lab}:', 's_endpgm']
            continue
        out.append(l)
    return [l for l in out if l.strip() != 'EXITPATH']
PICKS = [{'start': 0, 319: 1, 575: 2, 735: 3, 992: 4, 160: 12}, {'start': 5, 255: 6, 327: 7, 95: 8, 100: 13}, {'start': 9, 255: 10, 415: 11, 128: 14}]
def make(kname, jobs, lds, vg):
    b = Builder()
    n = dispatch(b, kname, jobs)
    lines = b.lines
    if DBG: lines = dbgstamp(lines, len(kernels), PICKS[len(kernels)])
    elif INSTR: lines = instrument(lines, len(kernels))
    else: lines = [l for l in lines if not l.strip().startswith('STAMP') and l.strip() != 'EXITPATH']
    body = process(lines)
    kernels.append((kname, n, lds, vg, body)); JOBMAP[kname] = [[j[0], j[1]] for j in jobs]
import os
VAR = os.environ.get('VAR', 'pf')
def build(cfg=None):
    wm = 'wp' if VAR == 'wp' else 'gather'
    def ut(b):
        if VAR == 'pftail':
            bb = Builder(); job_transpose(bb, 'UT', 3, 'UT', 'sc1')
            assert bb.lines[-1] == 's_endpgm'
            for l in bb.lines[:-1]: b(l)
            from jobs_pf import pf_tail
            pf_tail(b, 3, 160); b('s_endpgm')
        else: job_transpose(b, 'UT', 3, 'UT', 'sc1')
    jobs1 = [('KG', 320, lambda b: job_kgen(b, 3, 'sc1')), ('P1', 256, lambda b: job_p1(b, 3)), ('UT', 160, ut), ('TB', NTAB, lambda b: job_tab(b, 3))]
    if os.environ.get('P2T', '1') == '2' and os.environ.get('P2TAB', 'trig') != 'trig': jobs1.append(('T2', NTAB2, lambda b: job_tab2(b, 3)))
    if VAR == 'wp': jobs1.append(('WP', NWP, lambda b: job_wp(b, 3)))
    if VAR == 'pf': jobs1.append(('PF', NPF, lambda b: job_pf(b, 3)))
    make('k1_kernel', jobs1, 34816, 128)
    def p2a(b):
        b('s_and_b32 s4, s3, 7'); b('s_lshr_b32 s5, s3, 3'); b('s_branch P2_BODY')
    def p2b(b):
        b('s_and_b32 s4, s3, 7'); b('s_lshr_b32 s5, s3, 3'); b('s_add_u32 s5, s5, 12'); b.label('P2_BODY'); job_p2(b, 4, 5, wmode=wm)
    if os.environ.get('P2T', '1') != '2' and (wm == 'wp' or os.environ.get('K2ORD') == 'pair'): make('k2_kernel', [('P2a', 96, p2a), ('CV', 160, lambda b: job_conv(b, 3, 'sc1')), ('P2b', 72, p2b)], 4*CH_SZ, 256)
    else:
        def p2all(b):
            b('s_and_b32 s4, s3, 7'); b('s_lshr_b32 s5, s3, 3'); job_p2(b, 4, 5, wmode=wm)
        if os.environ.get('CVV', '4') == '4':
            def cva(b): b('s_branch CV_BODY')
            def cvb(b):
                b('s_add_u32 s3, s3, 256'); b.label('CV_BODY'); jobs_conv4.job_conv(b, 3)
            make('k2_kernel', [('CVa', 256, cva), ('P2', 168, p2all), ('CVb', 64, cvb)], max(2*jobs_conv4.CH_SZ, 40960), 232)
        elif os.environ.get('P2T', '1') == '2':
            def p2two(b):
                b('s_and_b32 s4, s3, 7'); b('s_lshr_b32 s5, s3, 3'); b('s_lshl_b32 s5, s5, 1'); job_p2b(b, 4, 5, wmode=wm)
            make('k2_kernel', [('CV', 160, lambda b: job_conv(b, 3, 'sc1')), ('P2', 88, p2two)], 4*CH_SZ, 256)
        else: make('k2_kernel', [('CV', 160, lambda b: job_conv(b, 3, 'sc1')), ('P2', 168, p2all)], 4*CH_SZ, 256)
    make('k3_kernel', [('P3', 256, lambda b: job_p3(b, 3, 'sc1')), ('YT', 160, lambda b: job_transpose(b, 'YT', 3, 'YT', 'sc1'))], 32768 + 16384, 128)
    out = list(hdr)
    for (k, n, lds, vg, body) in kernels:
        out.append(f'; @launch kernel={k} grid=({n},1,1) block=(256,1,1) lds={lds}')
    import json
    if INSTR: out.append('; JOBS=' + json.dumps(JOBMAP))
    out.append('.amdgcn_target "amdgcn-amd-amdhsa--gfx950"'); out.append('.text')
    for (k, n, lds, vg, body) in kernels:
        out += [f'.globl {k}', '.p2align 8', f'.type {k},@function', f'{k}:'] + body
    out.append('.section .rodata,"a"')
    for (k, n, lds, vg, body) in kernels:
        acc = (vg + 3)//4*4
        out += ['.p2align 6', f'.amdhsa_kernel {k}', f'  .amdhsa_next_free_vgpr {vg}', '  .amdhsa_next_free_sgpr 102', f'  .amdhsa_accum_offset {acc}',
                '  .amdhsa_group_segment_fixed_size 0', '  .amdhsa_kernarg_size 104', '  .amdhsa_user_sgpr_count 2',
                '  .amdhsa_user_sgpr_kernarg_segment_ptr 1', '  .amdhsa_system_sgpr_workgroup_id_x 1', '.end_amdhsa_kernel']
    return '\n'.join(out) + '\n'
if __name__ == '__main__':
    if len(sys.argv) > 2 and sys.argv[2] == 'instr': INSTR = True
    if len(sys.argv) > 2 and sys.argv[2] == 'dbg': DBG = True
    s = build()
    dst = sys.argv[1] if len(sys.argv) > 1 else 'concat_heads__ssm_conv_s4d__spectral_gfnet__prompt.s'
    open(dst, 'w').write(s)
    print(len(s), 'bytes', s.count('\n'), 'lines')
```

```python
import sys
from common import *
from jobs_tr import job_transpose
from jobs_p1 import job_p1
from jobs_tab import job_tab, NTAB, job_tab2, NTAB2
from jobs_kgen import job_kgen
from jobs_p2 import job_p2
from jobs_p2b import job_p2 as job_p2b
from jobs_p3 import job_p3
from jobs_wp import job_wp, NWP
from jobs_pf import job_pf, NPF
from jobs_conv3 import job_conv, CH_SZ
import jobs_conv4
HEADER = open('concat_heads__ssm_conv_s4d__spectral_gfnet__prompt.s.ref').read().split('\n')
hdr = [l for l in HEADER if l.startswith(';') and '@launch' not in l and 'Override launch' not in l and 'grid=ceil' not in l]
hdr = hdr[:14]
def dispatch(b, kname, jobs):
    prologue(b)
    start = 0
    for (name, cnt, fn) in jobs:
        b(f's_cmp_lt_u32 s2, {start+cnt}'); b(f's_cbranch_scc1 {kname}_{name}')
        start += cnt
    b('EXITPATH'); b('s_endpgm')
    start = 0
    for (name, cnt, fn) in jobs:
        b.label(f'{kname}_{name}')
        b(f's_sub_u32 s3, s2, {start}')
        fn(b)
        start += cnt
    return start
def uniq(lines, pre):
    return lines
kernels = []
JOBMAP = {}
INSTR = False
WS_PROF = 0x2000000
def instrument(lines, kidx):
    out = []
    first = True
    for l in lines:
        if l.strip() == 's_waitcnt lgkmcnt(0)' and first:
            out.append(l); first = False
            out += ['s_memrealtime s[90:91]', 's_mov_b32 s92, 0', 's_mov_b32 s93, 0', 's_mov_b32 s94, 0', 's_mov_b32 s95, 0', 's_waitcnt lgkmcnt(0)']
            continue
        if l.strip().startswith('STAMP'):
            k = int(l.split()[1])
            if len(l.split()) > 2: out.append('s_waitcnt ' + l.split()[2])
            out += ['s_memrealtime s[96:97]', 's_waitcnt lgkmcnt(0)', f's_mov_b32 s{92+k}, s96']
            continue
        if l.strip() == 's_endpgm' and not first and out[-1].strip() != 'EXITPATH':
            out += ['s_waitcnt vmcnt(0) lgkmcnt(0)', 's_memrealtime s[96:97]', 's_waitcnt lgkmcnt(0)',
                    f's_add_u32 s84, s40, {hex(WS_PROF + kidx*0x40000)}', 's_addc_u32 s85, s41, 0', 's_and_b32 s85, s85, 0xffff', 's_mov_b32 s86, 0x40000', 's_mov_b32 s87, 0x20000',
                    'v_lshrrev_b32 v1, 6, v0', 'v_lshlrev_b32 v1, 5, v1', 's_lshl_b32 s88, s2, 7', 'v_add_u32 v1, s88, v1',
                    's_getreg_b32 s89, hwreg(HW_REG_XCC_ID)', 's_getreg_b32 s88, hwreg(HW_REG_HW_ID)',
                    'v_mov_b32 v2, s90', 'v_mov_b32 v3, s96', 'v_mov_b32 v4, s89', 'v_mov_b32 v5, s88', 'v_mov_b32 v6, s92', 'v_mov_b32 v7, s93', 'v_mov_b32 v8, s94', 'v_mov_b32 v9, s95',
                    'v_and_b32 v10, 63, v0', 'v_cmp_eq_u32 vcc, 0, v10', 's_and_saveexec_b64 s[98:99], vcc',
                    'buffer_store_dwordx4 v[2:5], v1, s[84:87], 0 offen', 'buffer_store_dwordx4 v[6:9], v1, s[84:87], 0 offen offset:16', 's_endpgm']
            continue
        if l.strip() == 'EXITPATH': out.append(l); continue
        out.append(l)
    return [l for l in out if l.strip() != 'EXITPATH']
DBG = False
def dbgstamp(lines, kidx, picks):
    out = []; first = True
    for l in lines:
        t = l.strip()
        if t == 's_waitcnt lgkmcnt(0)' and first:
            out.append(l); first = False
            out += ['s_memrealtime s[90:91]', 's_waitcnt lgkmcnt(0)']
            continue
        if t.startswith('STAMP'): continue
        if t == 'EXITPATH': out.append(l); continue
        if t == 's_endpgm' and not first and out[-1].strip() != 'EXITPATH':
            lab = 'DBGE_%d_%d' % (kidx, len(out))
            out += ['s_mov_b32 s88, -1']
            for wg, word in picks.items():
                if wg == 'start': continue
                out += [f's_cmp_eq_u32 s2, {wg}', f's_cselect_b32 s88, {word*4}, s88']
            out += ['s_cmp_eq_u32 s2, 0', f's_cselect_b32 s89, 1, 0', 's_or_b32 s87, s89, 0',
                    's_cmp_eq_u32 s88, -1', 's_cselect_b32 s86, 0, 1', 's_or_b32 s86, s86, s89', 's_cmp_eq_u32 s86, 0', f's_cbranch_scc1 {lab}',
                    's_waitcnt vmcnt(0) lgkmcnt(0)', 's_memrealtime s[96:97]', 's_waitcnt lgkmcnt(0)',
                    f's_add_u32 s84, s40, {hex(WS_PROF)}', 's_addc_u32 s85, s41, 0', 's_and_b32 s85, s85, 0xffff', 's_mov_b32 s86, 64', 's_mov_b32 s87, 0x20000',
                    'v_mov_b32 v2, s96', 'v_mov_b32 v3, s88', 'v_mov_b32 v4, s90', f'v_mov_b32 v5, {picks["start"]*4}', 'v_mov_b32 v6, 0x1000',
                    'v_cmp_eq_u32 vcc, 0, v0', 's_and_saveexec_b64 s[98:99], vcc',
                    'buffer_store_dword v2, v3, s[84:87], 0 offen',
                    's_cmp_eq_u32 s2, 0', 's_cselect_b32 s88, 0, 1', 'v_mov_b32 v7, s88', 'v_lshlrev_b32 v7, 12, v7', 'v_add_u32 v5, v5, v7',
                    'buffer_store_dword v4, v5, s[84:87], 0 offen',
                    ] + (['s_cmp_lg_u32 s2, 0', f's_cbranch_scc1 {lab}', 's_waitcnt vmcnt(0)', 's_mov_b64 exec, s[98:99]', 'v_lshlrev_b32 v2, 2, v0',
                          'buffer_load_dword v3, v2, s[84:87], 0 offen sc1', 's_mov_b32 s80, s38', 's_and_b32 s81, s39, 0xffff', 's_mov_b32 s82, 64', 's_mov_b32 s83, 0x20000',
                          's_waitcnt vmcnt(0)', 'buffer_store_dword v3, v2, s[80:83], 0 offen'] if kidx == 2 else []) + [f'{lab}:', 's_endpgm']
            continue
        out.append(l)
    return [l for l in out if l.strip() != 'EXITPATH']
PICKS = [{'start': 0, 319: 1, 575: 2, 735: 3, 992: 4, 160: 12}, {'start': 5, 255: 6, 327: 7, 95: 8, 100: 13}, {'start': 9, 255: 10, 415: 11, 128: 14}]
def hwstamp(lines, kidx):
    picks = [0, 8, 16, 248, 256, 264, 272, 416, 424, 432, 480, 1, 257, 425, 128, 384]
    out = []; first = True
    for l in lines:
        t = l.strip()
        if t == 's_waitcnt lgkmcnt(0)' and first:
            out.append(l); first = False
            if kidx == 1:
                out += ['s_mov_b32 s88, -1']
                for wd, wg in enumerate(picks): out += [f's_cmp_eq_u32 s2, {wg}', f's_cselect_b32 s88, {wd*4}, s88']
                out += ['s_getreg_b32 s89, hwreg(HW_REG_XCC_ID)', 's_getreg_b32 s87, hwreg(HW_REG_HW_ID)', 's_and_b32 s89, s89, 15', 's_lshl_b32 s89, s89, 16', 's_lshr_b32 s87, s87, 8', 's_and_b32 s87, s87, 0xff', 's_or_b32 s89, s89, s87', 's_or_b32 s89, s89, 0x1000000',
                        f's_add_u32 s84, s40, {hex(WS_PROF)}', 's_addc_u32 s85, s41, 0', 's_and_b32 s85, s85, 0xffff', 's_mov_b32 s86, 64', 's_mov_b32 s87, 0x20000',
                        'v_mov_b32 v2, s89', 'v_mov_b32 v3, s88', 'buffer_store_dword v2, v3, s[84:87], 0 offen']
            if kidx == 2:
                out += ['s_cmp_lg_u32 s2, 0', 's_cbranch_scc1 HWSKIP', f's_add_u32 s84, s40, {hex(WS_PROF)}', 's_addc_u32 s85, s41, 0', 's_and_b32 s85, s85, 0xffff', 's_mov_b32 s86, 64', 's_mov_b32 s87, 0x20000',
                        'v_lshlrev_b32 v2, 2, v0', 'buffer_load_dword v3, v2, s[84:87], 0 offen sc1', 's_mov_b32 s80, s38', 's_and_b32 s81, s39, 0xffff', 's_mov_b32 s82, 64', 's_mov_b32 s83, 0x20000',
                        's_waitcnt vmcnt(0)', 'buffer_store_dword v3, v2, s[80:83], 0 offen', 'HWSKIP:']
            continue
        if t.startswith('STAMP') or t == 'EXITPATH': continue
        out.append(l)
    return out
HWID = False
def make(kname, jobs, lds, vg):
    b = Builder()
    n = dispatch(b, kname, jobs)
    lines = b.lines
    if HWID: lines = hwstamp(lines, len(kernels))
    elif DBG: lines = dbgstamp(lines, len(kernels), PICKS[len(kernels)])
    elif INSTR: lines = instrument(lines, len(kernels))
    else: lines = [l for l in lines if not l.strip().startswith('STAMP') and l.strip() != 'EXITPATH']
    body = process(lines)
    kernels.append((kname, n, lds, vg, body)); JOBMAP[kname] = [[j[0], j[1]] for j in jobs]
import os
VAR = os.environ.get('VAR', 'pf')
def build(cfg=None):
    wm = 'wp' if VAR == 'wp' else 'gather'
    def ut(b):
        if VAR == 'pftail':
            bb = Builder(); job_transpose(bb, 'UT', 3, 'UT', 'sc1')
            assert bb.lines[-1] == 's_endpgm'
            for l in bb.lines[:-1]: b(l)
            from jobs_pf import pf_tail
            pf_tail(b, 3, 160); b('s_endpgm')
        else: job_transpose(b, 'UT', 3, 'UT', 'sc1')
    jobs1 = [('KG', 320, lambda b: job_kgen(b, 3, 'sc1')), ('P1', 256, lambda b: job_p1(b, 3)), ('UT', 160, ut), ('TB', NTAB, lambda b: job_tab(b, 3))]
    if os.environ.get('P2T', '1') == '2' and os.environ.get('P2TAB', 'trig') != 'trig': jobs1.append(('T2', NTAB2, lambda b: job_tab2(b, 3)))
    if VAR == 'wp': jobs1.append(('WP', NWP, lambda b: job_wp(b, 3)))
    if VAR == 'pf': jobs1.append(('PF', NPF, lambda b: job_pf(b, 3)))
    make('k1_kernel', jobs1, 34816, 128)
    def p2a(b):
        b('s_and_b32 s4, s3, 7'); b('s_lshr_b32 s5, s3, 3'); b('s_branch P2_BODY')
    def p2b(b):
        b('s_and_b32 s4, s3, 7'); b('s_lshr_b32 s5, s3, 3'); b('s_add_u32 s5, s5, 12'); b.label('P2_BODY'); job_p2(b, 4, 5, wmode=wm)
    if os.environ.get('P2T', '1') != '2' and (wm == 'wp' or os.environ.get('K2ORD') == 'pair'): make('k2_kernel', [('P2a', 96, p2a), ('CV', 160, lambda b: job_conv(b, 3, 'sc1')), ('P2b', 72, p2b)], 4*CH_SZ, 256)
    else:
        def p2all(b):
            b('s_and_b32 s4, s3, 7'); b('s_lshr_b32 s5, s3, 3'); job_p2(b, 4, 5, wmode=wm)
        if os.environ.get('CVV', '4') == '4':
            def cva(b): b('s_branch CV_BODY')
            def cvb(b):
                b('s_add_u32 s3, s3, 256'); b.label('CV_BODY'); jobs_conv4.job_conv(b, 3)
            make('k2_kernel', [('CVa', 256, cva), ('P2', 168, p2all), ('CVb', 64, cvb)], max(2*jobs_conv4.CH_SZ, 40960), 232)
        elif os.environ.get('P2T', '1') == '2':
            def p2two(b):
                b('s_and_b32 s4, s3, 7'); b('s_lshr_b32 s5, s3, 3'); b('s_lshl_b32 s5, s5, 1'); job_p2b(b, 4, 5, wmode=wm)
            make('k2_kernel', [('CV', 160, lambda b: job_conv(b, 3, 'sc1')), ('P2', 88, p2two)], 4*CH_SZ, 256)
        else: make('k2_kernel', [('CV', 160, lambda b: job_conv(b, 3, 'sc1')), ('P2', 168, p2all)], 4*CH_SZ, 256)
    make('k3_kernel', [('P3', 256, lambda b: job_p3(b, 3, 'sc1')), ('YT', 160, lambda b: job_transpose(b, 'YT', 3, 'YT', 'sc1'))], 32768 + 16384, 128)
    out = list(hdr)
    for (k, n, lds, vg, body) in kernels:
        out.append(f'; @launch kernel={k} grid=({n},1,1) block=(256,1,1) lds={lds}')
    import json
    if INSTR: out.append('; JOBS=' + json.dumps(JOBMAP))
    out.append('.amdgcn_target "amdgcn-amd-amdhsa--gfx950"'); out.append('.text')
    for (k, n, lds, vg, body) in kernels:
        out += [f'.globl {k}', '.p2align 8', f'.type {k},@function', f'{k}:'] + body
    out.append('.section .rodata,"a"')
    for (k, n, lds, vg, body) in kernels:
        acc = (vg + 3)//4*4
        out += ['.p2align 6', f'.amdhsa_kernel {k}', f'  .amdhsa_next_free_vgpr {vg}', '  .amdhsa_next_free_sgpr 102', f'  .amdhsa_accum_offset {acc}',
                '  .amdhsa_group_segment_fixed_size 0', '  .amdhsa_kernarg_size 104', '  .amdhsa_user_sgpr_count 2',
                '  .amdhsa_user_sgpr_kernarg_segment_ptr 1', '  .amdhsa_system_sgpr_workgroup_id_x 1', '.end_amdhsa_kernel']
    return '\n'.join(out) + '\n'
if __name__ == '__main__':
    if len(sys.argv) > 2 and sys.argv[2] == 'instr': INSTR = True
    if len(sys.argv) > 2 and sys.argv[2] == 'dbg': DBG = True
    if len(sys.argv) > 2 and sys.argv[2] == 'hwid': HWID = True
    s = build()
    dst = sys.argv[1] if len(sys.argv) > 1 else 'concat_heads__ssm_conv_s4d__spectral_gfnet__prompt.s'
    open(dst, 'w').write(s)
    print(len(s), 'bytes', s.count('\n'), 'lines')
```

```python
import re
TRANS = ('v_exp_f32','v_log_f32','v_rcp_f32','v_rsq_f32','v_sqrt_f32','v_sin_f32','v_cos_f32','v_rcp_iflag_f32')
def regs_of(tok):
    tok = tok.strip()
    neg = tok.lstrip('-')
    m = re.fullmatch(r'abs\((.*)\)', neg)
    if m: neg = m.group(1)
    if neg.startswith('|') and neg.endswith('|'): neg = neg[1:-1]
    m = re.fullmatch(r'([vsa])(\d+)', neg)
    if m: return [(m.group(1), int(m.group(2)))]
    m = re.fullmatch(r'([vsa])\[(\d+):(\d+)\]', neg)
    if m: return [(m.group(1), i) for i in range(int(m.group(2)), int(m.group(3))+1)]
    if neg == 'vcc': return [('s', 106), ('s', 107)]
    if neg == 'vcc_lo': return [('s', 106)]
    if neg == 'vcc_hi': return [('s', 107)]
    if neg == 'exec': return [('s', 126), ('s', 127)]
    if neg == 'm0': return [('s', 124)]
    return []
def split_ops(s):
    out = []; depth = 0; cur = ''
    for ch in s:
        if ch in '[(': depth += 1
        if ch in '])': depth -= 1
        if ch == ',' and depth == 0: out.append(cur.strip()); cur = ''
        else: cur += ch
    if cur.strip(): out.append(cur.strip())
    return out
class I:
    __slots__ = ('text','mn','ops','cls','dst','src','srcC','passes','label','raw')
def parse(line):
    t = line.split(';')[0].strip()
    ins = I(); ins.text = line; ins.raw = t; ins.dst = []; ins.src = []; ins.srcC = []; ins.passes = 0; ins.label = None
    if not t: ins.cls = 'none'; ins.mn = ''; ins.ops = []; return ins
    if t.endswith(':'): ins.cls = 'label'; ins.mn = ''; ins.ops = []; ins.label = t[:-1]; return ins
    if t.startswith('.'): ins.cls = 'dir'; ins.mn = t; ins.ops = []; return ins
    p = t.split(None, 1); mn = p[0]; rest = p[1] if len(p) > 1 else ''
    ins.mn = mn
    ops = split_ops(rest)
    mods = ''
    if ops:
        q = ops[-1].split(None, 1)
        ops[-1] = q[0]; mods = q[1] if len(q) > 1 else ''
    ins.ops = ops
    R = lambda k: regs_of(ops[k]) if k < len(ops) else []
    allr = lambda a: [r for k in range(a, len(ops)) for r in regs_of(ops[k])]
    base = re.sub(r'_(e32|e64|dpp|sdwa)$', '', mn)
    if mn.startswith('v_mfma') or mn.startswith('v_smfmac'):
        ins.cls = 'mfma'; ins.dst = R(0); ins.src = R(1) + R(2); ins.srcC = R(3)
        ins.passes = 8 if '32x32' in mn else 4
    elif mn.startswith('buffer_load') or mn.startswith('global_load'):
        ins.cls = 'vload'; ins.dst = R(0); ins.src = allr(1)
        if ' lds' in (' ' + mods): ins.cls = 'vloadlds'; ins.dst = []; ins.src = allr(0)
    elif mn.startswith('buffer_store') or mn.startswith('global_store'):
        ins.cls = 'vstore'; ins.src = allr(0)
    elif mn.startswith('buffer_atomic') or mn.startswith('global_atomic'):
        ins.cls = 'vatomic'; ins.src = allr(0)
        if 'sc0' in mods: ins.dst = R(0) if mn.startswith('buffer') else R(0)
    elif mn.startswith('buffer_wbl2') or mn.startswith('buffer_inv'):
        ins.cls = 'vstore'
    elif mn.startswith('ds_read') or mn.startswith('ds_bpermute') or mn.startswith('ds_permute') or mn.startswith('ds_swizzle'):
        ins.cls = 'dsread'; ins.dst = R(0); ins.src = allr(1)
    elif mn.startswith('ds_write') or mn.startswith('ds_add'):
        ins.cls = 'dswrite'; ins.src = allr(0)
    elif mn.startswith('s_load') or mn.startswith('s_buffer_load') or mn in ('s_memtime', 's_memrealtime'):
        ins.cls = 'smem'; ins.dst = R(0); ins.src = allr(1)
    elif mn == 's_waitcnt': ins.cls = 'wait'
    elif mn == 's_barrier': ins.cls = 'barrier'
    elif mn == 's_nop': ins.cls = 'nop'
    elif mn == 's_endpgm': ins.cls = 'end'
    elif mn.startswith('s_cbranch') or mn == 's_branch': ins.cls = 'branch'
    elif mn.startswith('s_'):
        ins.cls = 'salu'
        if mn.startswith('s_cmp') or mn in ('s_setprio', 's_sleep', 's_bitcmp0_b32', 's_bitcmp1_b32'): ins.src = allr(0)
        else: ins.dst = R(0); ins.src = allr(1)
        if 'saveexec' in mn: ins.dst += [('s', 126), ('s', 127)]
    elif mn.startswith('v_'):
        ins.cls = 'valu'
        if base.startswith('v_cmp'):
            ins.dst = R(0); ins.src = allr(1)
        elif base in ('v_add_co_u32', 'v_sub_co_u32', 'v_addc_co_u32', 'v_subb_co_u32', 'v_subrev_co_u32', 'v_mad_u64_u32'):
            ins.dst = R(0) + R(1); ins.src = allr(2)
        elif base.startswith('v_permlane') and 'swap' in base:
            ins.dst = R(0) + R(1); ins.src = R(0) + R(1)
        elif base in ('v_fmac_f32', 'v_mac_f32', 'v_pk_fmac_f16', 'v_fmac_f16', 'v_writelane_b32', 'v_dot2c_f32_bf16'):
            ins.dst = R(0); ins.src = allr(0)
        else:
            ins.dst = R(0); ins.src = allr(1)
        if 'dpp' in mn or 'row_' in mods or 'quad_perm' in mods or 'wave_' in mods: ins.cls = 'valu'; ins.mn = mn + '#dpp'
    else:
        raise ValueError("unknown instr: " + line)
    return ins

class Builder:
    def __init__(self): self.lines = []
    def __call__(self, s, *a):
        for l in s.split('\n'):
            if l.strip(): self.lines.append(l.strip())
    def label(self, n): self.lines.append(n + ':')
    def c(self, s): self.lines.append('; ' + s)

TIMEBASED = True
LGMERGE = 0
HOIST = 90
def process(lines, verbose=False):
    out = []
    vm = []
    lg = []
    lgt = []
    sm = set()
    hist = []
    clk = [0, 0]
    info = []
    def emit(t, kind=''): out.append(t); info.append((kind, clk[0]))
    def tick(n=1):
        clk[0] += 4*n
        for h in hist: h[1] += n
        while hist and hist[0][1] > 20: hist.pop(0)
    def need_nops(ins):
        need = 0
        D = set(ins.dst); Sr = set(ins.src); C = set(ins.srcC)
        isvalu = ins.cls == 'valu'
        tnow = max(clk[0], clk[1]) if ins.cls == 'mfma' else clk[0]
        for (p, age, tp) in hist:
            pd = set(p.dst); req = 0
            if p.cls == 'mfma' and TIMEBASED: age = max(age, (tnow - tp)//4 - 1)
            if p.cls == 'valu':
                trans = re.sub(r'_(e32|e64)$', '', p.mn) in TRANS
                vd = {r for r in pd if r[0] in 'va'}; sd = {r for r in pd if r[0] == 's'}
                if ins.cls == 'mfma' and vd & (Sr | C): req = max(req, 2)
                if trans and ins.cls in ('valu', 'mfma') and vd & Sr: req = max(req, 1)
                if trans and ins.cls in ('vstore','dswrite','vload','dsread','vatomic') and vd & Sr: req = max(req, 1)
                if isvalu and ins.mn.startswith(('v_readfirstlane', 'v_readlane')) and vd & Sr: req = max(req, 1)
                if isvalu and ins.mn.startswith('v_permlane') and vd & Sr: req = max(req, 2)
                if isvalu and '#dpp' in ins.mn and vd & Sr: req = max(req, 2)
                if sd:
                    if isvalu and sd & Sr: req = max(req, 2)
                    if isvalu and ins.mn.startswith(('v_readlane', 'v_writelane')) and sd & Sr: req = max(req, 4)
                    if ins.cls in ('vload', 'vstore', 'vatomic', 'vloadlds') and sd & Sr: req = max(req, 5)
                    if ins.cls in ('salu','branch','smem') and (sd & Sr): req = max(req, 4)
                    if ins.cls == 'branch' and ('vcc' in ins.mn) and (('s',106) in sd or ('s',107) in sd): req = max(req, 4)
            if p.cls == 'mfma':
                w_use = 8 if p.passes == 4 else 12
                w_ovl = 6 if p.passes == 4 else 10
                w_war = 3 if p.passes == 4 else 7
                if ins.cls == 'mfma':
                    if pd & Sr: req = max(req, w_use)
                    if pd & C:
                        if not (p.dst == ins.srcC and p.passes == ins.passes): req = max(req, w_ovl)
                    if pd & D and not (p.dst == ins.dst and p.dst == ins.srcC):
                        if not (pd & C): req = max(req, w_use)
                else:
                    if pd & (Sr | D): req = max(req, w_use)
                    if isvalu and set(p.srcC) & D: req = max(req, w_war)
                    if ins.cls in ('vload','dsread') and set(p.srcC) & D: req = max(req, w_war)
            if p.cls == 'vstore' and ('x4' in p.mn or 'x3' in p.mn):
                data = set(regs_of(p.ops[0])) if p.mn.startswith('buffer') else set(regs_of(p.ops[1]))
                if data & D and ins.cls in ('valu','mfma','vload','dsread'): req = max(req, 2)
            if p.cls == 'dswrite' and ('b128' in p.mn or 'b96' in p.mn):
                if set(p.src) & D and isvalu: req = max(req, 1)
            if p.cls == 'salu' and ('s', 124) in pd and ins.cls == 'vloadlds': req = max(req, 1)
            if p.cls == 'salu' and (('s',126) in pd or ('s',127) in pd) and isvalu and '#dpp' in ins.mn: req = max(req, 1)
            need = max(need, req - age)
        return need
    def do_wait(vmn=None, lgn=None):
        parts = []
        if vmn is not None:
            vmn = min(vmn, 63); parts.append('vmcnt(%d)' % vmn)
            while len(vm) > vmn: vm.pop(0)
        if lgn is not None:
            lgn = min(lgn, 15); parts.append('lgkmcnt(%d)' % lgn)
            while len(lg) > lgn: lg.pop(0)
            if lgn == 0: sm.clear()
        emit('s_waitcnt ' + ' '.join(parts)); tick()
    def flush_all(haz=True, waits=True):
        if waits and (vm_loads_pending() or lg or sm):
            do_wait(0 if vm_loads_pending() else None, 0 if (lg or sm) else None)
        if haz:
            worst = 0
            for (p, age, tp) in hist:
                r = 0
                if p.cls == 'mfma': r = 8 if p.passes == 4 else 12
                elif p.cls == 'valu': r = 5 if any(x[0] == 's' for x in p.dst) else 2
                elif p.cls == 'vstore': r = 2
                worst = max(worst, r - age)
            nop(worst)
    def vm_loads_pending(): return any(x for x in vm)
    def nop(n):
        while n > 0:
            k = min(n, 16); emit('s_nop %d' % (k-1)); tick(k); n -= k
    for line in lines:
        ins = parse(line)
        if ins.cls in ('none', 'dir'): emit(line); continue
        if ins.cls == 'label':
            if 'NOFLUSH' not in line: flush_all()
            emit(line); continue
        if ins.cls == 'wait':
            m = re.search(r'vmcnt\((\d+)\)', ins.raw); n = re.search(r'lgkmcnt\((\d+)\)', ins.raw)
            if m:
                while len(vm) > int(m.group(1)): vm.pop(0)
            if n:
                while len(lg) > int(n.group(1)): lg.pop(0)
                if int(n.group(1)) == 0: sm.clear()
            emit(line); tick(); continue
        if ins.cls == 'nop':
            emit(line); tick(int(ins.ops[0]) + 1); continue
        if ins.mn.startswith('buffer_'):
            mo = re.search(r'offset:(\d+)', ins.raw)
            if mo and int(mo.group(1)) > 4095: raise ValueError('MUBUF offset too large: ' + line)
        if ins.mn.startswith('ds_'):
            mo = re.search(r'offset:(\d+)', ins.raw)
            if mo and int(mo.group(1)) > 65535: raise ValueError('DS offset too large: ' + line)
        touched = set(ins.src) | set(ins.srcC) | set(ins.dst)
        if ins.cls == 'vload' and 'd16' in ins.mn: touched = set(ins.src)
        vmn = None
        for idx, d in enumerate(vm):
            if d & touched: vmn = len(vm) - 1 - idx
        lgn = None
        for idx, d in enumerate(lg):
            if d & touched: lgn = len(lg) - 1 - idx
        if lgn is not None and lgn > 0 and LGMERGE:
            tt = lgt[-len(lg):]
            while lgn > 0 and clk[0] - tt[len(lg) - lgn] >= LGMERGE: lgn -= 1
        if sm & touched: lgn = 0
        if sm and lgn is not None: lgn = 0
        if ins.cls == 'barrier':
            if lg or sm: lgn = 0
        if ins.cls == 'branch':
            if 'NOFLUSH' not in line:
                if vm_loads_pending(): vmn = 0
                if lg or sm: lgn = 0
        hoisted = False
        if HOIST and vmn is None and lgn is not None and lgn > 0 and not sm and ins.cls != 'barrier':
            tt = lgt[-len(lg):]; tneed = tt[len(lg) - 1 - lgn]
            k = 0; pos = len(out)
            cand = None
            for back in range(1, 12):
                j = len(out) - back
                if j < 0: break
                kind, tj = info[j]
                if kind == 'stop' or out[j].startswith('s_waitcnt') or out[j].endswith(':'): break
                if kind == 'big':
                    if back > 1 and lgn - k >= 0 and tj - tneed >= HOIST: cand = (j + 1, lgn - k)
                    break
                if kind == 'ds': k += 1
            if cand:
                out.insert(cand[0], 's_waitcnt lgkmcnt(%d)' % min(cand[1], 15)); info.insert(cand[0], ('', 0))
                ln = min(lgn, 15)
                while len(lg) > ln: lg.pop(0)
                tick(0); hoisted = True
        if not hoisted and (vmn is not None or lgn is not None): do_wait(vmn, lgn)
        if ins.cls == 'branch' and 'NOFLUSH' not in line:
            n0 = need_nops(ins); nop(n0); flush_all(waits=False)
        else:
            nop(need_nops(ins))
        emit(line, 'big' if (ins.cls == 'mfma' and ins.passes == 8) else ('ds' if ins.cls in ('dsread', 'dswrite') else ('stop' if ins.cls in ('barrier','branch','smem') or 'exec' in line else '')))
        if ins.cls == 'mfma':
            clk[0] = max(clk[0], clk[1]); clk[1] = clk[0] + 4*ins.passes
        tissue = clk[0]
        tick()
        hist.append([ins, 0, tissue])
        if ins.cls in ('vload',): vm.append(set(ins.dst))
        elif ins.cls in ('vstore', 'vloadlds'): vm.append(set())
        elif ins.cls == 'vatomic': vm.append(set(ins.dst))
        elif ins.cls == 'dsread': lg.append(set(ins.dst)); lgt.append(tissue)
        elif ins.cls == 'dswrite': lg.append(set()); lgt.append(tissue)
        elif ins.cls == 'smem': sm |= set(ins.dst) if ins.dst else {('s', 999)}
        if len(lg) > 15: pass
    return out

class VA:
    def __init__(self, start=0, limit=256): self.n = start; self.limit = limit; self.hi = start
    def a(self, cnt=1, align=1):
        if cnt >= 2 and align < 2: align = 2
        self.n = (self.n + align - 1)//align*align
        r = self.n; self.n += cnt; self.hi = max(self.hi, self.n)
        assert self.n <= self.limit, "out of vgprs"
        return r
    def mark(self): return self.n
    def release(self, m): self.n = m
def vr(b, n=1): return 'v%d' % b if n == 1 else 'v[%d:%d]' % (b, b+n-1)
def sr(b, n=1): return 's%d' % b if n == 1 else 's[%d:%d]' % (b, b+n-1)

def list_schedule(items, lds_lat=110, verbose=False, filler=None, memdep=None, salu_chain=False, vm_lat=0):
    n = len(items)
    nodes = []
    for it in items:
        lines = [l for l in it.split('\n') if l.strip()]
        ps = [parse(l) for l in lines]
        dst = set(); src = set(); cls = None; mf = 0
        for p in ps:
            dst |= set(p.dst); src |= set(p.src) | set(p.srcC)
        p0 = ps[0]
        kind = p0.cls if len(ps) == 1 else 'block'
        if kind == 'mfma': mf = p0.passes
        hasdsw = any(p.cls == 'dswrite' for p in ps); hasdsr = any(p.cls == 'dsread' for p in ps)
        if kind == 'block':
            dst = {r for r in dst if r[0] != 's'}; src = {r for r in src if r[0] != 's'}
        acc_chain = (kind == 'mfma' and p0.dst == p0.srcC)
        nodes.append(dict(txt=it, dst=dst, src=src, kind=kind, mf=mf, n=len(ps), dsw=hasdsw, dsr=hasdsr, p=p0, vm=any(p.cls in ('vload','vstore') for p in ps)))
    succ = [[] for _ in range(n)]; npred = [0]*n
    lastw = {}; readers = {}; lastdsw_c = {}; dsr_c = {}; lastvm = None; lastsalu = None
    def edge(a, b_, lat):
        succ[a].append((b_, lat)); npred[b_] += 1
    def lat_raw(a, b_):
        A = nodes[a]; B = nodes[b_]
        if A['kind'] == 'mfma':
            if B['kind'] == 'mfma' and A['p'].dst == B['p'].srcC and not (set(A['p'].dst) & set(B['p'].src)): return 16 if A['mf'] == 4 else 32
            return 40 if A['mf'] == 4 else 56
        if A['dsr']: return lds_lat
        if vm_lat and A['kind'] == 'vload': return vm_lat
        if A['kind'] == 'valu' and any(r[0] == 's' for r in A['dst']): return 24
        if A['kind'] == 'valu' and B['kind'] == 'mfma': return 12
        return 4*A['n'] + 1
    for i, nd in enumerate(nodes):
        for r in nd['src']:
            if r in lastw: edge(lastw[r], i, lat_raw(lastw[r], i))
        for r in nd['dst']:
            if r in lastw:
                a = lastw[r]
                edge(a, i, lat_raw(a, i) if nodes[a]['kind'] == 'mfma' and not (nd['kind'] == 'mfma' and nodes[a]['p'].dst == nd['p'].srcC) else (lds_lat if nodes[a]['dsr'] else 4))
            for a in readers.get(r, []):
                if a != i: edge(a, i, 8 if nodes[a]['kind'] == 'mfma' else 1)
        for r in nd['src']: readers.setdefault(r, []).append(i)
        for r in nd['dst']: lastw[r] = i; readers[r] = [i] if r in nd['src'] else []
        mc = 'all' if memdep is None else memdep(nd['txt'])
        if mc:
            if nd['dsw']:
                if mc in lastdsw_c: edge(lastdsw_c[mc], i, 1)
                for a_ in dsr_c.get(mc, []): edge(a_, i, 1)
                lastdsw_c[mc] = i; dsr_c[mc] = []
            if nd['dsr']:
                if mc in lastdsw_c and lastdsw_c[mc] != i: edge(lastdsw_c[mc], i, 40)
                dsr_c.setdefault(mc, []).append(i)
        if nd['vm']:
            if lastvm is not None: edge(lastvm, i, 1)
            lastvm = i
        if salu_chain and nd['kind'] == 'salu':
            if lastsalu is not None: edge(lastsalu, i, 1)
            lastsalu = i
    prio = [0]*n
    for i in range(n-1, -1, -1):
        own = (nodes[i]['mf']*4 if nodes[i]['mf'] else 4*nodes[i]['n'])
        prio[i] = own + max([lat + prio[j] - own for j, lat in succ[i]] + [0]) if succ[i] else own
    ready_t = [0]*n; left = npred[:]; ready = [i for i in range(n) if left[i] == 0]
    t = 0; pipe = 0; ldsq = 0; out = []; lastmf = 0
    while ready:
        best = None
        for i in ready:
            nd = nodes[i]
            st = max(t, ready_t[i])
            if nd['mf']: st = max(st, pipe)
            if nd['dsr'] or nd['dsw']: st = max(st, ldsq - 24)
            key = (max(st - t, 0) > 0, st, -(1 if nd['mf'] else 0), -prio[i])
            fl = 1 if (filler and filler(nd['txt'])) else 0
            if st <= t:
                if nd['mf']: key = (0, 0, (0 if (nd['mf'] != lastmf) else 1), -prio[i], i)
                else: key = (0, 1, 1 - fl, -prio[i], i)
            else: key = (1, st, 0, -prio[i], i)
            if best is None or key < best[0]: best = (key, i, st)
        _, i, st = best
        nd = nodes[i]; ready.remove(i); out.append(nd['txt'])
        t = st
        if nd['mf']: pipe = t + nd['mf']*4; tn = t + 8; lastmf = nd['mf']
        else: tn = t + 4*nd['n']
        if nd['dsr'] or nd['dsw']: ldsq = max(ldsq, t) + 16
        for j, lat in succ[i]:
            ready_t[j] = max(ready_t[j], t + lat); left[j] -= 1
            if left[j] == 0: ready.append(j)
        t = tn
    if verbose: print('list_schedule: estimated', t, 'cycles for', n, 'items')
    assert len(out) == n
    return out


def autosched(lines, vm_lat=700, minlen=12):
    out = []; seg = []
    def flush():
        nonlocal seg
        hasld = any(x.strip().startswith('buffer_load') for x in seg)
        if len(seg) >= minlen and not hasld: out.extend(list_schedule(seg, salu_chain=True, vm_lat=vm_lat))
        else: out.extend(seg)
        seg = []
    for l in lines:
        t = l.split(';')[0].strip()
        if not t: out.append(l); continue
        if t.startswith('STAMP') or t == 'EXITPATH' or t.startswith('NOSCHED'):
            flush(); out.append(l); continue
        p = parse(l)
        if p.cls == 'nop': continue
        brk = p.cls in ('label', 'branch', 'barrier', 'wait', 'end', 'dir', 'smem') or (('s', 126) in p.dst) or (('s', 127) in p.dst) or 'exec' in t or t.startswith('s_setprio')
        if brk: flush(); out.append(l)
        else: seg.append(l)
    flush()
    return out
```

```python
from common import *
from modelA import CN, O_RN, O_R2E, O_R2O, O_R3E, O_R3O, O_RE, NREC
def pr(x): return f'v[{x}:{x+1}]'
def q4(x): return f'v[{x}:{x+3}]'
KP = 2240
UP = 144; PRE = 9
O_KC = 0
O_UL = 4*KP
O_YF = O_UL + (PRE+32)*UP
CH_SZ = O_YF + 24*272
AN, AB, AD2, AT2, AYW, AYR, AOW, AOR, AT3, AD3A, AD3B, ABE, ABE2, AU, AK, AK2, AK3, AZ = range(208, 226)
TAB_CV = TAB_BC + 4096
def emit_addr(b):
    b('s_lshl_b32 s75, s62, 6'); b('v_add_u32 v7, s75, v1'); b('v_min_u32 v7, 80, v7'); b('v_lshlrev_b32 v7, 4, v7'); b(f'v_add_u32 v{AZ}, s68, v7')
    b('v_and_b32 v2, 15, v1'); b('v_lshrrev_b32 v12, 4, v1'); b('v_and_b32 v4, 31, v1'); b('v_lshrrev_b32 v13, 5, v1')
    T_ = 14
    def blkaddr(dst, qreg, base):
        b(f'v_lshrrev_b32 v{dst}, 3, v{qreg}'); b(f'v_mul_u32_u24 v{dst}, {UP}, v{dst}'); b(f'v_and_b32 v{T_}, 7, v{qreg}'); b(f'v_lshlrev_b32 v{T_}, 4, v{T_}')
        b(f'v_add3_u32 v{dst}, v{dst}, v{T_}, s68')
        if base: b(f'v_add_u32 v{dst}, {base}, v{dst}')
    blkaddr(AOR, 1, O_UL); b(f's_mul_i32 s75, s62, {16*UP}'); b(f'v_add_u32 v{AOR}, s75, v{AOR}')
    b(f'v_add_u32 v{AU}, {PRE*UP}, v{AOR}')
    b('s_lshl_b32 s75, s62, 9'); b(f'v_add3_u32 v{AK}, v3, s75, s68'.replace('s75, s68', 's75, v3') if False else f'v_add_u32 v{AK}, s68, v3'); b(f'v_add_u32 v{AK}, s75, v{AK}')
    b(f'v_add_u32 v{AK2}, {2*KP}, v{AK}'); b(f'v_add_u32 v{AK3}, {3*KP}, v{AK}')
    def copyaddr(dst, x0reg, base):
        b(f'v_and_b32 v{T_}, 3, v{x0reg}'); b(f'v_sub_u32 v{dst}, v{x0reg}, v{T_}'); b(f'v_lshlrev_b32 v{dst}, 1, v{dst}')
        b(f'v_mul_u32_u24 v{T_}, {KP}, v{T_}'); b(f'v_add3_u32 v{dst}, v{dst}, v{T_}, s68')
        if base: b(f'v_add_u32 v{dst}, {2*base}, v{dst}')
    b('v_lshlrev_b32 v15, 2, v12')
    b('v_lshlrev_b32 v7, 1, v2'); b('v_sub_u32 v7, 30, v7'); b('v_add_u32 v7, v7, v15'); copyaddr(AT2, 7, O_R2E)
    b('v_sub_u32 v7, 15, v2'); b('v_add_u32 v7, v7, v15'); copyaddr(AT3, 7, O_R3E)
    b('v_sub_u32 v7, 31, v4'); b('v_lshlrev_b32 v16, 3, v13'); b('v_add_u32 v7, v7, v16'); copyaddr(AN, 7, O_RN)
    q0 = 8*PRE - 3
    b('v_add_u32 v7, v2, v12'); b(f'v_add_u32 v7, {q0}, v7'); blkaddr(AD2, 7, O_UL)
    b('v_lshlrev_b32 v7, 1, v2'); b('v_add_u32 v7, v7, v12'); b(f'v_add_u32 v7, {q0}, v7'); blkaddr(AD3A, 7, O_UL)
    b('v_add_u32 v7, 1, v7'); blkaddr(AD3B, 7, O_UL)
    b('v_lshrrev_b32 v7, 2, v2'); b('v_mul_u32_u24 v7, 272, v7'); b('v_and_b32 v16, 3, v2'); b('v_lshlrev_b32 v16, 6, v16'); b('v_add3_u32 v7, v7, v16, s68')
    b('v_lshlrev_b32 v16, 4, v12'); b('v_add_u32 v7, v7, v16'); b(f'v_add_u32 v{AYW}, {O_YF}, v7')
    b('v_lshlrev_b32 v16, 4, v13')
    b(f'v_mul_u32_u24 v7, {UP}, v4'); b('v_add3_u32 v7, v7, v16, s68'); b(f'v_add_u32 v{AB}, {O_UL}, v7')
    for (dst, dl) in ((ABE, 16), (ABE2, 17)):
        b(f'v_subrev_u32 v7, {dl}, v4'); b('v_max_i32 v7, -1, v7'); b(f'v_add_u32 v7, {PRE}, v7'); b(f'v_mul_u32_u24 v7, {UP}, v7')
        b('v_add3_u32 v7, v7, v16, s68'); b(f'v_add_u32 v{dst}, {O_UL}, v7')
    b('v_mul_u32_u24 v7, 272, v4'); b('v_add3_u32 v7, v7, v16, s68'); b('s_lshl_b32 s75, s62, 7'); b(f's_add_u32 s75, s75, {O_YF - 8*272}'); b(f'v_add_u32 v{AYR}, s75, v7')
    b(f'v_mul_u32_u24 v7, {UP}, v4'); b('v_lshlrev_b32 v16, 3, v13'); b('v_add3_u32 v7, v7, v16, s68'); b('s_lshl_b32 s75, s62, 6'); b(f's_add_u32 s75, s75, {O_UL}'); b(f'v_add_u32 v{AOW}, s75, v7')

def job_cvtab(b):
    srd(b, 52, S_WS, SZ_TAB, WS_TAB)
    b('v_and_b32 v1, 63, v0'); b('v_lshrrev_b32 v4, 6, v0'); b('s_nop 0'); b('v_readfirstlane_b32 s60, v4')
    b('s_lshr_b32 s61, s60, 1'); b('s_and_b32 s62, s60, 1'); b(f's_mul_i32 s68, s61, {CH_SZ}')
    b('v_lshlrev_b32 v3, 3, v1'); b('v_lshlrev_b32 v5, 4, v1')
    import re
    bb = Builder(); emit_addr(bb)
    bb('v_mov_b32 v226, 0'); bb('v_mov_b32 v227, 0')
    for l in bb.lines: b(re.sub(r'\bv(2[0-2]\d)\b', lambda m: 'v%d' % (int(m.group(1)) - 168), l))
    b(f's_mul_i32 s75, s60, {5*1024}'); b(f's_add_u32 s75, s75, {TAB_CV}')
    for i in range(5):
        if i == 4: b('s_add_u32 s75, s75, 4096')
        b(f'buffer_store_dwordx4 {q4(40+4*i)}, v5, s[52:55], s75 offen offset:{1024*(i % 4)} sc1')
    b('s_endpgm')
def job_conv(b, s_idx, stflag='sc1'):
    srd(b, 44, REC_BASE[0], SZ_REC, REC_BASE[1]); srd(b, 48, S_WS, SZ_UT, WS_UT); srd(b, 52, S_WS, SZ_TAB, WS_TAB)
    srd(b, 64, S_WS, SZ_UT, WS_YT)
    b('v_and_b32 v1, 63, v0'); b('v_lshrrev_b32 v4, 6, v0'); b('s_nop 0'); b('v_readfirstlane_b32 s60, v4')
    b('s_lshr_b32 s61, s60, 1'); b('s_and_b32 s62, s60, 1')
    b(f's_lshl_b32 s63, s{s_idx}, 1'); b('s_add_u32 s63, s63, s61')
    b(f's_mul_i32 s68, s61, {CH_SZ}')
    b(f's_mul_i32 s70, s63, {REC_STRIDE}'); b('s_lshl_b32 s71, s63, 12')
    b('v_lshlrev_b32 v3, 3, v1'); b('v_lshlrev_b32 v5, 4, v1')
    ACC = 8
    AR, NA = 24, 5
    BR, NB = 44, 5
    BC = 64
    D1 = 80
    Y = 96
    S = 112
    YR = 184
    UW, RW = S, S+8
    b('s_lshl_b32 s72, s62, 11'); b('s_add_u32 s72, s72, s71')
    for i in range(2): b(f'buffer_load_dwordx4 {q4(UW+4*i)}, v5, s[48:51], s72 offen offset:{1024*i}')
    b('s_lshl_b32 s73, s62, 9'); b('s_add_u32 s73, s73, s70')
    for i in range(3): b(f'buffer_load_dwordx4 {q4(RW+4*i)}, v3, s[44:47], s73 offen offset:{1024*i}')
    b(f's_mov_b32 s74, {TAB_BC}')
    for p in range(4): b(f'buffer_load_dwordx4 {q4(BC+4*p)}, v5, s[52:55], s74 offen offset:{1024*p}')
    emit_addr(b)
    b('v_mov_b32 v8, 0'); b('v_mov_b32 v9, 0'); b('v_mov_b32 v10, 0'); b('v_mov_b32 v11, 0')
    b(f'ds_write_b128 v{AZ}, v[8:11] offset:{O_UL}')
    for q in range(16): b(f'v_mov_b32 v{ACC+q}, 0')
    b('STAMP 0 vmcnt(4)')
    for i in range(2): b(f'ds_write_b128 v{AU}, {q4(UW+4*i)} offset:{8*UP*i}')
    for i in range(3):
        w = RW + 4*i; o = 1024*i; t0 = AR + 4*i
        b(f'v_alignbit_b32 v{t0}, v{w+1}, v{w}, 16'); b(f'v_alignbit_b32 v{t0+1}, v{w+2}, v{w+1}, 16'); b(f'v_alignbit_b32 v{t0+2}, v{w+3}, v{w+2}, 16')
        if i == 2:
            b('s_mov_b64 s[76:77], exec'); b('s_cmp_eq_u32 s62, 0'); b('s_cselect_b32 s78, 0xffffff, 0'); b('s_mov_b32 s79, 0'); b('s_mov_b64 exec, s[78:79]')
            b('s_cbranch_execz CV_NOW4 ; NOFLUSH')
        b(f'ds_write_b64 v{AK}, {pr(w)} offset:{o}'); b(f'ds_write_b64 v{AK}, {pr(t0)} offset:{KP + o}')
        b(f'v_add_u32 v7, {o}, v{AK2}'); b(f'ds_write2_b32 v7, v{w+1}, v{w+2} offset0:0 offset1:1')
        b(f'v_add_u32 v6, {o}, v{AK3}'); b(f'ds_write2_b32 v6, v{t0+1}, v{t0+2} offset0:0 offset1:1')
        if i == 2:
            b('CV_NOW4: ; NOFLUSH'); b('s_mov_b64 exec, s[76:77]')
    b('s_barrier')
    b('STAMP 1')
    def streams(role):
        F = []; f = F.append
        tiles = (0, 1, 2, 3) if role == 0 else (4, 5)
        s3 = (0, 1) if role == 0 else (2, 3)
        yreg = {t: Y + 4*(t - tiles[0]) for t in tiles}
        T3, G3, DA3 = S, S+16, S+32
        def gpack(d, g):
            f(f'v_cvt_pk_bf16_f32 v{g}, v{d}, v{d+1}'); f(f'v_cvt_pk_bf16_f32 v{g+1}, v{d+2}, v{d+3}')
            f(f'v_cvt_pk_bf16_f32 v{g+2}, v{d+4}, v{d+5}'); f(f'v_cvt_pk_bf16_f32 v{g+3}, v{d+6}, v{d+7}')
        nb3 = max(s3) + 1
        for beta in range(nb3):
            f(f'ds_read_b128 {q4(DA3+8*beta)}, v{AD3A} offset:{4*UP*beta}'); f(f'ds_read_b128 {q4(DA3+8*beta+4)}, v{AD3B} offset:{4*UP*beta}')
        sigs3 = sorted({tp - be for tp in s3 for be in range(tp+1)})
        for s in sigs3:
            f(f'ds_read_b64 {pr(T3+4*s)}, v{AT3} offset:{32*(3-s)}'); f(f'ds_read_b64 {pr(T3+4*s+2)}, v{AT3} offset:{32*(3-s) + 2*(O_R3O-O_R3E)}')
        for beta in range(nb3):
            d = D1 + 8*(beta & 1)
            f(f'v_mfma_f32_16x16x32_bf16 {q4(d)}, {q4(DA3+8*beta)}, {q4(BC+8)}, 0'); f(f'v_mfma_f32_16x16x32_bf16 {q4(d+4)}, {q4(DA3+8*beta+4)}, {q4(BC+12)}, 0')
            gpack(d, G3 + 4*beta)
        for tp in s3:
            y = yreg[tp+2]
            for beta in range(tp+1):
                f(f'v_mfma_f32_16x16x32_bf16 {q4(y)}, {q4(G3+4*beta)}, {q4(T3+4*(tp-beta))}, ' + ('0' if beta == 0 else q4(y)))
        started = {tp+2 for tp in s3}
        T2 = S + 32; DA = S + 56; G = S
        sig2 = sorted({be - 2*t for t in tiles for be in range(max(0, 2*t-4), 2*t+2)})
        for s in sig2:
            f(f'ds_read_b64 {pr(T2+4*(s+4))}, v{AT2} offset:{32*(s+4)}'); f(f'ds_read_b64 {pr(T2+4*(s+4)+2)}, v{AT2} offset:{32*(s+4) + 2*(O_R2O-O_R2E)}')
        betas = list(range(max(0, 2*tiles[0]-4), 2*tiles[-1]+2))
        for q, be in enumerate(betas[:4]): f(f'ds_read_b128 {q4(DA+4*(q & 3))}, v{AD2} offset:{2*UP*be}')
        def tile(t):
            y = yreg[t]; first = t not in started
            for be in range(max(0, 2*t-4), 2*t+2):
                f(f'v_mfma_f32_16x16x32_bf16 {q4(y)}, {q4(G+4*(be % 8))}, {q4(T2+4*(be-2*t+4))}, ' + ('0' if first else q4(y))); first = False
            f(f'ds_write_b128 v{AYW}, {q4(y)} offset:{t*4*272}')
        for q, be in enumerate(betas):
            da = DA + 4*(q & 3); d = D1 + 8*(q & 1); g = G + 4*(be % 8)
            f(f'v_mfma_f32_16x16x32_bf16 {q4(d)}, {q4(da)}, {q4(BC)}, 0'); f(f'v_mfma_f32_16x16x32_bf16 {q4(d+4)}, {q4(da)}, {q4(BC+4)}, 0')
            if q + 4 < len(betas): f(f'ds_read_b128 {q4(da)}, v{AD2} offset:{2*UP*betas[q+4]}')
            gpack(d, g)
            for t in tiles:
                if be == 2*t + 1: tile(t)
        def dk(o):
            dl = -((-o)//64); return dl, (64*dl - o)//16
        near = []
        acc = f'v[{ACC}:{ACC+15}]'
        PF = 4; NS = 35
        def rd(t):
            s = t + 2*role; dl, ks = dk(528 - 16*s)
            ra = AR + 4*(t % NA); rb = BR + 4*(t % NB)
            return [f'ds_read_b64 {pr(ra)}, v{AN} offset:{32*t}', f'ds_read_b64 {pr(ra+2)}, v{AN} offset:{32*t+8}', f'ds_read_b128 {q4(rb)}, v{AB} offset:{(9-dl)*UP + 32*ks}']
        for k in range(NS + PF):
            if k >= PF:
                t = k - PF
                near.append(f'v_mfma_f32_32x32x16_bf16 {acc}, {q4(AR+4*(t % NA))}, {q4(BR+4*(t % NB))}, {acc}')
            if k < NS: near += rd(k)
        EA = YR; EB = YR + 12
        er = []
        for q, op in enumerate((1040, 1024, 1008)):
            ao = 2*(O_RE + 1087 - op - 31)
            er += [f'ds_read_b64 {pr(EA+4*q)}, v{AN} offset:{ao}', f'ds_read_b64 {pr(EA+4*q+2)}, v{AN} offset:{ao+8}']
        if role == 0: eb = [(ABE2, 96), (ABE, 0), (ABE, 32)]
        else: eb = [(ABE, 32), (ABE, 64), (ABE, 96)]
        for q, (ad, off) in enumerate(eb): er.append(f'ds_read_b128 {q4(EB+4*q)}, v{ad} offset:{off}')
        em = [f'v_mfma_f32_32x32x16_bf16 {acc}, {q4(EA+4*q)}, {q4(EB+4*q)}, {acc}' for q in range(3)]
        nearset = set(near) | set(er) | set(em)
        return list_schedule(er + em + F + near, verbose=True, filler=lambda x: x in nearset, memdep=lambda x: None)
    b('s_cmp_eq_u32 s62, 1'); b('s_cbranch_scc1 CV_R1')
    for l in streams(0): b(l)
    b('s_branch CV_JOIN')
    b.label('CV_R1')
    for l in streams(1): b(l)
    b.label('CV_JOIN')
    b('STAMP 2')
    b('s_barrier')
    YRR = 24
    b('s_mov_b64 s[76:77], exec'); b('s_mov_b32 s78, 0xffffff00'); b('s_mov_b32 s79, 0xffffff00'); b('s_mov_b64 exec, s[78:79]')
    for g in range(4): b(f'ds_read_b128 {q4(YRR+4*g)}, v{AYR} offset:{32*g}')
    for q in range(8): b(f'v_pk_add_f32 {pr(ACC+2*q)}, {pr(ACC+2*q)}, {pr(YRR+2*q)}')
    b('s_mov_b64 exec, s[76:77]')
    OB = 44
    for g in range(4):
        o = OB + 2*g
        b(f'v_cvt_pk_bf16_f32 v{o}, v{ACC+4*g}, v{ACC+4*g+1}'); b(f'v_cvt_pk_bf16_f32 v{o+1}, v{ACC+4*g+2}, v{ACC+4*g+3}')
        b(f'ds_write_b64 v{AOW}, {pr(o)} offset:{16*g}')
    b('STAMP 3')
    b('s_barrier')
    for i in range(2): b(f'ds_read_b128 {q4(56+4*i)}, v{AOR} offset:{8*UP*i}')
    for i in range(2): b(f'buffer_store_dwordx4 {q4(56+4*i)}, v5, s[64:67], s72 offen offset:{1024*i} {stflag}')
    b('s_endpgm')
```

```python
import sys
from common import *
from jobs_tr import job_transpose
from jobs_p1 import job_p1
from jobs_tab import job_tab, NTAB, job_tab2, NTAB2
from jobs_kgen import job_kgen
from jobs_p2 import job_p2
from jobs_p2b import job_p2 as job_p2b
from jobs_p3 import job_p3
from jobs_wp import job_wp, NWP
from jobs_pf import job_pf, NPF
from jobs_conv3 import job_conv, CH_SZ
import jobs_conv4
HEADER = open('concat_heads__ssm_conv_s4d__spectral_gfnet__prompt.s.ref').read().split('\n')
hdr = [l for l in HEADER if l.startswith(';') and '@launch' not in l and 'Override launch' not in l and 'grid=ceil' not in l]
hdr = hdr[:14]
def dispatch(b, kname, jobs):
    prologue(b)
    start = 0
    for (name, cnt, fn) in jobs:
        b(f's_cmp_lt_u32 s2, {start+cnt}'); b(f's_cbranch_scc1 {kname}_{name}')
        start += cnt
    b('EXITPATH'); b('s_endpgm')
    start = 0
    for (name, cnt, fn) in jobs:
        b.label(f'{kname}_{name}')
        b(f's_sub_u32 s3, s2, {start}')
        fn(b)
        start += cnt
    return start
def uniq(lines, pre):
    return lines
kernels = []
JOBMAP = {}
INSTR = False
WS_PROF = 0x2000000
def instrument(lines, kidx):
    out = []
    first = True
    for l in lines:
        if l.strip() == 's_waitcnt lgkmcnt(0)' and first:
            out.append(l); first = False
            out += ['s_memrealtime s[90:91]', 's_mov_b32 s92, 0', 's_mov_b32 s93, 0', 's_mov_b32 s94, 0', 's_mov_b32 s95, 0', 's_waitcnt lgkmcnt(0)']
            continue
        if l.strip().startswith('STAMP'):
            k = int(l.split()[1])
            if len(l.split()) > 2: out.append('s_waitcnt ' + l.split()[2])
            out += ['s_memrealtime s[96:97]', 's_waitcnt lgkmcnt(0)', f's_mov_b32 s{92+k}, s96']
            continue
        if l.strip() == 's_endpgm' and not first and out[-1].strip() != 'EXITPATH':
            out += ['s_waitcnt vmcnt(0) lgkmcnt(0)', 's_memrealtime s[96:97]', 's_waitcnt lgkmcnt(0)',
                    f's_add_u32 s84, s40, {hex(WS_PROF + kidx*0x40000)}', 's_addc_u32 s85, s41, 0', 's_and_b32 s85, s85, 0xffff', 's_mov_b32 s86, 0x40000', 's_mov_b32 s87, 0x20000',
                    'v_lshrrev_b32 v1, 6, v0', 'v_lshlrev_b32 v1, 5, v1', 's_lshl_b32 s88, s2, 7', 'v_add_u32 v1, s88, v1',
                    's_getreg_b32 s89, hwreg(HW_REG_XCC_ID)', 's_getreg_b32 s88, hwreg(HW_REG_HW_ID)',
                    'v_mov_b32 v2, s90', 'v_mov_b32 v3, s96', 'v_mov_b32 v4, s89', 'v_mov_b32 v5, s88', 'v_mov_b32 v6, s92', 'v_mov_b32 v7, s93', 'v_mov_b32 v8, s94', 'v_mov_b32 v9, s95',
                    'v_and_b32 v10, 63, v0', 'v_cmp_eq_u32 vcc, 0, v10', 's_and_saveexec_b64 s[98:99], vcc',
                    'buffer_store_dwordx4 v[2:5], v1, s[84:87], 0 offen', 'buffer_store_dwordx4 v[6:9], v1, s[84:87], 0 offen offset:16', 's_endpgm']
            continue
        if l.strip() == 'EXITPATH': out.append(l); continue
        out.append(l)
    return [l for l in out if l.strip() != 'EXITPATH']
DBG = False
def dbgstamp(lines, kidx, picks):
    out = []; first = True
    for l in lines:
        t = l.strip()
        if t == 's_waitcnt lgkmcnt(0)' and first:
            out.append(l); first = False
            out += ['s_memrealtime s[90:91]', 's_waitcnt lgkmcnt(0)']
            continue
        if t.startswith('STAMP'): continue
        if t == 'EXITPATH': out.append(l); continue
        if t == 's_endpgm' and not first and out[-1].strip() != 'EXITPATH':
            lab = 'DBGE_%d_%d' % (kidx, len(out))
            out += ['s_mov_b32 s88, -1']
            for wg, word in picks.items():
                if wg == 'start': continue
                out += [f's_cmp_eq_u32 s2, {wg}', f's_cselect_b32 s88, {word*4}, s88']
            out += ['s_cmp_eq_u32 s2, 0', f's_cselect_b32 s89, 1, 0', 's_or_b32 s87, s89, 0',
                    's_cmp_eq_u32 s88, -1', 's_cselect_b32 s86, 0, 1', 's_or_b32 s86, s86, s89', 's_cmp_eq_u32 s86, 0', f's_cbranch_scc1 {lab}',
                    's_waitcnt vmcnt(0) lgkmcnt(0)', 's_memrealtime s[96:97]', 's_waitcnt lgkmcnt(0)',
                    f's_add_u32 s84, s40, {hex(WS_PROF)}', 's_addc_u32 s85, s41, 0', 's_and_b32 s85, s85, 0xffff', 's_mov_b32 s86, 64', 's_mov_b32 s87, 0x20000',
                    'v_mov_b32 v2, s96', 'v_mov_b32 v3, s88', 'v_mov_b32 v4, s90', f'v_mov_b32 v5, {picks["start"]*4}', 'v_mov_b32 v6, 0x1000',
                    'v_cmp_eq_u32 vcc, 0, v0', 's_and_saveexec_b64 s[98:99], vcc',
                    'buffer_store_dword v2, v3, s[84:87], 0 offen',
                    's_cmp_eq_u32 s2, 0', 's_cselect_b32 s88, 0, 1', 'v_mov_b32 v7, s88', 'v_lshlrev_b32 v7, 12, v7', 'v_add_u32 v5, v5, v7',
                    'buffer_store_dword v4, v5, s[84:87], 0 offen',
                    ] + (['s_cmp_lg_u32 s2, 0', f's_cbranch_scc1 {lab}', 's_waitcnt vmcnt(0)', 's_mov_b64 exec, s[98:99]', 'v_lshlrev_b32 v2, 2, v0',
                          'buffer_load_dword v3, v2, s[84:87], 0 offen sc1', 's_mov_b32 s80, s38', 's_and_b32 s81, s39, 0xffff', 's_mov_b32 s82, 64', 's_mov_b32 s83, 0x20000',
                          's_waitcnt vmcnt(0)', 'buffer_store_dword v3, v2, s[80:83], 0 offen'] if kidx == 2 else []) + [f'{lab}:', 's_endpgm']
            continue
        out.append(l)
    return [l for l in out if l.strip() != 'EXITPATH']
PICKS = [{'start': 0, 319: 1, 575: 2, 735: 3, 992: 4, 160: 12}, {'start': 5, 255: 6, 327: 7, 95: 8, 100: 13}, {'start': 9, 255: 10, 415: 11, 128: 14}]
def hwstamp(lines, kidx):
    picks = [0, 8, 16, 248, 256, 264, 272, 416, 424, 432, 480, 1, 257, 425, 128, 384]
    out = []; first = True
    for l in lines:
        t = l.strip()
        if t == 's_waitcnt lgkmcnt(0)' and first:
            out.append(l); first = False
            if kidx == 1:
                out += ['s_mov_b32 s88, -1']
                for wd, wg in enumerate(picks): out += [f's_cmp_eq_u32 s2, {wg}', f's_cselect_b32 s88, {wd*4}, s88']
                out += ['s_getreg_b32 s89, hwreg(HW_REG_XCC_ID)', 's_getreg_b32 s87, hwreg(HW_REG_HW_ID)', 's_and_b32 s89, s89, 15', 's_lshl_b32 s89, s89, 16', 's_lshr_b32 s87, s87, 8', 's_and_b32 s87, s87, 0xff', 's_or_b32 s89, s89, s87', 's_or_b32 s89, s89, 0x1000000',
                        f's_add_u32 s84, s40, {hex(WS_PROF)}', 's_addc_u32 s85, s41, 0', 's_and_b32 s85, s85, 0xffff', 's_mov_b32 s86, 64', 's_mov_b32 s87, 0x20000',
                        'v_mov_b32 v2, s89', 'v_mov_b32 v3, s88', 'buffer_store_dword v2, v3, s[84:87], 0 offen']
            if kidx == 2:
                out += ['s_cmp_lg_u32 s2, 0', 's_cbranch_scc1 HWSKIP', f's_add_u32 s84, s40, {hex(WS_PROF)}', 's_addc_u32 s85, s41, 0', 's_and_b32 s85, s85, 0xffff', 's_mov_b32 s86, 64', 's_mov_b32 s87, 0x20000',
                        'v_lshlrev_b32 v2, 2, v0', 'buffer_load_dword v3, v2, s[84:87], 0 offen sc1', 's_mov_b32 s80, s38', 's_and_b32 s81, s39, 0xffff', 's_mov_b32 s82, 64', 's_mov_b32 s83, 0x20000',
                        's_waitcnt vmcnt(0)', 'buffer_store_dword v3, v2, s[80:83], 0 offen', 'HWSKIP:']
            continue
        if t.startswith('STAMP') or t == 'EXITPATH': continue
        out.append(l)
    return out
HWID = False
def autosched_jobs(lines):
    out = []; cur = []; skip = False
    for l in lines:
        t = l.strip()
        if t.endswith('_CVb:') or t.endswith('_CV:'):
            out += autosched(cur); cur = []; skip = True
        elif skip and (t.endswith('_P2:') or t.endswith('_P2b:')): skip = False
        (out if skip else cur).append(l)
    out += autosched(cur)
    return out
def make(kname, jobs, lds, vg):
    b = Builder()
    n = dispatch(b, kname, jobs)
    lines = b.lines
    if os.environ.get('AUTOSCHED', '1') == '1': lines = autosched_jobs(lines)
    if HWID: lines = hwstamp(lines, len(kernels))
    elif DBG: lines = dbgstamp(lines, len(kernels), PICKS[len(kernels)])
    elif INSTR: lines = instrument(lines, len(kernels))
    else: lines = [l for l in lines if not l.strip().startswith('STAMP') and l.strip() != 'EXITPATH']
    body = process(lines)
    kernels.append((kname, n, lds, vg, body)); JOBMAP[kname] = [[j[0], j[1]] for j in jobs]
import os
VAR = os.environ.get('VAR', 'pf')
def build(cfg=None):
    wm = 'wp' if VAR == 'wp' else 'gather'
    def ut(b):
        if VAR == 'pftail':
            bb = Builder(); job_transpose(bb, 'UT', 3, 'UT', 'sc1')
            assert bb.lines[-1] == 's_endpgm'
            for l in bb.lines[:-1]: b(l)
            from jobs_pf import pf_tail
            pf_tail(b, 3, 160); b('s_endpgm')
        else: job_transpose(b, 'UT', 3, 'UT', 'sc1')
    jobs1 = [('KG', 320, lambda b: job_kgen(b, 3, 'sc1')), ('P1', 256, lambda b: job_p1(b, 3)), ('UT', 160, ut), ('TB', NTAB, lambda b: job_tab(b, 3))]
    if os.environ.get('P2T', '1') == '2' and os.environ.get('P2TAB', 'trig') != 'trig': jobs1.append(('T2', NTAB2, lambda b: job_tab2(b, 3)))
    if VAR == 'wp': jobs1.append(('WP', NWP, lambda b: job_wp(b, 3)))
    if VAR == 'pf': jobs1.append(('PF', NPF, lambda b: job_pf(b, 3)))
    make('k1_kernel', jobs1, 34816, 128 if os.environ.get('CVV', '4') != '4' else 128)
    def p2a(b):
        b('s_and_b32 s4, s3, 7'); b('s_lshr_b32 s5, s3, 3'); b('s_branch P2_BODY')
    def p2b(b):
        b('s_and_b32 s4, s3, 7'); b('s_lshr_b32 s5, s3, 3'); b('s_add_u32 s5, s5, 12'); b.label('P2_BODY'); job_p2(b, 4, 5, wmode=wm)
    if os.environ.get('P2T', '1') != '2' and (wm == 'wp' or os.environ.get('K2ORD') == 'pair'): make('k2_kernel', [('P2a', 96, p2a), ('CV', 160, lambda b: job_conv(b, 3, 'sc1')), ('P2b', 72, p2b)], 4*CH_SZ, 256)
    else:
        def p2all(b):
            b('s_and_b32 s4, s3, 7'); b('s_lshr_b32 s5, s3, 3'); job_p2(b, 4, 5, wmode=wm)
        if os.environ.get('CVV', '4') == '4':
            def cva(b): b('s_branch CV_BODY')
            def cvb(b):
                b('s_add_u32 s3, s3, 256'); b.label('CV_BODY'); jobs_conv4.job_conv(b, 3)
            make('k2_kernel', [('CVa', 256, cva), ('P2', 168, p2all), ('CVb', 64, cvb)], max(2*jobs_conv4.CH_SZ, 40960), 232)
        elif os.environ.get('P2T', '1') == '2':
            def p2two(b):
                b('s_and_b32 s4, s3, 7'); b('s_lshr_b32 s5, s3, 3'); b('s_lshl_b32 s5, s5, 1'); job_p2b(b, 4, 5, wmode=wm)
            make('k2_kernel', [('CV', 160, lambda b: job_conv(b, 3, 'sc1')), ('P2', 88, p2two)], 4*CH_SZ, 256)
        else: make('k2_kernel', [('CV', 160, lambda b: job_conv(b, 3, 'sc1')), ('P2', 168, p2all)], 4*CH_SZ, 256)
    make('k3_kernel', [('P3', 256, lambda b: job_p3(b, 3, 'sc1')), ('YT', 160, lambda b: job_transpose(b, 'YT', 3, 'YT', 'sc1'))], 32768 + 16384, 128)
    out = list(hdr)
    for (k, n, lds, vg, body) in kernels:
        out.append(f'; @launch kernel={k} grid=({n},1,1) block=(256,1,1) lds={lds}')
    import json
    if INSTR: out.append('; JOBS=' + json.dumps(JOBMAP))
    out.append('.amdgcn_target "amdgcn-amd-amdhsa--gfx950"'); out.append('.text')
    for (k, n, lds, vg, body) in kernels:
        out += [f'.globl {k}', '.p2align 8', f'.type {k},@function', f'{k}:'] + body
    out.append('.section .rodata,"a"')
    for (k, n, lds, vg, body) in kernels:
        acc = (vg + 3)//4*4
        out += ['.p2align 6', f'.amdhsa_kernel {k}', f'  .amdhsa_next_free_vgpr {vg}', '  .amdhsa_next_free_sgpr 102', f'  .amdhsa_accum_offset {acc}',
                '  .amdhsa_group_segment_fixed_size 0', '  .amdhsa_kernarg_size 104', '  .amdhsa_user_sgpr_count 2',
                '  .amdhsa_user_sgpr_kernarg_segment_ptr 1', '  .amdhsa_system_sgpr_workgroup_id_x 1', '.end_amdhsa_kernel']
    return '\n'.join(out) + '\n'
if __name__ == '__main__':
    if len(sys.argv) > 2 and sys.argv[2] == 'instr': INSTR = True
    if len(sys.argv) > 2 and sys.argv[2] == 'dbg': DBG = True
    if len(sys.argv) > 2 and sys.argv[2] == 'hwid': HWID = True
    s = build()
    dst = sys.argv[1] if len(sys.argv) > 1 else 'concat_heads__ssm_conv_s4d__spectral_gfnet__prompt.s'
    open(dst, 'w').write(s)
    print(len(s), 'bytes', s.count('\n'), 'lines')
```

```python
from asmlib import *
WS_T   = 0x000000; SZ_T = 8*256*336*4
WS_Z   = 0x300000
WS_UT  = 0x600000; SZ_UT = 640*2048*2
WS_YT  = 0x900000
WS_REC = 0xC00000; REC_STRIDE = 2304; SZ_REC = 640*REC_STRIDE
WS_TAB = 0xE00000
import os
if 'y' in os.environ.get('INPLACE', 'yz'): WS_YT = WS_UT
if 'z' in os.environ.get('INPLACE', 'yz'): WS_Z = WS_T
WS_WP  = 0x1000000
TAB_P2 = 0; SZ_P2 = 8*34*1024
TAB_P3 = TAB_P2 + SZ_P2
P3_SA = 0; P3_TW = 1024; P3_SB = P3_TW + 4096; SZ_P3 = P3_SB + 6*1024
TAB_BC = TAB_P3 + SZ_P3
SZ_TAB = TAB_BC + 4096
S_U, S_LOGA, S_AIM, S_CRE, S_CIM, S_LOGDT, S_DSK, S_X = 16, 18, 20, 22, 24, 26, 28, 30
S_WR, S_WI, S_OUT, S_DBG, S_WS = 32, 34, 36, 38, 40
def prologue(b):
    b('s_load_dwordx16 s[16:31], s[0:1], 0')
    b('s_load_dwordx8 s[32:39], s[0:1], 64')
    b('s_load_dwordx2 s[40:41], s[0:1], 96')
    b('s_waitcnt lgkmcnt(0)')
def srd(b, d, ptr, size, off=0):
    if off:
        b(f's_add_u32 s{d}, s{ptr}, {hex(off)}')
        b(f's_addc_u32 s{d+1}, s{ptr+1}, 0')
    else:
        b(f's_mov_b32 s{d}, s{ptr}')
        b(f's_mov_b32 s{d+1}, s{ptr+1}')
    b(f's_and_b32 s{d+1}, s{d+1}, 0xffff')
    b(f's_mov_b32 s{d+2}, {hex(size)}')
    b(f's_mov_b32 s{d+3}, 0x20000')
def fbits(x):
    import struct
    return hex(struct.unpack('<I', struct.pack('<f', x))[0])

INP = os.environ.get('INPLACE', 'yz')
T_BASE = (S_OUT, 0) if 't' in INP else (S_WS, WS_T)
REC_BASE = (S_OUT, 0x2A0000) if 'r' in INP else (S_WS, WS_REC)
```

```python
from common import *
def pr(x): return f'v[{x}:{x+1}]'
def q4(x): return f'v[{x}:{x+3}]'
def interleave(a, b_):
    out = []; n = len(a); m = len(b_); k = 0
    for i, x in enumerate(a):
        out.append(x); tgt = (m*(i+1))//n
        out += b_[k:tgt]; k = tgt
    return out
import os
TMAJOR = os.environ.get('TMAJOR', 'row')
ZMAJOR = os.environ.get('ZMAJOR', 'row')
def job_p2(b, s_k1, s_ct, stflag='sc1', wmode='wp'):
    EP = 80; E2 = 256*EP
    if os.environ.get('P2PRIO'): b('s_setprio 3')
    srd(b, 44, T_BASE[0], SZ_T, T_BASE[1]); srd(b, 48, S_WS, SZ_T, WS_Z)
    b('v_and_b32 v1, 63, v0'); b('v_and_b32 v2, 15, v1'); b('v_lshrrev_b32 v3, 4, v1')
    b('v_lshrrev_b32 v4, 6, v0'); b('s_nop 0'); b('v_readfirstlane_b32 s60, v4')
    b(f's_mov_b32 s61, s{s_k1}'); b(f's_mov_b32 s62, s{s_ct}')
    b('s_lshl_b32 s72, s61, 8'); b('s_lshl_b32 s73, s60, 2'); b('s_add_u32 s72, s72, s73'); b('s_mul_i32 s72, s72, 1344')
    b('s_lshl_b32 s73, s62, 6'); b('s_add_u32 s72, s72, s73')
    for r in range(1, 4): b(f's_add_u32 s{72+r}, s72, {r*16*1344}')
    b(f'v_mul_u32_u24 v5, {64*1344}, v3'); b('v_lshlrev_b32 v6, 2, v2'); b('v_add_u32 v5, v5, v6')
    DAT = 8
    if wmode == 'wp': srd(b, 64, S_WS, SZ_T, WS_WP)
    b('s_mul_i32 s82, s61, 21'); b('s_add_u32 s82, s82, s62'); b('s_lshl_b32 s82, s82, 14'); b('s_lshl_b32 s83, s60, 8'); b('s_add_u32 s82, s82, s83')
    b('v_lshlrev_b32 v7, 12, v3'); b('v_lshl_add_u32 v7, v2, 2, v7')
    for j in range(4):
        for r in range(4):
            if TMAJOR == 'tile': b(f'buffer_load_dword v{DAT+4*j+r}, v7, s[44:47], s82 offen offset:{r*1024 + j*64}')
            else: b(f'buffer_load_dword v{DAT+4*j+r}, v5, s[44:47], s{72+r} offen offset:{j*1344}')
    WP = 112
    WRR, WIR = 112, 184
    WL = []
    if wmode == 'wp':
        for j in range(4):
            for r in range(4):
                b(f'buffer_load_dword v{WP+4*j+r}, v7, s[64:67], s82 offen offset:{r*1024 + j*64}')
    else:
        srd(b, 64, S_WR, 2048*642); srd(b, 68, S_WI, 2048*642)
        b('s_lshl_b32 s78, s62, 4'); b('v_add_u32 v7, s78, v2')
        b('v_mul_u32_u24 v200, 3121, v7'); b('v_lshrrev_b32 v200, 16, v200')
        b('v_mul_u32_u24 v201, 19, v200'); b('v_add_u32 v7, v7, v201')
        b('v_cmp_le_u32 vcc, 8, v200')
        b('v_sub_u32 v200, 640, v7'); b('v_cndmask_b32 v7, v7, v200, vcc'); b('v_lshlrev_b32 v7, 1, v7')
        b(f'v_mul_u32_u24 v201, {512*642}, v3'); b('v_add_u32 v201, v201, v7')
        b('s_lshl_b32 s78, s60, 5'); b('s_add_u32 s78, s78, s61'); b('s_mul_i32 s78, s78, 642')
        for j in range(4):
            for r in range(4):
                grp = [f's_add_u32 s79, s78, {(8*j + 128*r)*642}']
                grp.append(f'v_mov_b32 v{WRR+4*j+r}, 0'); grp.append(f'v_mov_b32 v{WIR+4*j+r}, 0')
                grp.append(f'buffer_load_short_d16_hi v{WRR+4*j+r}, v201, s[64:67], s79 offen')
                grp.append(f'buffer_load_short_d16_hi v{WIR+4*j+r}, v201, s[68:71], s79 offen')
                WL.append(grp)
    M1, M4, M2, M3 = 24, 32, 40, 72
    TR = []
    t = TR.append
    t('v_cvt_f32_u32 v104, v2')
    t('v_lshlrev_b32 v105, 2, v3'); t('v_cvt_f32_u32 v105, v105')
    t('s_nop 0')
    tog = [0]
    def angles(dst, fwd):
        for r in range(4):
            th = 108 if (tog[0] & 1) == 0 else 111
            tog[0] += 1
            cc, ss = (109, 110) if th == 108 else (212, 213)
            if r == 0: src = 'v107'
            else: t(f'v_fmamk_f32 v{th}, v106, {fbits(float(r))}, v107'); src = f'v{th}'
            t(f'v_cos_f32 v{cc}, {src}'); t(f'v_sin_f32 v{ss}, {src}')
            if fwd: t(f'v_cvt_pk_bf16_f32 v{dst+r}, v{cc}, v{ss}'); t(f'v_cvt_pk_bf16_f32 v{dst+4+r}, -v{ss}, v{cc}')
            else: t(f'v_cvt_pk_bf16_f32 v{dst+r}, v{cc}, -v{ss}'); t(f'v_cvt_pk_bf16_f32 v{dst+4+r}, v{ss}, v{cc}')
    return_dummy = None
    b('v_cvt_f32_u32 v210, s61')
    b('s_lshl_b32 s83, s60, 5'); b('s_add_u32 s83, s83, s61'); b('v_cvt_f32_u32 v211, s83')
    t(f'v_fmamk_f32 v106, v104, {fbits(8.0)}, v210'); t(f'v_mul_f32 v106, {fbits(1/128)}, v106'); t('v_mul_f32 v107, v105, v106'); angles(M1, True)
    for j in range(4):
        t(f'v_fmamk_f32 v106, v104, {fbits(128.0)}, v211'); t(f'v_add_f32 v106, {fbits(8.0*j)}, v106' if j else 'v_nop'); t(f'v_mul_f32 v106, {fbits(1/2048)}, v106')
        t('v_mul_f32 v107, v105, v106'); angles(M2+8*j, True)
    nA = len(TR)
    for j in range(4):
        t(f'v_mul_f32 v106, {fbits(1/16)}, v104'); t(f'v_add_f32 v107, {fbits(8.0*j)}, v211' if j else 'v_mov_b32 v107, v211')
        t('v_mul_f32 v107, v107, v104'); t(f'v_mul_f32 v107, {fbits(1/2048)}, v107'); t('v_fmac_f32 v107, v105, v106'); angles(M3+8*j, False)
    t(f'v_mul_f32 v106, {fbits(1/16)}, v104'); t('v_mul_f32 v107, v210, v104'); t(f'v_mul_f32 v107, {fbits(1/128)}, v107'); t('v_fmac_f32 v107, v105, v106'); angles(M4, False)
    TA = [x for x in TR[:nA] if x != 'v_nop']; TB = [x for x in TR[nA:] if x != 'v_nop']
    def mix(groups, instrs):
        n = max(len(groups), 1); m = len(instrs); k = 0
        for i in range(n):
            if i < len(groups):
                for x in groups[i]: b(x)
            tgt = (m*(i+1))//n
            for x in instrs[k:tgt]: b(x)
            k = tgt
    b(f'v_mul_u32_u24 v208, {64*EP}, v3'); b(f'v_mul_u32_u24 v209, {EP}, v2'); b('v_add_u32 v208, v208, v209')
    b('s_lshl_b32 s81, s60, 4'); b('v_add_u32 v208, s81, v208')
    b(f's_mul_i32 s81, s60, {64*EP}'); b('v_lshlrev_b32 v106, 4, v3'); b('v_add_u32 v209, v209, v106'); b('v_add_u32 v209, s81, v209')
    nW1 = int(os.environ.get('P2W1', '10')); nW2 = int(os.environ.get('P2W2', '13'))
    if os.environ.get('P2ALLTRIG'):
        TA = TA + TB; TB = []
    mix(WL[:nW1], TA)
    ACC = 136; EO = 168
    def stage(A_of_j, Bsrc_of_j):
        for j in range(4):
            a = A_of_j(j); d = ACC + 8*j
            b(f'v_mfma_f32_16x16x32_bf16 {q4(d)}, {q4(a)}, {q4(Bsrc_of_j(j))}, 0')
            b(f'v_mfma_f32_16x16x32_bf16 {q4(d+4)}, {q4(a+4)}, {q4(Bsrc_of_j(j))}, 0')
    b('STAMP 0 vmcnt(%d)' % (16 if wmode == 'wp' else 20))
    stage(lambda j: M1, lambda j: DAT+4*j)
    for j in range(4):
        for r in range(4): b(f'v_cvt_pk_bf16_f32 v{EO+4*r+j}, v{ACC+8*j+r}, v{ACC+8*j+4+r}')
    for r in range(4): b(f'ds_write_b128 v208, {q4(EO+4*r)} offset:{r*16*EP}')
    h = len(TB)//3
    mix(WL[nW1:nW2], TB[:h])
    b('s_barrier')
    for j in range(4): b(f'ds_read_b128 {q4(DAT+4*j)}, v209 offset:{j*16*EP}')
    mix(WL[nW2:], TB[h:2*h])
    b('STAMP 1')
    stage(lambda j: M2+8*j, lambda j: DAT+4*j)
    for x in TB[2*h:]: b(x)
    b('STAMP 2 vmcnt(0)')
    TM = 128; WR = 132; WI = 134
    for j in range(4):
        for h in range(2):
            i0 = 4*j + 2*h
            if wmode == 'wp':
                for q in range(2): b(f'v_lshlrev_b32 v{WR+q}, 16, v{WP+i0+q}'); b(f'v_and_b32 v{WI+q}, 0xffff0000, v{WP+i0+q}')
                WRp, WIp = WR, WI
            else: WRp, WIp = WRR+i0, WIR+i0
            dr, di = ACC+8*j+2*h, ACC+8*j+4+2*h
            b(f'v_pk_mul_f32 {pr(TM)}, {pr(dr)}, {pr(WRp)}'); b(f'v_pk_mul_f32 {pr(TM+2)}, {pr(dr)}, {pr(WIp)}')
            b(f'v_pk_fma_f32 {pr(TM)}, {pr(di)}, {pr(WIp)}, {pr(TM)} neg_lo:[1,0,0] neg_hi:[1,0,0]')
            b(f'v_pk_fma_f32 {pr(TM+2)}, {pr(di)}, {pr(WRp)}, {pr(TM+2)}')
            b(f'v_cvt_pk_bf16_f32 v{DAT+i0}, v{TM}, v{TM+2}'); b(f'v_cvt_pk_bf16_f32 v{DAT+i0+1}, v{TM+1}, v{TM+3}')
    stage(lambda j: M3+8*j, lambda j: DAT+4*j)
    for j in range(4):
        for r in range(4): b(f'v_cvt_pk_bf16_f32 v{EO+4*r+j}, v{ACC+8*j+r}, v{ACC+8*j+4+r}')
    for r in range(4): b(f'ds_write_b128 v208, {q4(EO+4*r)} offset:{E2 + r*16*EP}')
    b('s_barrier')
    for j in range(4): b(f'ds_read_b128 {q4(DAT+4*j)}, v209 offset:{E2 + j*16*EP}')
    b('STAMP 3')
    stage(lambda j: M4, lambda j: DAT+4*j)
    b('s_mul_i32 s81, s60, 4608'); b('v_mul_u32_u24 v208, 1088, v3'); b('v_lshl_add_u32 v208, v2, 2, v208'); b('v_add_u32 v208, s81, v208')
    for j in range(4):
        for r in range(4):
            b(f'v_cvt_pk_bf16_f32 v{EO+4*j+r}, v{ACC+8*j+r}, v{ACC+8*j+4+r}')
            b(f'ds_write_b32 v208, v{EO+4*j+r} offset:{r*272 + j*64}')
    b('v_mul_u32_u24 v209, 272, v3'); b('v_lshl_add_u32 v209, v2, 4, v209'); b('v_add_u32 v209, s81, v209')
    for i in range(4): b(f'ds_read_b128 {q4(DAT+4*i)}, v209 offset:{i*1088}')
    if ZMAJOR == 'tile':
        b('s_mul_i32 s82, s61, 21'); b('s_add_u32 s82, s82, s62'); b('s_lshl_b32 s82, s82, 14'); b('s_lshl_b32 s83, s60, 8'); b('s_add_u32 s82, s82, s83')
        b('v_lshlrev_b32 v200, 10, v3'); b('v_lshl_add_u32 v200, v2, 4, v200')
        for i in range(4):
            b(f's_add_u32 s83, s82, {i*4096}')
            b(f'buffer_store_dwordx4 {q4(DAT+4*i)}, v200, s[48:51], s83 offen {stflag}')
    else:
        b('v_lshrrev_b32 v200, 2, v2'); b('v_lshl_add_u32 v200, v3, 4, v200'); b('v_mul_u32_u24 v200, 1344, v200'); b('v_and_b32 v201, 3, v2'); b('v_lshl_add_u32 v200, v201, 4, v200')
        for i in range(4):
            b(f's_add_u32 s83, s72, {i*64*1344}')
            b(f'buffer_store_dwordx4 {q4(DAT+4*i)}, v200, s[48:51], s83 offen {stflag}')
    b('s_endpgm')
```

```python
from common import *
import os
NPF = int(os.environ.get('NPF', '81'))
def job_pf(b, s_idx):
    share = -(-(2048*642) // NPF); share = -(-share // 1024) * 1024
    n = -(-share // 4096)
    srd(b, 44, S_WR, 2048*642); srd(b, 48, S_WI, 2048*642)
    b('v_lshlrev_b32 v1, 4, v0'); b(f's_mul_i32 s61, s{s_idx}, {share}')
    for i in range(n):
        if (i+1)*4096 > share:
            rem = share - i*4096
            b(f'v_mov_b32 v2, 0x80000000'); b(f'v_cmp_gt_u32 vcc, {rem}, v1'); b('v_cndmask_b32 v1, v2, v1, vcc')
        b(f's_add_u32 s62, s61, {4096*i}')
        b(f'buffer_load_dwordx4 v[{8+8*i}:{11+8*i}], v1, s[44:47], s62 offen')
        b(f'buffer_load_dwordx4 v[{12+8*i}:{15+8*i}], v1, s[48:51], s62 offen')
    b('s_waitcnt vmcnt(0)')
    b('s_endpgm')
```

```python
import sys
from common import *
from jobs_tr import job_transpose
from jobs_p1 import job_p1
from jobs_tab import job_tab, NTAB, job_tab2, NTAB2
from jobs_kgen import job_kgen
from jobs_p2 import job_p2
from jobs_p2b import job_p2 as job_p2b
from jobs_p3 import job_p3
from jobs_wp import job_wp, NWP
from jobs_pf import job_pf, NPF
from jobs_conv3 import job_conv, CH_SZ
import jobs_conv4
HEADER = open('concat_heads__ssm_conv_s4d__spectral_gfnet__prompt.s.ref').read().split('\n')
hdr = [l for l in HEADER if l.startswith(';') and '@launch' not in l and 'Override launch' not in l and 'grid=ceil' not in l]
hdr = hdr[:14]
def dispatch(b, kname, jobs):
    prologue(b)
    start = 0
    for (name, cnt, fn) in jobs:
        b(f's_cmp_lt_u32 s2, {start+cnt}'); b(f's_cbranch_scc1 {kname}_{name}')
        start += cnt
    b('EXITPATH'); b('s_endpgm')
    start = 0
    for (name, cnt, fn) in jobs:
        b.label(f'{kname}_{name}')
        b(f's_sub_u32 s3, s2, {start}')
        fn(b)
        start += cnt
    return start
def uniq(lines, pre):
    return lines
kernels = []
JOBMAP = {}
INSTR = False
WS_PROF = 0x2000000
def instrument(lines, kidx):
    out = []
    first = True
    for l in lines:
        if l.strip() == 's_waitcnt lgkmcnt(0)' and first:
            out.append(l); first = False
            out += ['s_memrealtime s[90:91]', 's_mov_b32 s92, 0', 's_mov_b32 s93, 0', 's_mov_b32 s94, 0', 's_mov_b32 s95, 0', 's_waitcnt lgkmcnt(0)']
            continue
        if l.strip().startswith('STAMP'):
            k = int(l.split()[1])
            if len(l.split()) > 2: out.append('s_waitcnt ' + l.split()[2])
            out += ['s_memrealtime s[96:97]', 's_waitcnt lgkmcnt(0)', f's_mov_b32 s{92+k}, s96']
            continue
        if l.strip() == 's_endpgm' and not first and out[-1].strip() != 'EXITPATH':
            out += ['s_waitcnt vmcnt(0) lgkmcnt(0)', 's_memrealtime s[96:97]', 's_waitcnt lgkmcnt(0)',
                    f's_add_u32 s84, s40, {hex(WS_PROF + kidx*0x40000)}', 's_addc_u32 s85, s41, 0', 's_and_b32 s85, s85, 0xffff', 's_mov_b32 s86, 0x40000', 's_mov_b32 s87, 0x20000',
                    'v_lshrrev_b32 v1, 6, v0', 'v_lshlrev_b32 v1, 5, v1', 's_lshl_b32 s88, s2, 7', 'v_add_u32 v1, s88, v1',
                    's_getreg_b32 s89, hwreg(HW_REG_XCC_ID)', 's_getreg_b32 s88, hwreg(HW_REG_HW_ID)',
                    'v_mov_b32 v2, s90', 'v_mov_b32 v3, s96', 'v_mov_b32 v4, s89', 'v_mov_b32 v5, s88', 'v_mov_b32 v6, s92', 'v_mov_b32 v7, s93', 'v_mov_b32 v8, s94', 'v_mov_b32 v9, s95',
                    'v_and_b32 v10, 63, v0', 'v_cmp_eq_u32 vcc, 0, v10', 's_and_saveexec_b64 s[98:99], vcc',
                    'buffer_store_dwordx4 v[2:5], v1, s[84:87], 0 offen', 'buffer_store_dwordx4 v[6:9], v1, s[84:87], 0 offen offset:16', 's_endpgm']
            continue
        if l.strip() == 'EXITPATH': out.append(l); continue
        out.append(l)
    return [l for l in out if l.strip() != 'EXITPATH']
DBG = False
def dbgstamp(lines, kidx, picks):
    out = []; first = True
    for l in lines:
        t = l.strip()
        if t == 's_waitcnt lgkmcnt(0)' and first:
            out.append(l); first = False
            out += ['s_memrealtime s[90:91]', 's_waitcnt lgkmcnt(0)']
            continue
        if t.startswith('STAMP'): continue
        if t == 'EXITPATH': out.append(l); continue
        if t == 's_endpgm' and not first and out[-1].strip() != 'EXITPATH':
            lab = 'DBGE_%d_%d' % (kidx, len(out))
            out += ['s_mov_b32 s88, -1']
            for wg, word in picks.items():
                if wg == 'start': continue
                out += [f's_cmp_eq_u32 s2, {wg}', f's_cselect_b32 s88, {word*4}, s88']
            out += ['s_cmp_eq_u32 s2, 0', f's_cselect_b32 s89, 1, 0', 's_or_b32 s87, s89, 0',
                    's_cmp_eq_u32 s88, -1', 's_cselect_b32 s86, 0, 1', 's_or_b32 s86, s86, s89', 's_cmp_eq_u32 s86, 0', f's_cbranch_scc1 {lab}',
                    's_waitcnt vmcnt(0) lgkmcnt(0)', 's_memrealtime s[96:97]', 's_waitcnt lgkmcnt(0)',
                    f's_add_u32 s84, s40, {hex(WS_PROF)}', 's_addc_u32 s85, s41, 0', 's_and_b32 s85, s85, 0xffff', 's_mov_b32 s86, 64', 's_mov_b32 s87, 0x20000',
                    'v_mov_b32 v2, s96', 'v_mov_b32 v3, s88', 'v_mov_b32 v4, s90', f'v_mov_b32 v5, {picks["start"]*4}', 'v_mov_b32 v6, 0x1000',
                    'v_cmp_eq_u32 vcc, 0, v0', 's_and_saveexec_b64 s[98:99], vcc',
                    'buffer_store_dword v2, v3, s[84:87], 0 offen',
                    's_cmp_eq_u32 s2, 0', 's_cselect_b32 s88, 0, 1', 'v_mov_b32 v7, s88', 'v_lshlrev_b32 v7, 12, v7', 'v_add_u32 v5, v5, v7',
                    'buffer_store_dword v4, v5, s[84:87], 0 offen',
                    ] + (['s_cmp_lg_u32 s2, 0', f's_cbranch_scc1 {lab}', 's_waitcnt vmcnt(0)', 's_mov_b64 exec, s[98:99]', 'v_lshlrev_b32 v2, 2, v0',
                          'buffer_load_dword v3, v2, s[84:87], 0 offen sc1', 's_mov_b32 s80, s38', 's_and_b32 s81, s39, 0xffff', 's_mov_b32 s82, 64', 's_mov_b32 s83, 0x20000',
                          's_waitcnt vmcnt(0)', 'buffer_store_dword v3, v2, s[80:83], 0 offen'] if kidx == 2 else []) + [f'{lab}:', 's_endpgm']
            continue
        out.append(l)
    return [l for l in out if l.strip() != 'EXITPATH']
PICKS = [{'start': 0, 319: 1, 575: 2, 735: 3, 992: 4, 160: 12}, {'start': 5, 255: 6, 327: 7, 95: 8, 100: 13}, {'start': 9, 255: 10, 415: 11, 128: 14}]
def hwstamp(lines, kidx):
    picks = [0, 8, 16, 248, 256, 264, 272, 416, 424, 432, 480, 1, 257, 425, 128, 384]
    out = []; first = True
    for l in lines:
        t = l.strip()
        if t == 's_waitcnt lgkmcnt(0)' and first:
            out.append(l); first = False
            if kidx == 1:
                out += ['s_mov_b32 s88, -1']
                for wd, wg in enumerate(picks): out += [f's_cmp_eq_u32 s2, {wg}', f's_cselect_b32 s88, {wd*4}, s88']
                out += ['s_getreg_b32 s89, hwreg(HW_REG_XCC_ID)', 's_getreg_b32 s87, hwreg(HW_REG_HW_ID)', 's_and_b32 s89, s89, 15', 's_lshl_b32 s89, s89, 16', 's_lshr_b32 s87, s87, 8', 's_and_b32 s87, s87, 0xff', 's_or_b32 s89, s89, s87', 's_or_b32 s89, s89, 0x1000000',
                        f's_add_u32 s84, s40, {hex(WS_PROF)}', 's_addc_u32 s85, s41, 0', 's_and_b32 s85, s85, 0xffff', 's_mov_b32 s86, 64', 's_mov_b32 s87, 0x20000',
                        'v_mov_b32 v2, s89', 'v_mov_b32 v3, s88', 'buffer_store_dword v2, v3, s[84:87], 0 offen']
            if kidx == 2:
                out += ['s_cmp_lg_u32 s2, 0', 's_cbranch_scc1 HWSKIP', f's_add_u32 s84, s40, {hex(WS_PROF)}', 's_addc_u32 s85, s41, 0', 's_and_b32 s85, s85, 0xffff', 's_mov_b32 s86, 64', 's_mov_b32 s87, 0x20000',
                        'v_lshlrev_b32 v2, 2, v0', 'buffer_load_dword v3, v2, s[84:87], 0 offen sc1', 's_mov_b32 s80, s38', 's_and_b32 s81, s39, 0xffff', 's_mov_b32 s82, 64', 's_mov_b32 s83, 0x20000',
                        's_waitcnt vmcnt(0)', 'buffer_store_dword v3, v2, s[80:83], 0 offen', 'HWSKIP:']
            continue
        if t.startswith('STAMP') or t == 'EXITPATH': continue
        out.append(l)
    return out
HWID = False
def autosched_jobs(lines):
    out = []; cur = []; skip = False
    for l in lines:
        t = l.strip()
        if t.endswith('_CVb:') or t.endswith('_CV:'):
            out += autosched(cur); cur = []; skip = True
        elif skip and (t.endswith('_P2:') or t.endswith('_P2b:')): skip = False
        (out if skip else cur).append(l)
    out += autosched(cur)
    return out
def make(kname, jobs, lds, vg):
    b = Builder()
    n = dispatch(b, kname, jobs)
    lines = b.lines
    if os.environ.get('AUTOSCHED', '1') == '1': lines = autosched_jobs(lines)
    if HWID: lines = hwstamp(lines, len(kernels))
    elif DBG: lines = dbgstamp(lines, len(kernels), PICKS[len(kernels)])
    elif INSTR: lines = instrument(lines, len(kernels))
    else: lines = [l for l in lines if not l.strip().startswith('STAMP') and l.strip() != 'EXITPATH']
    body = process(lines)
    kernels.append((kname, n, lds, vg, body)); JOBMAP[kname] = [[j[0], j[1]] for j in jobs]
import os
VAR = os.environ.get('VAR', 'pf')
def build(cfg=None):
    wm = 'wp' if VAR == 'wp' else 'gather'
    def ut(b):
        if VAR == 'pftail':
            bb = Builder(); job_transpose(bb, 'UT', 3, 'UT', 'sc1')
            assert bb.lines[-1] == 's_endpgm'
            for l in bb.lines[:-1]: b(l)
            from jobs_pf import pf_tail
            pf_tail(b, 3, 160); b('s_endpgm')
        else: job_transpose(b, 'UT', 3, 'UT', 'sc1')
    jobs1 = [('KG', 320, lambda b: job_kgen(b, 3, 'sc1')), ('P1', 256, lambda b: job_p1(b, 3)), ('UT', 160, ut), ('TB', NTAB, lambda b: job_tab(b, 3))]
    if os.environ.get('P2T', '1') == '2' and os.environ.get('P2TAB', 'trig') != 'trig': jobs1.append(('T2', NTAB2, lambda b: job_tab2(b, 3)))
    if VAR == 'wp': jobs1.append(('WP', NWP, lambda b: job_wp(b, 3)))
    if VAR == 'pf': jobs1.append(('PF', NPF, lambda b: job_pf(b, 3)))
    ordr = os.environ.get('K1ORD')
    if ordr:
        dd = {j[0]: j for j in jobs1}; jobs1 = [dd[n] for n in ordr.split(',')]
    make('k1_kernel', jobs1, 34816, 128 if os.environ.get('CVV', '4') != '4' else 128)
    def p2a(b):
        b('s_and_b32 s4, s3, 7'); b('s_lshr_b32 s5, s3, 3'); b('s_branch P2_BODY')
    def p2b(b):
        b('s_and_b32 s4, s3, 7'); b('s_lshr_b32 s5, s3, 3'); b('s_add_u32 s5, s5, 12'); b.label('P2_BODY'); job_p2(b, 4, 5, wmode=wm)
    if os.environ.get('P2T', '1') != '2' and (wm == 'wp' or os.environ.get('K2ORD') == 'pair'): make('k2_kernel', [('P2a', 96, p2a), ('CV', 160, lambda b: job_conv(b, 3, 'sc1')), ('P2b', 72, p2b)], 4*CH_SZ, 256)
    else:
        def p2all(b):
            b('s_and_b32 s4, s3, 7'); b('s_lshr_b32 s5, s3, 3'); job_p2(b, 4, 5, wmode=wm)
        if os.environ.get('CVV', '4') == '4':
            def cva(b): b('s_branch CV_BODY')
            def cvb(b):
                b('s_add_u32 s3, s3, 256'); b.label('CV_BODY'); jobs_conv4.job_conv(b, 3)
            if os.environ.get('K2P2FIRST'):
                make('k2_kernel', [('P2', 168, p2all), ('CV', 320, lambda b: jobs_conv4.job_conv(b, 3))], max(2*jobs_conv4.CH_SZ, 40960), 232)
            else: make('k2_kernel', [('CVa', 256, cva), ('P2', 168, p2all), ('CVb', 64, cvb)], max(2*jobs_conv4.CH_SZ, 40960), 232)
        elif os.environ.get('P2T', '1') == '2':
            def p2two(b):
                b('s_and_b32 s4, s3, 7'); b('s_lshr_b32 s5, s3, 3'); b('s_lshl_b32 s5, s5, 1'); job_p2b(b, 4, 5, wmode=wm)
            make('k2_kernel', [('CV', 160, lambda b: job_conv(b, 3, 'sc1')), ('P2', 88, p2two)], 4*CH_SZ, 256)
        else: make('k2_kernel', [('CV', 160, lambda b: job_conv(b, 3, 'sc1')), ('P2', 168, p2all)], 4*CH_SZ, 256)
    make('k3_kernel', [('P3', 256, lambda b: job_p3(b, 3, 'sc1')), ('YT', 160, lambda b: job_transpose(b, 'YT', 3, 'YT', 'sc1'))], 32768 + 16384, 128)
    out = list(hdr)
    for (k, n, lds, vg, body) in kernels:
        out.append(f'; @launch kernel={k} grid=({n},1,1) block=(256,1,1) lds={lds}')
    import json
    if INSTR: out.append('; JOBS=' + json.dumps(JOBMAP))
    out.append('.amdgcn_target "amdgcn-amd-amdhsa--gfx950"'); out.append('.text')
    for (k, n, lds, vg, body) in kernels:
        out += [f'.globl {k}', '.p2align 8', f'.type {k},@function', f'{k}:'] + body
    out.append('.section .rodata,"a"')
    for (k, n, lds, vg, body) in kernels:
        acc = (vg + 3)//4*4
        out += ['.p2align 6', f'.amdhsa_kernel {k}', f'  .amdhsa_next_free_vgpr {vg}', '  .amdhsa_next_free_sgpr 102', f'  .amdhsa_accum_offset {acc}',
                '  .amdhsa_group_segment_fixed_size 0', '  .amdhsa_kernarg_size 104', '  .amdhsa_user_sgpr_count 2',
                '  .amdhsa_user_sgpr_kernarg_segment_ptr 1', '  .amdhsa_system_sgpr_workgroup_id_x 1', '.end_amdhsa_kernel']
    return '\n'.join(out) + '\n'
if __name__ == '__main__':
    if len(sys.argv) > 2 and sys.argv[2] == 'instr': INSTR = True
    if len(sys.argv) > 2 and sys.argv[2] == 'dbg': DBG = True
    if len(sys.argv) > 2 and sys.argv[2] == 'hwid': HWID = True
    s = build()
    dst = sys.argv[1] if len(sys.argv) > 1 else 'concat_heads__ssm_conv_s4d__spectral_gfnet__prompt.s'
    open(dst, 'w').write(s)
    print(len(s), 'bytes', s.count('\n'), 'lines')
```

```python
from common import *
from modelA import CN, O_RN, O_R2E, O_R2O, O_R3E, O_R3O, O_RE, NREC
def pr(x): return f'v[{x}:{x+1}]'
def q4(x): return f'v[{x}:{x+3}]'
KP = 2240
UP = 144; PRE = 9
O_KC = 0
O_UL = 4*KP
O_YF = O_UL + (PRE+32)*UP
CH_SZ = O_YF + 24*272
AN, AB, AD2, AT2, AYW, AYR, AOW, AOR, AT3, AD3A, AD3B, ABE, ABE2, AU, AK, AK2, AK3, AZ = range(208, 226)
TAB_CV = TAB_BC + 4096
def emit_addr(b):
    b(f's_mov_b32 s81, {UP}'); b(f's_mov_b32 s84, {8*PRE - 3}'); b('s_mov_b32 s85, 272')
    b('s_lshl_b32 s75, s62, 6'); b('v_add_u32 v7, s75, v1'); b('v_min_u32 v7, 80, v7'); b(f'v_lshl_add_u32 v{AZ}, v7, 4, s68')
    b('v_and_b32 v2, 15, v1'); b('v_lshrrev_b32 v12, 4, v1'); b('v_and_b32 v4, 31, v1'); b('v_lshrrev_b32 v13, 5, v1')
    b(f's_add_u32 s80, s68, {O_UL}')
    b('v_lshlrev_b32 v16, 4, v13'); b(f'v_mad_u32_u24 v7, v4, {UP}, v16'.replace(f', {UP},', ', s81,')); b(f'v_add_u32 v{AB}, s80, v7')
    b('v_lshlrev_b32 v14, 3, v13'); b(f'v_sub_u32 v{AOW}, v{AB}, v14'); b(f'v_add_u32 v{AOW}, s75, v{AOW}')
    b('s_lshl_b32 s82, s62, 7'); b(f's_add_u32 s82, s82, {O_YF - 8*272 - O_UL}'); b(f'v_lshl_add_u32 v{AYR}, v4, 7, v{AB}'); b(f'v_add_u32 v{AYR}, s82, v{AYR}')
    b('v_cmp_le_u32 vcc, 16, v4'); b(f's_add_u32 s82, s80, {8*UP}'); b('v_add_u32 v7, s82, v16')
    b(f'v_subrev_u32 v14, {7*UP}, v{AB}'); b(f'v_cndmask_b32 v{ABE}, v7, v14, vcc')
    b(f'v_subrev_u32 v14, {8*UP}, v{AB}'); b(f'v_cndmask_b32 v{ABE2}, v7, v14, vcc')
    def blk(dst, qreg, sbase):
        b(f'v_lshrrev_b32 v14, 3, v{qreg}'); b(f'v_and_b32 v15, 7, v{qreg}'); b(f'v_mad_u32_u24 v14, v14, s81, {sbase}'); b(f'v_lshl_add_u32 v{dst}, v15, 4, v14')
    b(f's_mul_i32 s82, s62, {16*UP}'); b('s_add_u32 s82, s82, s80'); b('v_mov_b32 v17, s82'); blk(AOR, 1, 'v17'); b(f'v_add_u32 v{AU}, {PRE*UP}, v{AOR}')
    b('s_lshl_b32 s82, s62, 9'); b('s_add_u32 s82, s82, s68'); b(f'v_add_u32 v{AK}, s82, v3'); b(f'v_add_u32 v{AK2}, {2*KP}, v{AK}'); b(f'v_add_u32 v{AK3}, {3*KP}, v{AK}')
    def copyaddr(dst, x0reg, base):
        b(f'v_and_b32 v14, 3, v{x0reg}'); b(f's_add_u32 s82, s68, {2*base}'); b(f'v_lshl_add_u32 v{dst}, v{x0reg}, 1, s82'); b(f'v_mad_u32_u24 v{dst}, v14, s83, v{dst}')
    b(f's_mov_b32 s83, {KP-2}')
    b('v_lshlrev_b32 v15, 2, v12')
    b('v_lshlrev_b32 v7, 1, v2'); b('v_sub_u32 v7, v15, v7'); b('v_add_u32 v7, 30, v7'); copyaddr(AT2, 7, O_R2E)
    b('v_sub_u32 v7, v15, v2'); b('v_add_u32 v7, 15, v7'); copyaddr(AT3, 7, O_R3E)
    b('v_lshlrev_b32 v7, 3, v13'); b('v_sub_u32 v7, v7, v4'); b('v_add_u32 v7, 31, v7'); copyaddr(AN, 7, O_RN)
    q0 = 8*PRE - 3
    b('v_mov_b32 v17, s80')
    b(f'v_add3_u32 v7, v2, v12, {q0}'.replace(f', {q0}', ', s84')); blk(AD2, 7, 'v17')
    b('v_add_u32 v7, v7, v2'); blk(AD3A, 7, 'v17')
    b('v_add_u32 v7, 1, v7'); blk(AD3B, 7, 'v17')
    b('v_lshrrev_b32 v7, 2, v2'); b('v_and_b32 v14, 3, v2'); b('v_lshlrev_b32 v14, 6, v14'); b('v_lshl_add_u32 v14, v12, 4, v14')
    b(f's_add_u32 s82, s68, {O_YF}'); b('v_mad_u32_u24 v7, v7, s85, v14'); b(f'v_add_u32 v{AYW}, s82, v7')

def job_cvtab(b):
    srd(b, 52, S_WS, SZ_TAB, WS_TAB)
    b('v_and_b32 v1, 63, v0'); b('v_lshrrev_b32 v4, 6, v0'); b('s_nop 0'); b('v_readfirstlane_b32 s60, v4')
    b('s_lshr_b32 s61, s60, 1'); b('s_and_b32 s62, s60, 1'); b(f's_mul_i32 s68, s61, {CH_SZ}')
    b('v_lshlrev_b32 v3, 3, v1'); b('v_lshlrev_b32 v5, 4, v1')
    import re
    bb = Builder(); emit_addr(bb)
    bb('v_mov_b32 v226, 0'); bb('v_mov_b32 v227, 0')
    for l in bb.lines: b(re.sub(r'\bv(2[0-2]\d)\b', lambda m: 'v%d' % (int(m.group(1)) - 168), l))
    b(f's_mul_i32 s75, s60, {5*1024}'); b(f's_add_u32 s75, s75, {TAB_CV}')
    for i in range(5):
        if i == 4: b('s_add_u32 s75, s75, 4096')
        b(f'buffer_store_dwordx4 {q4(40+4*i)}, v5, s[52:55], s75 offen offset:{1024*(i % 4)} sc1')
    b('s_endpgm')
def job_conv(b, s_idx, stflag='sc1'):
    srd(b, 44, REC_BASE[0], SZ_REC, REC_BASE[1]); srd(b, 48, S_WS, SZ_UT, WS_UT); srd(b, 52, S_WS, SZ_TAB, WS_TAB)
    srd(b, 64, S_WS, SZ_UT, WS_YT)
    b('v_and_b32 v1, 63, v0'); b('v_lshrrev_b32 v4, 6, v0'); b('s_nop 0'); b('v_readfirstlane_b32 s60, v4')
    b('s_lshr_b32 s61, s60, 1'); b('s_and_b32 s62, s60, 1')
    b(f's_lshl_b32 s63, s{s_idx}, 1'); b('s_add_u32 s63, s63, s61')
    b(f's_mul_i32 s68, s61, {CH_SZ}')
    b(f's_mul_i32 s70, s63, {REC_STRIDE}'); b('s_lshl_b32 s71, s63, 12')
    b('v_lshlrev_b32 v3, 3, v1'); b('v_lshlrev_b32 v5, 4, v1')
    ACC = 8
    AR, NA = 24, 5
    BR, NB = 44, 5
    BC = 64
    D1 = 80
    Y = 96
    S = 112
    YR = 184
    UW, RW = S, S+8
    b('s_lshl_b32 s72, s62, 11'); b('s_add_u32 s72, s72, s71')
    for i in range(2): b(f'buffer_load_dwordx4 {q4(UW+4*i)}, v5, s[48:51], s72 offen offset:{1024*i}')
    b('s_lshl_b32 s73, s62, 9'); b('s_add_u32 s73, s73, s70')
    for i in range(3): b(f'buffer_load_dwordx4 {q4(RW+4*i)}, v3, s[44:47], s73 offen offset:{1024*i}')
    b(f's_mov_b32 s74, {TAB_BC}')
    for p in range(4): b(f'buffer_load_dwordx4 {q4(BC+4*p)}, v5, s[52:55], s74 offen offset:{1024*p}')
    emit_addr(b)
    b('v_mov_b32 v8, 0'); b('v_mov_b32 v9, 0'); b('v_mov_b32 v10, 0'); b('v_mov_b32 v11, 0')
    b(f'ds_write_b128 v{AZ}, v[8:11] offset:{O_UL}')
    for q in range(16): b(f'v_mov_b32 v{ACC+q}, 0')
    b('STAMP 0 vmcnt(4)')
    for i in range(2): b(f'ds_write_b128 v{AU}, {q4(UW+4*i)} offset:{8*UP*i}')
    for i in range(3):
        w = RW + 4*i; o = 1024*i; t0 = AR + 4*i
        b(f'v_alignbit_b32 v{t0}, v{w+1}, v{w}, 16'); b(f'v_alignbit_b32 v{t0+1}, v{w+2}, v{w+1}, 16'); b(f'v_alignbit_b32 v{t0+2}, v{w+3}, v{w+2}, 16')
        if i == 2:
            b('s_mov_b64 s[76:77], exec'); b('s_cmp_eq_u32 s62, 0'); b('s_cselect_b32 s78, 0xffffff, 0'); b('s_mov_b32 s79, 0'); b('s_mov_b64 exec, s[78:79]')
            b('s_cbranch_execz CV_NOW4 ; NOFLUSH')
        b(f'ds_write_b64 v{AK}, {pr(w)} offset:{o}'); b(f'ds_write_b64 v{AK}, {pr(t0)} offset:{KP + o}')
        b(f'v_add_u32 v7, {o}, v{AK2}'); b(f'ds_write2_b32 v7, v{w+1}, v{w+2} offset0:0 offset1:1')
        b(f'v_add_u32 v6, {o}, v{AK3}'); b(f'ds_write2_b32 v6, v{t0+1}, v{t0+2} offset0:0 offset1:1')
        if i == 2:
            b('CV_NOW4: ; NOFLUSH'); b('s_mov_b64 exec, s[76:77]')
    b('s_barrier')
    b('STAMP 1')
    def streams(role):
        F = []; f = F.append
        tiles = (0, 1, 2, 3) if role == 0 else (4, 5)
        s3 = (0, 1) if role == 0 else (2, 3)
        yreg = {t: Y + 4*(t - tiles[0]) for t in tiles}
        T3, G3, DA3 = S, S+16, S+32
        def gpack(d, g):
            f(f'v_cvt_pk_bf16_f32 v{g}, v{d}, v{d+1}'); f(f'v_cvt_pk_bf16_f32 v{g+1}, v{d+2}, v{d+3}')
            f(f'v_cvt_pk_bf16_f32 v{g+2}, v{d+4}, v{d+5}'); f(f'v_cvt_pk_bf16_f32 v{g+3}, v{d+6}, v{d+7}')
        nb3 = max(s3) + 1
        for beta in range(nb3):
            f(f'ds_read_b128 {q4(DA3+8*beta)}, v{AD3A} offset:{4*UP*beta}'); f(f'ds_read_b128 {q4(DA3+8*beta+4)}, v{AD3B} offset:{4*UP*beta}')
        sigs3 = sorted({tp - be for tp in s3 for be in range(tp+1)})
        for s in sigs3:
            f(f'ds_read_b64 {pr(T3+4*s)}, v{AT3} offset:{32*(3-s)}'); f(f'ds_read_b64 {pr(T3+4*s+2)}, v{AT3} offset:{32*(3-s) + 2*(O_R3O-O_R3E)}')
        for beta in range(nb3):
            d = D1 + 8*(beta & 1)
            f(f'v_mfma_f32_16x16x32_bf16 {q4(d)}, {q4(DA3+8*beta)}, {q4(BC+8)}, 0'); f(f'v_mfma_f32_16x16x32_bf16 {q4(d+4)}, {q4(DA3+8*beta+4)}, {q4(BC+12)}, 0')
            gpack(d, G3 + 4*beta)
        for tp in s3:
            y = yreg[tp+2]
            for beta in range(tp+1):
                f(f'v_mfma_f32_16x16x32_bf16 {q4(y)}, {q4(G3+4*beta)}, {q4(T3+4*(tp-beta))}, ' + ('0' if beta == 0 else q4(y)))
        started = {tp+2 for tp in s3}
        T2 = S + 32; DA = S + 56; G = S
        sig2 = sorted({be - 2*t for t in tiles for be in range(max(0, 2*t-4), 2*t+2)})
        for s in sig2:
            f(f'ds_read_b64 {pr(T2+4*(s+4))}, v{AT2} offset:{32*(s+4)}'); f(f'ds_read_b64 {pr(T2+4*(s+4)+2)}, v{AT2} offset:{32*(s+4) + 2*(O_R2O-O_R2E)}')
        betas = list(range(max(0, 2*tiles[0]-4), 2*tiles[-1]+2))
        for q, be in enumerate(betas[:4]): f(f'ds_read_b128 {q4(DA+4*(q & 3))}, v{AD2} offset:{2*UP*be}')
        def tile(t):
            y = yreg[t]; first = t not in started
            for be in range(max(0, 2*t-4), 2*t+2):
                f(f'v_mfma_f32_16x16x32_bf16 {q4(y)}, {q4(G+4*(be % 8))}, {q4(T2+4*(be-2*t+4))}, ' + ('0' if first else q4(y))); first = False
            f(f'ds_write_b128 v{AYW}, {q4(y)} offset:{t*4*272}')
        for q, be in enumerate(betas):
            da = DA + 4*(q & 3); d = D1 + 8*(q & 1); g = G + 4*(be % 8)
            f(f'v_mfma_f32_16x16x32_bf16 {q4(d)}, {q4(da)}, {q4(BC)}, 0'); f(f'v_mfma_f32_16x16x32_bf16 {q4(d+4)}, {q4(da)}, {q4(BC+4)}, 0')
            if q + 4 < len(betas): f(f'ds_read_b128 {q4(da)}, v{AD2} offset:{2*UP*betas[q+4]}')
            gpack(d, g)
            for t in tiles:
                if be == 2*t + 1: tile(t)
        def dk(o):
            dl = -((-o)//64); return dl, (64*dl - o)//16
        near = []
        acc = f'v[{ACC}:{ACC+15}]'
        import os
        PF = int(os.environ.get('CVPF', '4')); NS = 35
        def rd(t):
            s = t + 2*role; dl, ks = dk(528 - 16*s)
            ra = AR + 4*(t % NA); rb = BR + 4*(t % NB)
            return [f'ds_read_b64 {pr(ra)}, v{AN} offset:{32*t}', f'ds_read_b64 {pr(ra+2)}, v{AN} offset:{32*t+8}', f'ds_read_b128 {q4(rb)}, v{AB} offset:{(9-dl)*UP + 32*ks}']
        for k in range(NS + PF):
            if k >= PF:
                t = k - PF
                near.append(f'v_mfma_f32_32x32x16_bf16 {acc}, {q4(AR+4*(t % NA))}, {q4(BR+4*(t % NB))}, {acc}')
            if k < NS: near += rd(k)
        EA = YR; EB = YR + 12
        er = []
        for q, op in enumerate((1040, 1024, 1008)):
            ao = 2*(O_RE + 1087 - op - 31)
            er += [f'ds_read_b64 {pr(EA+4*q)}, v{AN} offset:{ao}', f'ds_read_b64 {pr(EA+4*q+2)}, v{AN} offset:{ao+8}']
        if role == 0: eb = [(ABE2, 96), (ABE, 0), (ABE, 32)]
        else: eb = [(ABE, 32), (ABE, 64), (ABE, 96)]
        for q, (ad, off) in enumerate(eb): er.append(f'ds_read_b128 {q4(EB+4*q)}, v{ad} offset:{off}')
        em = [f'v_mfma_f32_32x32x16_bf16 {acc}, {q4(EA+4*q)}, {q4(EB+4*q)}, {acc}' for q in range(3)]
        nearset = set(near) | set(er) | set(em)
        import os
        return list_schedule(er + em + F + near, lds_lat=int(os.environ.get('CVLAT', '110')), filler=lambda x: x in nearset, memdep=lambda x: None)
    b('s_cmp_eq_u32 s62, 1'); b('s_cbranch_scc1 CV_R1')
    for l in streams(0): b(l)
    b('s_branch CV_JOIN')
    b.label('CV_R1')
    for l in streams(1): b(l)
    b.label('CV_JOIN')
    b('STAMP 2')
    b('s_barrier')
    YRR = 24
    b('s_mov_b64 s[76:77], exec'); b('s_mov_b32 s78, 0xffffff00'); b('s_mov_b32 s79, 0xffffff00'); b('s_mov_b64 exec, s[78:79]')
    for g in range(4): b(f'ds_read_b128 {q4(YRR+4*g)}, v{AYR} offset:{32*g}')
    for q in range(8): b(f'v_pk_add_f32 {pr(ACC+2*q)}, {pr(ACC+2*q)}, {pr(YRR+2*q)}')
    b('s_mov_b64 exec, s[76:77]')
    OB = 44
    for g in range(4):
        o = OB + 2*g
        b(f'v_cvt_pk_bf16_f32 v{o}, v{ACC+4*g}, v{ACC+4*g+1}'); b(f'v_cvt_pk_bf16_f32 v{o+1}, v{ACC+4*g+2}, v{ACC+4*g+3}')
        b(f'ds_write_b64 v{AOW}, {pr(o)} offset:{16*g}')
    b('STAMP 3')
    b('s_barrier')
    for i in range(2): b(f'ds_read_b128 {q4(56+4*i)}, v{AOR} offset:{8*UP*i}')
    for i in range(2): b(f'buffer_store_dwordx4 {q4(56+4*i)}, v5, s[64:67], s72 offen offset:{1024*i} {stflag}')
    b('s_endpgm')
```

```python
from common import *
C8 = 0.70710678118654752
def pr(x): return f'v[{x}:{x+1}]'
def q4(x): return f'v[{x}:{x+3}]'
NEG = 'neg_lo:[0,1] neg_hi:[0,1]'
import os
ZMAJOR = os.environ.get('ZMAJOR', 'row')
def job_p3(b, s_idx, stflag=''):
    RP = 3840
    ZL = 32768
    srd(b, 44, S_WS, SZ_T, WS_Z); srd(b, 48, S_OUT, 2048*2560)
    if ZMAJOR == 'tile':
        b('v_lshrrev_b32 v90, 2, v0'); b('v_lshlrev_b32 v90, 14, v90'); b('v_and_b32 v91, 3, v0'); b('v_lshl_add_u32 v90, v91, 4, v90')
        b(f's_lshl_b32 s75, s{s_idx}, 6')
        b('v_mov_b32 v91, 0x80000000'); b('v_cmp_gt_u32 vcc, 160, v0'); b('v_cndmask_b32 v91, v91, v90, vcc')
        b('buffer_load_dwordx4 v[92:95], v90, s[44:47], s75 offen')
        b(f's_add_u32 s76, s75, {64*16384}'); b('buffer_load_dwordx4 v[96:99], v90, s[44:47], s76 offen')
        b(f's_add_u32 s76, s75, {128*16384}'); b('buffer_load_dwordx4 v[100:103], v91, s[44:47], s76 offen')
    b('v_and_b32 v1, 63, v0'); b('v_and_b32 v2, 15, v1'); b('v_lshrrev_b32 v3, 4, v1')
    b('v_lshrrev_b32 v4, 6, v0'); b('s_nop 0'); b('v_readfirstlane_b32 s60, v4')
    b('v_mul_u32_u24 v50, 336, v3'); b('v_lshlrev_b32 v51, 2, v2'); b('v_add_u32 v50, v50, v51')
    b('v_mov_b32 v52, 0x80000000'); b('v_cmp_gt_u32 vcc, 5, v2'); b('v_cndmask_b32 v52, v52, v50, vcc')
    b('s_sub_u32 s70, 8, s60'); b('s_cmp_eq_u32 s60, 0'); b('s_cselect_b32 s70, 4, s70')
    if ZMAJOR != 'tile':
        b(f's_lshl_b32 s71, s60, 8'); b(f's_add_u32 s71, s71, s{s_idx}'); b('s_mul_i32 s71, s71, 1344')
        b('s_sub_u32 s72, s70, s60'); b(f's_mul_i32 s72, s72, {256*1344}')
        b('s_cmp_eq_u32 s60, 0'); b('s_cselect_b32 s73, 0, s72'); b('s_cselect_b32 s74, s72, 0')
        b('v_cmp_le_u32 vcc, 32, v1')
        b('v_mov_b32 v53, s73'); b('v_cndmask_b32 v53, 0, v53, vcc')
        b('v_mov_b32 v54, s73'); b('v_cndmask_b32 v54, v54, 0, vcc'); b('v_add_u32 v54, s74, v54')
        b('v_add_u32 v55, v50, v53'); b('v_add_u32 v47, v52, v53'); b('v_add_u32 v48, v50, v54'); b('v_add_u32 v49, v52, v54')
    if ZMAJOR == 'tile':
        b('s_sub_u32 s72, s70, s60'); b('s_mul_i32 s72, s72, 1344')
        b('s_cmp_eq_u32 s60, 0'); b('s_cselect_b32 s73, 0, s72'); b('s_cselect_b32 s74, s72, 0')
        b('v_cmp_le_u32 vcc, 32, v1')
        b('v_mov_b32 v53, s73'); b('v_cndmask_b32 v53, 0, v53, vcc')
        b('v_mov_b32 v54, s73'); b('v_cndmask_b32 v54, v54, 0, vcc'); b('v_add_u32 v54, s74, v54')
        b('s_mul_i32 s71, s60, 1344'); b(f's_add_u32 s71, s71, {ZL}')
        b('v_add_u32 v50, s71, v50')
        b('v_add_u32 v104, v50, v53'); b('v_add_u32 v106, v50, v54')
        b(f'v_mov_b32 v107, {ZL + 10752 - 64}'); b('v_cmp_gt_u32 vcc, 5, v2')
        b('v_cndmask_b32 v105, v107, v104, vcc'); b('v_cndmask_b32 v107, v107, v106, vcc')
    ZF = 8
    AZ = [[55, 47], [48, 49]] if ZMAJOR != 'tile' else [[104, 105], [106, 107]]
    if ZMAJOR == 'tile':
        pass
    else:
        for j in range(2):
            for t in range(2):
                for r in range(4):
                    b(f'buffer_load_dword v{ZF+(2*j+t)*4+r}, v{AZ[j][t]}, s[44:47], s71 offen offset:{84*r+64*t}')
    SA, TW, SB = 24, 32, 56
    b('v_cvt_f32_u32 v80, v2'); b('v_lshlrev_b32 v81, 2, v3'); b('v_cvt_f32_u32 v82, v81')
    b(f'v_mul_f32 v83, {fbits(1/16)}, v80'); b('v_mul_f32 v84, v82, v83')
    b('v_lshrrev_b32 v88, 5, v1'); b('v_lshlrev_b32 v88, 31, v88')
    for r in range(4):
        if r: b(f'v_fmamk_f32 v85, v83, {fbits(float(r))}, v84')
        src = 'v85' if r else 'v84'
        b(f'v_cos_f32 v86, {src}'); b(f'v_sin_f32 v87, {src}')
        b(f'v_cvt_pk_bf16_f32 v{SA+r}, v86, -v87'); b(f'v_cvt_pk_bf16_f32 v{SA+4+r}, v87, v86')
        b(f'v_xor_b32 v{SA+r}, v{SA+r}, v88'); b(f'v_xor_b32 v{SA+4+r}, v{SA+4+r}, v88')
    sc = 1.0/(2048*640)
    b('v_cmp_eq_u32 s[82:83], 0, v3'); b('v_cmp_ge_u32 s[84:85], 1, v3')
    b(f'v_mul_f32 v83, {fbits(1/640)}, v80')
    for t in range(2):
        b(f'v_add_f32 v84, {fbits(16.0*t)}, v82' if t else 'v_mov_b32 v84, v82'); b('v_mul_f32 v84, v84, v83')
        for r in range(4):
            if r: b(f'v_fmamk_f32 v85, v83, {fbits(float(r))}, v84')
            src = 'v85' if r else 'v84'
            b(f'v_cos_f32 v86, {src}'); b(f'v_sin_f32 v87, {src}')
            b(f'v_mov_b32 v88, {fbits(2*sc)}')
            if t == 0 and r == 0:
                b(f'v_mov_b32 v89, {fbits(sc)}'); b('v_cndmask_b32 v88, v88, v89, s[82:83]')
            if t == 1:
                if r == 0:
                    b(f'v_mov_b32 v89, {fbits(sc)}'); b('v_cndmask_b32 v88, v89, v88, s[82:83]')
                    b('v_cndmask_b32 v88, 0, v88, s[84:85]')
                else: b('v_cndmask_b32 v88, 0, v88, s[82:83]')
            b(f'v_mul_f32 v{TW+8*t+r}, v86, v88'); b(f'v_mul_f32 v{TW+8*t+4+r}, v87, v88')
    b('v_cmp_gt_u32 s[86:87], 8, v2')
    b('s_and_b64 s[88:89], s[86:87], s[82:83]'); b('s_and_b64 s[76:77], s[86:87], s[84:85]')
    for tau in range(3):
        b(f'v_add_f32 v83, {fbits(16.0*tau)}, v80' if tau else 'v_mov_b32 v83, v80'); b(f'v_mul_f32 v83, {fbits(1/40)}, v83')
        for t in range(2):
            b(f'v_add_f32 v84, {fbits(16.0*t)}, v82' if t else 'v_mov_b32 v84, v82'); b('v_mul_f32 v84, v84, v83')
            for r in range(4):
                if r: b(f'v_fmamk_f32 v85, v83, {fbits(float(r))}, v84')
                src = 'v85' if r else 'v84'
                d = SB + 4*(2*tau+t) + r
                b(f'v_cos_f32 v86, {src}'); b(f'v_sin_f32 v87, {src}'); b(f'v_cvt_pk_bf16_f32 v{d}, v86, -v87')
                msk = None
                if t == 1: msk = ('s[84:85]' if r == 0 else 's[82:83]') if tau < 2 else ('s[76:77]' if r == 0 else 's[88:89]')
                elif tau == 2: msk = 's[86:87]'
                if msk: b(f'v_cndmask_b32 v{d}, 0, v{d}, {msk}')
    b('STAMP 0'); b('STAMP 1 vmcnt(0)')
    if ZMAJOR == 'tile':
        b('v_lshlrev_b32 v90, 4, v0'); b(f'v_add_u32 v90, {ZL}, v90')
        for i in range(3): b(f'ds_write_b128 v90, v[{92+4*i}:{95+4*i}] offset:{4096*i}')
        b('s_barrier')
        for j in range(2):
            for t in range(2):
                for r in range(4):
                    b(f'ds_read_b32 v{ZF+(2*j+t)*4+r}, v{AZ[j][t]} offset:{84*r+64*t}')
    E = 80
    for j in range(2):
        for t in range(2):
            d = E + (2*j+t)*8; z = ZF + (2*j+t)*4
            b(f'v_mfma_f32_16x16x32_bf16 {q4(d)}, {q4(z)}, {q4(SA)}, 0')
            b(f'v_mfma_f32_16x16x32_bf16 {q4(d+4)}, {q4(z)}, {q4(SA+4)}, 0')
    TM = 112
    b('s_cmp_eq_u32 s60, 0'); b('s_cbranch_scc1 P3_W0')
    for t in range(2):
        for h in range(2):
            ar, ai = E + t*8 + 2*h, E + t*8 + 4 + 2*h
            br, bi = E + 16 + t*8 + 2*h, E + 16 + t*8 + 4 + 2*h
            b(f'v_pk_add_f32 {pr(TM)}, {pr(ai)}, {pr(bi)} {NEG}')
            b(f'v_pk_add_f32 {pr(ai)}, {pr(ai)}, {pr(bi)}')
            b(f'v_pk_add_f32 {pr(bi)}, {pr(br)}, {pr(ar)} {NEG}')
            b(f'v_pk_add_f32 {pr(ar)}, {pr(ar)}, {pr(br)}')
            b(f'v_pk_mov_b32 {pr(br)}, {pr(TM)}, {pr(TM)} op_sel:[0,1]')
    b.label('P3_W0')
    VF = 8
    for j in range(2):
        for t in range(2):
            for h in range(2):
                sr_, si_ = E + (2*j+t)*8 + 2*h, E + (2*j+t)*8 + 4 + 2*h
                c, s = TW + 8*t + 2*h, TW + 8*t + 4 + 2*h
                b(f'v_pk_mul_f32 {pr(TM)}, {pr(sr_)}, {pr(c)}'); b(f'v_pk_mul_f32 {pr(TM+2)}, {pr(si_)}, {pr(c)}')
                b(f'v_pk_fma_f32 {pr(TM)}, {pr(si_)}, {pr(s)}, {pr(TM)} neg_lo:[1,0,0] neg_hi:[1,0,0]')
                b(f'v_pk_fma_f32 {pr(TM+2)}, {pr(sr_)}, {pr(s)}, {pr(TM+2)}')
                o = VF + (2*j+t)*4 + 2*h
                b(f'v_cvt_pk_bf16_f32 v{o}, v{TM}, v{TM+2}'); b(f'v_cvt_pk_bf16_f32 v{o+1}, v{TM+1}, v{TM+3}')
    RH = 80
    for j in range(2):
        for tau in range(3):
            d = RH + (3*j+tau)*4
            b(f'v_mfma_f32_16x16x32_bf16 {q4(d)}, {q4(VF+(2*j)*4)}, {q4(SB+4*(2*tau))}, 0')
            b(f'v_mfma_f32_16x16x32_bf16 {q4(d)}, {q4(VF+(2*j+1)*4)}, {q4(SB+4*(2*tau+1))}, {q4(d)}')
    b(f's_mul_i32 s73, s60, {2*RP}'); b('v_mul_u32_u24 v50, 80, v2'); b('v_lshlrev_b32 v51, 4, v3'); b('v_add_u32 v50, v50, v51'); b('v_add_u32 v50, s73, v50')
    for j in range(2):
        for tau in range(3):
            b(f'ds_write_b128 v50, {q4(RH+(3*j+tau)*4)} offset:{j*RP + tau*16*80}')
    b('s_barrier')
    b('STAMP 2')
    b('v_lshrrev_b32 v51, 2, v0'); b('v_mul_u32_u24 v51, 80, v51'); b('v_and_b32 v52, 3, v0'); b('v_lshlrev_b32 v52, 4, v52'); b('v_add_u32 v51, v51, v52')
    RR = 8
    for j in range(8): b(f'ds_read_b128 {q4(RR+4*j)}, v51 offset:{j*RP}')
    b(f's_mov_b32 s76, {fbits(C8)}'); b(f's_mov_b32 s77, {fbits(C8)}')
    OUTR = 64
    T = 40
    for hp in range(2):
        rho = [RR + 4*j + 2*hp for j in range(8)]
        A_, B_, E0, E2_, O1, O3, G, H, I_, J_ = [T + 2*i for i in range(10)]
        M_, N_, Y = 60, 62, 80
        b(f'v_pk_add_f32 {pr(A_)}, {pr(rho[0])}, {pr(rho[1])}'); b(f'v_pk_add_f32 {pr(B_)}, {pr(rho[0])}, {pr(rho[1])} {NEG}')
        b(f'v_pk_add_f32 {pr(E0)}, {pr(A_)}, {pr(rho[4])}'); b(f'v_pk_add_f32 {pr(E2_)}, {pr(A_)}, {pr(rho[4])} {NEG}')
        b(f'v_pk_add_f32 {pr(O1)}, {pr(B_)}, {pr(rho[5])} {NEG}'); b(f'v_pk_add_f32 {pr(O3)}, {pr(B_)}, {pr(rho[5])}')
        b(f'v_pk_add_f32 {pr(G)}, {pr(rho[2])}, {pr(rho[6])}'); b(f'v_pk_add_f32 {pr(H)}, {pr(rho[7])}, {pr(rho[3])} {NEG}')
        b(f'v_pk_add_f32 {pr(I_)}, {pr(rho[2])}, {pr(rho[6])} {NEG}'); b(f'v_pk_add_f32 {pr(J_)}, {pr(rho[3])}, {pr(rho[7])}')
        b(f'v_pk_add_f32 {pr(M_)}, {pr(I_)}, {pr(J_)} {NEG}'); b(f'v_pk_add_f32 {pr(N_)}, {pr(I_)}, {pr(J_)}')
        y = [Y + 2*i for i in range(8)]
        b(f'v_pk_add_f32 {pr(y[0])}, {pr(E0)}, {pr(G)}'); b(f'v_pk_add_f32 {pr(y[4])}, {pr(E0)}, {pr(G)} {NEG}')
        b(f'v_pk_add_f32 {pr(y[2])}, {pr(E2_)}, {pr(H)}'); b(f'v_pk_add_f32 {pr(y[6])}, {pr(E2_)}, {pr(H)} {NEG}')
        b(f'v_pk_fma_f32 {pr(y[1])}, {pr(M_)}, s[76:77], {pr(O1)}'); b(f'v_pk_fma_f32 {pr(y[5])}, {pr(M_)}, s[76:77], {pr(O1)} neg_lo:[1,0,0] neg_hi:[1,0,0]')
        b(f'v_pk_fma_f32 {pr(y[3])}, {pr(N_)}, s[76:77], {pr(O3)} neg_lo:[1,0,0] neg_hi:[1,0,0]'); b(f'v_pk_fma_f32 {pr(y[7])}, {pr(N_)}, s[76:77], {pr(O3)}')
        for s1 in range(8): b(f'v_cvt_pk_bf16_f32 v{OUTR+2*s1+hp}, v{y[s1]}, v{y[s1]+1}')
    b('STAMP 3')
    OS = 32768 if ZMAJOR == 'tile' else 32768
    b('s_lshl_b32 s73, s60, 12'); b(f's_add_u32 s73, s73, {OS}')
    b('v_lshlrev_b32 v5, 3, v1'); b('v_add_u32 v5, s73, v5')
    for s1 in range(8): b(f'ds_write_b64 v5, v[{OUTR+2*s1}:{OUTR+2*s1+1}] offset:{512*s1}')
    b('v_lshlrev_b32 v6, 4, v1'); b('v_add_u32 v6, s73, v6')
    for i in range(4): b(f'ds_read_b128 v[{8+4*i}:{11+4*i}], v6 offset:{1024*i}')
    b('v_and_b32 v5, 31, v1'); b('v_lshlrev_b32 v5, 4, v5'); b('s_lshl_b32 s74, s60, 9'); b('v_add_u32 v5, s74, v5')
    b('v_cmp_gt_u32 vcc, 1280, v5'); b('v_lshrrev_b32 v6, 5, v1'); b(f'v_mul_u32_u24 v6, {256*2560}, v6'); b('v_add_u32 v5, v5, v6')
    b('v_mov_b32 v6, 0x80000000'); b('v_cndmask_b32 v5, v6, v5, vcc')
    b(f's_mul_i32 s61, s{s_idx}, 2560'); b('s_add_u32 s61, s61, 1280')
    for i in range(4):
        if i: b(f's_add_u32 s61, s61, {2*256*2560}')
        b(f'buffer_store_dwordx4 v[{8+4*i}:{11+4*i}], v5, s[48:51], s61 offen ' + stflag)
    b('s_endpgm')
```
